```python
import torch

def _softmax(x, axis=-1):
    return torch.softmax(x, dim=axis)
def _gelu(x):
    return torch.nn.functional.gelu(x, approximate="tanh")
def _silu(x):
    return torch.nn.functional.silu(x)
def _sigmoid(x):
    return torch.sigmoid(x)
def _layernorm(x, axis=-1, eps=1e-5):
    m = x.mean(dim=axis, keepdim=True)
    v = x.var(dim=axis, keepdim=True, unbiased=False)
    return (x - m) / torch.sqrt(v + eps)
def _scatter_add(tgt, idx, src, axis=0):
    return tgt.clone().index_add_(axis, idx, src)
def _segment_sum(src, seg, n):
    out = torch.zeros((n,) + src.shape[1:], dtype=src.dtype)
    return out.index_add_(0, seg, src)
def _pad(x, pw):
    flat = tuple(v for pair in reversed(pw) for v in pair)
    return torch.nn.functional.pad(x, flat)

kernel_name = 'standalone__gqa_block_cached__near_ridge'

def setup_inputs():

    _w = (lambda a: (lambda t: t.to(torch.bfloat16) if t.is_floating_point() else t)(torch.as_tensor(a)))
    B, Sq, D = 8, 128, 448
    Hq, Hkv, Sk, Dh = 16, 8, 512, 256
    assert Hq % Hkv == 0, (Hq, Hkv)
    return {
        "x": _w((lambda *s: torch.randn(*s, dtype=torch.bfloat16) * 0.8)(B, Sq, D)),
        "k_cache": _w((lambda *s: torch.randn(*s, dtype=torch.bfloat16) * 0.8)(B, Hkv, Sk, Dh)),
        "v_cache": _w((lambda *s: torch.randn(*s, dtype=torch.bfloat16) * 0.05)(B, Hkv, Sk, Dh)),
        "wq": _w((lambda *s: torch.randn(*s, dtype=torch.bfloat16) * 0.8)(D, Hq * Dh) * (D ** -0.5)),
        "wo": _w((lambda *s: torch.randn(*s, dtype=torch.bfloat16) * 0.05)(Hq * Dh, D) * ((Hq * Dh) ** -0.5)),
    }

def reference(x, k_cache, v_cache, wq, wo):
    B, Sq, D = x.shape
    Hq, Dh = 16, 256
    Hkv = k_cache.shape[1]
    rep = Hq // Hkv
    q = (lambda x, *d: x.permute(*d))((x @ wq).reshape(B, Sq, Hq, Dh), 0, 2, 1, 3)
    k = (lambda x, n, axis: torch.repeat_interleave(x, n, dim=axis))(k_cache, rep, axis=1)
    v = (lambda x, n, axis: torch.repeat_interleave(x, n, dim=axis))(v_cache, rep, axis=1)
    scores = torch.einsum("bhqd,bhkd->bhqk", q, k) * (Dh ** -0.5)
    p = _softmax(scores, axis=-1)
    o = torch.einsum("bhqk,bhkd->bhqd", p, v)
    return (lambda x, *d: x.permute(*d))(o, 0, 2, 1, 3).reshape(B, Sq, Hq * Dh) @ wo
```

```python
KNAME = "standalone__gqa_block_cached__near_ridge_kernel"

HEADER = """; Kernarg layout (64 bytes, pointers only, base s[0:1]):
"""

class Asm:
    def __init__(self):
        self.lines = []
        self.nlabel = 0
    def __call__(self, s=""):
        for l in s.split("\n"):
            self.lines.append(l)
    def label(self, name):
        self.lines.append(name + ":")
    def newlabel(self, p="L"):
        self.nlabel += 1
        return "%s_%d" % (p, self.nlabel)
    def text(self):
        out = []
        for l in self.lines:
            s = l.strip()
            if s.endswith(":") or s.startswith(".") or s.startswith(";") or s == "":
                out.append(s)
            else:
                out.append("    " + s)
        return "\n".join(out) + "\n"

def kernel_begin(a, name):
    a(".globl %s" % name)
    a(".p2align 8")
    a(".type %s,@function" % name)
    a.label(name)

def kernel_desc(name, vgpr=256, sgpr=102, accum=None):
    if accum is None:
        accum = (vgpr + 3) // 4 * 4
    return """.amdhsa_kernel %s
  .amdhsa_next_free_vgpr %d
  .amdhsa_next_free_sgpr %d
  .amdhsa_accum_offset %d
  .amdhsa_group_segment_fixed_size 0
  .amdhsa_kernarg_size 64
  .amdhsa_user_sgpr_count 2
  .amdhsa_user_sgpr_kernarg_segment_ptr 1
  .amdhsa_system_sgpr_workgroup_id_x 1
.end_amdhsa_kernel
""" % (name, vgpr, sgpr, accum)

def wrap_single(body, grid, block, lds, vgpr=256, sgpr=102, accum=None):
    s = HEADER + "; @launch grid=(%d,1,1) block=(%d,1,1) lds=%d\n" % (grid, block, lds)
    s += '.amdgcn_target "amdgcn-amd-amdhsa--gfx950"\n.text\n'
    s += body
    s += '.section .rodata,"a"\n.p2align 6\n' + kernel_desc(KNAME, vgpr, sgpr, accum)
    return s
```

```python
import sys, argparse
from asmlib import *

LDS_X = 0
LDS_Q = 0
LDS_P = [16384, 0]
LDS_O = 24576
LDS_MAX = 57344
LDS_SUM = 59392
RING = 65536
SLOT = 32768
LDS_TOTAL = 163840
WS_PART = 0
WS_DIAG = 16 << 20

S_X, S_K, S_V, S_WQ, S_WO, S_WS = 20, 24, 28, 32, 36, 40
sWAVE = 3
sHQ, sB, sRH, sHKV = 44, 45, 46, 47
sC1 = 48
sSLOT = 49
sT0, sT1, sT2, sT3 = 50, 51, 52, 53
sOFF = 54
sLOOP = 55
sGRP = 56
sSTA, sSTB = 58, 60

def srd(a, s, ptr, off_sgpr, nbytes):
    if off_sgpr is None:
        a("s_mov_b32 s%d, s%d" % (s, ptr))
        a("s_mov_b32 s%d, s%d" % (s + 1, ptr + 1))
    else:
        a("s_add_u32 s%d, s%d, s%d" % (s, ptr, off_sgpr))
        a("s_addc_u32 s%d, s%d, 0" % (s + 1, ptr + 1))
    a("s_mov_b32 s%d, 0x%x" % (s + 2, nbytes))
    a("s_mov_b32 s%d, 0x00020000" % (s + 3))

class K1:
    def __init__(self, opt):
        self.o = opt
        self.a = Asm()
        self.nstamp_l = 0
        self.nstamp_c = 0

    def stamp_loader(self):
        if not self.o.diag: return
        a = self.a
        a("s_memtime s[%d:%d]" % (sSTA, sSTA + 1))
        a("s_waitcnt lgkmcnt(0)")
        a("v_writelane_b32 v60, s%d, %d" % (sSTA, self.nstamp_l))
        self.nstamp_l += 1

    def stamp_compute(self):
        if not self.o.diag: return
        a = self.a
        a("s_memtime s[%d:%d]" % (sSTA, sSTA + 1))
        a("s_waitcnt lgkmcnt(0)")
        a("v_writelane_b32 v15, s%d, %d" % (sSTA, self.nstamp_c))
        self.nstamp_c += 1

    def prologue(self):
        a = self.a
        kernel_begin(a, "k1_kernel")
        a("s_cmp_ge_u32 s2, 256")
        a("s_cbranch_scc1 K1_END")
        a("s_load_dwordx16 s[4:19], s[0:1], 0")
        if self.o.diag:
            a("s_memrealtime s[%d:%d]" % (sSTB, sSTB + 1))
        a("v_lshrrev_b32 v1, 6, v0")
        a("v_and_b32 v0, 63, v0")
        a("v_readfirstlane_b32 s%d, v1" % sWAVE)
        a("s_and_b32 s%d, s2, 7" % sHKV)
        a("s_lshr_b32 s%d, s2, 5" % sB)
        a("s_bfe_u32 s%d, s2, 0x10004" % sT0)
        a("s_bfe_u32 s%d, s2, 0x10003" % sRH)
        a("s_lshl_b32 s%d, s%d, 1" % (sHQ, sHKV))
        a("s_add_u32 s%d, s%d, s%d" % (sHQ, sHQ, sT0))
        a("s_mov_b32 s%d, 0x3db8aa3b" % sC1)
        a("s_lshl_b32 s%d, s%d, 1" % (sGRP, sB))
        a("s_add_u32 s%d, s%d, s%d" % (sGRP, sGRP, sRH))
        a("s_mul_i32 s%d, s%d, 57344" % (sT0, sGRP))
        a("s_lshl_b32 s%d, s%d, 3" % (sT1, sB))
        a("s_add_u32 s%d, s%d, s%d" % (sT1, sT1, sHKV))
        a("s_lshl_b32 s%d, s%d, 18" % (sT1, sT1))
        a("s_lshl_b32 s%d, s%d, 9" % (sT2, sHQ))
        a("s_mul_i32 s%d, s%d, 229376" % (sT3, sHQ))
        a("s_waitcnt lgkmcnt(0)")
        srd(a, S_X, 4, sT0, 57344)
        srd(a, S_K, 6, sT1, 262144)
        srd(a, S_V, 8, sT1, 262144)
        srd(a, S_WQ, 10, sT2, 448 * 8192 - 15 * 512)
        srd(a, S_WO, 12, sT3, 229376)
        a("s_lshl_b32 s%d, s%d, 4" % (sT0, sGRP))
        a("s_add_u32 s%d, s%d, s%d" % (sT0, sT0, sHQ))
        a("s_mul_i32 s%d, s%d, 57344" % (sT0, sT0))
        srd(a, S_WS, 18, sT0, 57344)
        a("s_cmp_ge_u32 s%d, 4" % sWAVE)
        a("s_cbranch_scc1 K1_LOADER")

    def loader(self):
        a = self.a
        o = self.o
        a.label("K1_LOADER")
        a("s_sub_u32 s%d, s%d, 4" % (sWAVE, sWAVE))
        vL = 0
        vX = 16
        vWO = 32
        vWQ, vK0, vK1, vV = 40, 41, 42, 43
        a("v_lshrrev_b32 v1, 3, v0")
        a("v_and_b32 v2, 7, v0")
        a("v_bfe_u32 v3, v0, 4, 1")
        a("v_lshlrev_b32 v3, 2, v3")
        a("v_xor_b32 v3, v2, v3")
        a("v_lshlrev_b32 v3, 4, v3")
        a("s_lshl_b32 s%d, s%d, 7" % (sT0, sWAVE))
        a("v_add_u32 v3, s%d, v3" % sT0)
        a("v_lshl_add_u32 v%d, v1, 13, v3" % vWQ)
        a("v_lshl_add_u32 v%d, v1, 9, v3" % vV)
        a("v_lshrrev_b32 v4, 4, v0")
        a("v_xor_b32 v5, v2, v4")
        a("v_lshlrev_b32 v5, 4, v5")
        a("s_lshl_b32 s%d, s%d, 16" % (sT0, sWAVE))
        a("v_add_u32 v5, s%d, v5" % sT0)
        a("v_lshl_add_u32 v%d, v1, 9, v5" % vK0)
        a("v_xor_b32 v%d, 64, v%d" % (vK1, vK0))
        a("s_mul_i32 s%d, s%d, 896" % (sT0, sWAVE))
        a("v_add_u32 v6, s%d, v0" % sT0)
        for j in range(14):
            a("v_add_u32 v7, %d, v6" % (64 * j))
            a("v_mul_u32_u24 v8, 4682, v7")
            a("v_lshrrev_b32 v8, 19, v8")
            a("v_and_b32 v8, 7, v8")
            a("v_xor_b32 v8, v7, v8")
            a("v_lshlrev_b32 v%d, 4, v8" % (vX + j))
        a("s_mul_i32 s%d, s%d, 448" % (sT0, sWAVE))
        a("v_add_u32 v6, s%d, v0" % sT0)
        for j in range(7):
            a("v_add_u32 v7, %d, v6" % (64 * j))
            a("v_mul_u32_u24 v8, 9363, v7")
            a("v_lshrrev_b32 v8, 19, v8")
            a("v_bfe_u32 v8, v8, 1, 1")
            a("v_lshlrev_b32 v8, 2, v8")
            a("v_xor_b32 v8, v7, v8")
            a("v_lshlrev_b32 v%d, 4, v8" % (vWO + j))
        sL8 = 62
        sL7 = 63
        sM = 64
        a("s_lshl_b32 s%d, s%d, 13" % (sL8, sWAVE))
        a("s_mul_i32 s%d, s%d, 7168" % (sL7, sWAVE))
        a("s_mul_i32 s%d, s%d, 14336" % (sT0, sWAVE))
        self.stamp_loader()

        def dma(srdreg, vreg, soff):
            a("buffer_load_dwordx4 v%d, s[%d:%d], %s offen lds" % (vreg, srdreg, srdreg + 3, soff))

        a("s_mov_b32 m0, s%d" % sT0)
        for j in range(14):
            if j: a("s_addk_i32 m0, 0x400")
            a("s_nop 0")
            dma(S_X, vX + j, "0")

        def issue(t):
            slot = RING + (t % 3) * SLOT
            if t <= 6:
                a("s_add_u32 m0, s%d, %d" % (sL8, slot))
                a("s_mov_b32 s%d, %d" % (sOFF, t * 524288))
                for i in range(8):
                    if i:
                        a("s_addk_i32 m0, 0x400")
                        a("s_add_u32 s%d, s%d, 0x10000" % (sOFF, sOFF))
                    dma(S_WQ, vWQ, "s%d" % sOFF)
                return 8
            if t <= 14:
                d, p = (t - 7) >> 1, (t - 7) & 1
                a("s_add_u32 m0, s%d, %d" % (sL8, slot))
                a("s_mov_b32 s%d, %d" % (sOFF, p * 32768 + d * 128))
                for i in range(8):
                    if i:
                        a("s_addk_i32 m0, 0x400")
                        a("s_addk_i32 s%d, 0x1000" % sOFF)
                    dma(S_K, vK1 if i & 1 else vK0, "s%d" % sOFF)
                return 8
            if t <= 22:
                c, wp = (t - 15) >> 1, (t - 15) & 1
                a("s_add_u32 m0, s%d, %d" % (sL8, slot))
                for i in range(8):
                    key = 128 * (2 * wp + (i >> 2)) + 32 * c + 8 * (i & 3)
                    if i: a("s_addk_i32 m0, 0x400")
                    a("s_mov_b32 s%d, %d" % (sOFF, key * 512))
                    dma(S_V, vV, "s%d" % sOFF)
                return 8
            tt = t - 23
            a("s_add_u32 m0, s%d, %d" % (sL7, slot))
            a("s_mov_b32 s%d, %d" % (sOFF, tt * 28672))
            for j in range(7):
                if j: a("s_addk_i32 m0, 0x400")
                a("s_nop 0")
                dma(S_WO, vWO + j, "s%d" % sOFF)
            return 7

        cnt = {}
        cnt[0] = issue(0)
        cnt[1] = issue(1)
        a("s_waitcnt vmcnt(%d)" % cnt[1])
        a("s_barrier")
        self.stamp_loader()
        extra_after = {6: 1, 14: 2, 22: 1}
        for t in range(0, 30):
            n = 0
            if t + 2 <= 30:
                n = issue(t + 2)
            for _ in range(extra_after.get(t - 1, 0)):
                a("s_barrier")
            a("s_waitcnt vmcnt(%d)" % n)
            a("s_barrier")
            self.stamp_loader()
        if o.diag:
            a("s_memrealtime s[%d:%d]" % (sSTA, sSTA + 1))
            a("s_waitcnt lgkmcnt(0)")
            a("v_writelane_b32 v60, s%d, 62" % sSTB)
            a("v_writelane_b32 v60, s%d, 63" % sSTA)
            self.diag_store(60, 4)
        a("s_endpgm")

    def diag_store(self, vreg, waveadd):
        a = self.a
        a("s_lshl_b32 s%d, s2, 3" % sT0)
        a("s_add_u32 s%d, s%d, s%d" % (sT0, sT0, sWAVE))
        a("s_add_u32 s%d, s%d, %d" % (sT0, sT0, waveadd))
        a("s_lshl_b32 s%d, s%d, 8" % (sT0, sT0))
        a("s_add_u32 s%d, s%d, %d" % (sT0, sT0, WS_DIAG))
        a("s_add_u32 s64, s18, s%d" % sT0)
        a("s_addc_u32 s65, s19, 0")
        a("s_mov_b32 s66, 256")
        a("s_mov_b32 s67, 0x00020000")
        a("v_lshlrev_b32 v61, 2, v0")
        a("buffer_store_dword v%d, v61, s[64:67], 0 offen" % vreg)
        a("s_waitcnt vmcnt(0)")

    def compute(self):
        a = self.a
        o = self.o
        vLIN = 2
        vXA = [4, 5, 6, 7]
        vT0, vT1 = 8, 9
        vKA = [8, 9, 10, 11]
        vPAT0, vPAT1 = 12, 13
        vTMP = 3
        vTMP2 = 14
        X = dict(A=[16, 20], B=[24, 28])
        Y = dict(A=[32, 36], B=[40, 44])
        ACCQ = 64
        ACCS = 128
        vM = [48, 49]
        vSUM = [50, 51]
        vSC = list(range(52, 64))

        a("v_lshlrev_b32 v%d, 4, v0" % vLIN)
        a("v_and_b32 v3, 31, v0")
        a("v_lshrrev_b32 v14, 1, v3")
        a("v_mul_u32_u24 v4, 1792, v14")
        a("v_and_b32 v5, 1, v3")
        a("v_mul_u32_u24 v5, 896, v5")
        a("v_add_u32 v4, v4, v5")
        a("v_and_b32 v14, 7, v14")
        a("v_lshrrev_b32 v5, 5, v0")
        a("v_xor_b32 v14, v14, v5")
        a("v_lshl_add_u32 v%d, v14, 4, v4" % vXA[0])
        for j in (1, 2, 3):
            a("v_xor_b32 v%d, %d, v%d" % (vXA[j], j << 5, vXA[0]))
        def trpat(dst0, dst1, hshift):
            a("v_bfe_u32 v3, v0, 2, 2")
            a("v_lshlrev_b32 v3, 7, v3")
            a("v_lshrrev_b32 v14, 5, v0")
            a("v_lshlrev_b32 v14, %d, v14" % hshift)
            a("v_add_u32 v3, v3, v14")
            a("v_bfe_u32 v14, v0, 4, 1")
            a("v_lshlrev_b32 v14, 5, v14")
            a("v_add_u32 v3, v3, v14")
            a("v_and_b32 v14, 3, v0")
            a("v_lshlrev_b32 v14, 3, v14")
            a("v_add_u32 v3, v3, v14")
            a("v_bfe_u32 v14, v0, 3, 1")
            a("v_lshlrev_b32 v14, 6, v14")
            a("v_add_u32 v3, v3, v14")
            a("s_lshl_b32 s%d, s%d, 13" % (sT0, sWAVE))
            a("v_add_u32 v%d, s%d, v3" % (dst0, sT0))
            a("v_xor_b32 v%d, 64, v%d" % (dst1, dst0))
        trpat(vPAT0, vPAT1, 10)
        for r in range(ACCS, ACCS + 128): a("v_mov_b32 v%d, 0" % r)
        for r in range(ACCQ, ACCQ + 64): a("v_mov_b32 v%d, 0" % r)
        a("s_mov_b32 s%d, %d" % (sSLOT, RING))

        def next_slot():
            a("s_add_u32 s%d, s%d, %d" % (sSLOT, sSLOT, SLOT))
            a("s_cmp_eq_u32 s%d, %d" % (sSLOT, LDS_TOTAL))
            a("s_cselect_b32 s%d, %d, s%d" % (sSLOT, RING, sSLOT))

        def mfma(acc, A, B, c0=False):
            a("v_mfma_f32_32x32x16_bf16 v[%d:%d], v[%d:%d], v[%d:%d], %s" % (
                acc, acc + 15, A, A + 3, B, B + 3, "0" if c0 else "v[%d:%d]" % (acc, acc + 15)))

        def barrier():
            a("s_barrier")

        nocmp = o.nocompute

        def q_reads(S, ks, xoff):
            for mb in range(2):
                v = vT0 if mb == 0 else vT1
                a("ds_read_b64_tr_b16 v[%d:%d], v%d offset:%d" % (S['A'][mb], S['A'][mb] + 1, v, ks * 2048))
                a("ds_read_b64_tr_b16 v[%d:%d], v%d offset:%d" % (S['A'][mb] + 2, S['A'][mb] + 3, v, ks * 2048 + 512))
            for nb in range(2):
                a("ds_read_b128 v[%d:%d], v%d offset:%d" % (S['B'][nb], S['B'][nb] + 3, vXA[ks], nb * 28672 + xoff))
        def q_mfmas(S):
            for mb in range(2):
                for nb in range(2):
                    mfma(ACCQ + (mb * 2 + nb) * 16, S['A'][mb], S['B'][nb])
        def set_tr_addr():
            a("v_add_u32 v%d, s%d, v%d" % (vT0, sSLOT, vPAT0))
            a("v_add_u32 v%d, s%d, v%d" % (vT1, sSLOT, vPAT1))

        self.stamp_compute()
        barrier()
        self.stamp_compute()
        if nocmp:
            for t in range(30):
                for _ in range({7: 1, 15: 2, 23: 1}.get(t, 0)): barrier()
                if o.fakemfma:
                    for i in range(16): mfma(ACCQ + (i & 3) * 16, 16, 24)
                barrier()
        else:
            set_tr_addr()
            q_reads(X, 0, 0)
            a("s_mov_b32 s%d, 0" % sLOOP)
            a.label("Q_LOOP")
            q_reads(Y, 1, 0); a("s_waitcnt lgkmcnt(6)"); q_mfmas(X)
            q_reads(X, 2, 0); a("s_waitcnt lgkmcnt(6)"); q_mfmas(Y)
            q_reads(Y, 3, 0); a("s_waitcnt lgkmcnt(6)"); q_mfmas(X)
            a("s_waitcnt lgkmcnt(0)")
            barrier()
            next_slot()
            a("s_add_u32 s%d, s%d, 1" % (sLOOP, sLOOP))
            a("s_cmp_eq_u32 s%d, 7" % sLOOP)
            a("s_cbranch_scc1 Q_LAST")
            set_tr_addr()
            for j in range(4): a("v_add_u32 v%d, 128, v%d" % (vXA[j], vXA[j]))
            q_reads(X, 0, 0)
            q_mfmas(Y)
            a("s_branch Q_LOOP")
            a.label("Q_LAST")
            q_mfmas(Y)
            a("s_nop 7"); a("s_nop 7")
            self.stamp_compute()
            a("s_lshl_b32 s%d, s%d, 13" % (sT0, sWAVE))
            a("v_add_u32 v%d, s%d, v%d" % (vTMP, sT0, vLIN))
            for mb in range(2):
                for nb in range(2):
                    acc = ACCQ + (mb * 2 + nb) * 16
                    for half in range(2):
                        b0 = acc + 8 * half
                        for j in range(4):
                            a("v_cvt_pk_bf16_f32 v%d, v%d, v%d" % (b0 + j, b0 + 2 * j, b0 + 2 * j + 1))
                        a("s_nop 1")
                        a("v_permlane32_swap_b32 v%d, v%d" % (b0, b0 + 2))
                        a("v_permlane32_swap_b32 v%d, v%d" % (b0 + 1, b0 + 3))
                        a("ds_write_b128 v%d, v[%d:%d] offset:%d" % (vTMP, b0, b0 + 3, LDS_Q + ((2 * mb + half) * 2 + nb) * 1024))
            a("s_waitcnt lgkmcnt(0)")
            for r in range(ACCQ, ACCQ + 64): a("v_mov_b32 v%d, 0" % r)
            barrier()
            self.stamp_compute()

            vQA = 12
            a("v_and_b32 v3, 31, v0")
            a("v_bfe_u32 v14, v0, 1, 3")
            a("v_lshrrev_b32 v13, 5, v0")
            a("v_xor_b32 v14, v14, v13")
            a("v_lshlrev_b32 v14, 4, v14")
            a("v_lshl_add_u32 v3, v3, 7, v14")
            a("s_lshl_b32 s%d, s%d, 13" % (sT0, sWAVE))
            a("v_add_u32 v13, s%d, v3" % sT0)
            a("v_mov_b32 v%d, v%d" % (vQA, vLIN))
            def set_k_addr():
                a("v_add_u32 v%d, s%d, v13" % (vKA[0], sSLOT))
                for j in (1, 2, 3):
                    a("v_xor_b32 v%d, %d, v%d" % (vKA[j], j << 5, vKA[0]))
            def s_reads(S, ks):
                for mb in range(2):
                    a("ds_read_b128 v[%d:%d], v%d offset:%d" % (S['A'][mb], S['A'][mb] + 3, vKA[ks], mb * 4096))
                for nb in range(2):
                    a("ds_read_b128 v[%d:%d], v%d offset:%d" % (S['B'][nb], S['B'][nb] + 3, vQA, LDS_Q + (ks * 2 + nb) * 1024))
            def s_mfmas(S, p):
                for mb in range(2):
                    for nb in range(2):
                        mfma(ACCS + ((2 * p + mb) * 2 + nb) * 16, S['A'][mb], S['B'][nb])
            set_k_addr()
            s_reads(X, 0)
            a("s_mov_b32 s%d, 0" % sLOOP)
            a.label("S_LOOP")
            for p in range(2):
                s_reads(Y, 1); a("s_waitcnt lgkmcnt(4)"); s_mfmas(X, p)
                s_reads(X, 2); a("s_waitcnt lgkmcnt(4)"); s_mfmas(Y, p)
                s_reads(Y, 3); a("s_waitcnt lgkmcnt(4)"); s_mfmas(X, p)
                a("s_waitcnt lgkmcnt(0)")
                barrier()
                next_slot()
                if p == 1:
                    a("s_add_u32 s%d, s%d, 1" % (sLOOP, sLOOP))
                    a("s_cmp_eq_u32 s%d, 4" % sLOOP)
                    a("s_cbranch_scc1 S_LAST")
                    a("v_add_u32 v%d, 0x2000, v%d" % (vQA, vQA))
                set_k_addr()
                s_reads(X, 0)
                s_mfmas(Y, p)
            a("s_branch S_LOOP")
            a.label("S_LAST")
            s_mfmas(Y, 1)
            a("s_nop 7"); a("s_nop 7")
            self.stamp_compute()
            for nb in range(2):
                regs = [ACCS + (mb * 2 + nb) * 16 + r for mb in range(4) for r in range(16)]
                d = vM[nb]
                a("v_max3_f32 v%d, v%d, v%d, v%d" % (d, regs[0], regs[1], regs[2]))
                i = 3
                while i + 1 < len(regs):
                    a("v_max3_f32 v%d, v%d, v%d, v%d" % (d, d, regs[i], regs[i + 1]))
                    i += 2
                if i < len(regs):
                    a("v_max_f32 v%d, v%d, v%d" % (d, d, regs[i]))
            vST = 3
            a("v_and_b32 v14, 31, v0")
            a("v_lshlrev_b32 v14, 5, v14")
            a("v_lshrrev_b32 v3, 5, v0")
            a("v_lshl_add_u32 v3, v3, 2, v14")
            a("s_lshl_b32 s%d, s%d, 3" % (sT0, sWAVE))
            a("v_add_u32 v%d, s%d, v3" % (vST, sT0))
            vSTR = 14
            for nb in range(2):
                a("ds_write_b32 v%d, v%d offset:%d" % (vST, vM[nb], LDS_MAX + nb * 1024))
            a("s_waitcnt lgkmcnt(0)")
            barrier()
            for nb in range(2):
                a("ds_read_b128 v[%d:%d], v%d offset:%d" % (16 + nb * 8, 19 + nb * 8, vSTR, LDS_MAX + nb * 1024))
                a("ds_read_b128 v[%d:%d], v%d offset:%d" % (20 + nb * 8, 23 + nb * 8, vSTR, LDS_MAX + nb * 1024 + 16))
            a("s_waitcnt lgkmcnt(0)")
            for nb in range(2):
                b = 16 + nb * 8
                a("v_max3_f32 v%d, v%d, v%d, v%d" % (vM[nb], b, b + 1, b + 2))
                a("v_max3_f32 v%d, v%d, v%d, v%d" % (vM[nb], vM[nb], b + 3, b + 4))
                a("v_max3_f32 v%d, v%d, v%d, v%d" % (vM[nb], vM[nb], b + 5, b + 6))
                a("v_max_f32 v%d, v%d, v%d" % (vM[nb], vM[nb], b + 7))
                a("v_mul_f32 v%d, s%d, v%d" % (vM[nb], sC1, vM[nb]))
                a("v_mov_b32 v%d, 0" % vSUM[nb])
            vPW = 12
            a("s_lshl_b32 s%d, s%d, 12" % (sT0, sWAVE))
            a("v_add_u32 v%d, s%d, v%d" % (vPW, sT0, vLIN))

            def softmax_chunk(c):
                for nb in range(2):
                    acc = ACCS + (c * 2 + nb) * 16
                    for r in range(16):
                        a("v_fma_f32 v%d, v%d, s%d, -v%d" % (acc + r, acc + r, sC1, vM[nb]))
                    for r in range(16):
                        a("v_exp_f32 v%d, v%d" % (acc + r, acc + r))
                    a("s_nop 0")
                    for r in range(16):
                        a("v_add_f32 v%d, v%d, v%d" % (vSUM[nb], vSUM[nb], acc + r))
                    for half in range(2):
                        b0 = acc + 8 * half
                        for j in range(4):
                            a("v_cvt_pk_bf16_f32 v%d, v%d, v%d" % (b0 + j, b0 + 2 * j, b0 + 2 * j + 1))
                        a("ds_write_b128 v%d, v[%d:%d] offset:%d" % (vPW, b0, b0 + 3, LDS_P[c & 1] + (half * 2 + nb) * 1024))
            softmax_chunk(0)
            a("s_waitcnt lgkmcnt(0)")
            barrier()
            self.stamp_compute()

            trpat(vPAT0, vPAT1, 9)
            a("s_lshl_b32 s%d, s%d, 12" % (sT0, sWAVE))
            a("v_add_u32 v52, s%d, v%d" % (sT0, vLIN))
            vPW = 52
            a("v_and_b32 v54, 31, v0")
            a("v_lshlrev_b32 v54, 5, v54")
            a("v_lshrrev_b32 v53, 5, v0")
            a("v_lshl_add_u32 v53, v53, 2, v54")
            a("s_lshl_b32 s%d, s%d, 3" % (sT0, sWAVE))
            a("v_add_u32 v53, s%d, v53" % sT0)
            vST, vSTR = 53, 54
            def pv_reads(S, c, wp, j):
                for mb in range(2):
                    v = vT0 if mb == 0 else vT1
                    a("ds_read_b64_tr_b16 v[%d:%d], v%d offset:%d" % (S['A'][mb], S['A'][mb] + 1, v, j * 2048))
                    a("ds_read_b64_tr_b16 v[%d:%d], v%d offset:%d" % (S['A'][mb] + 2, S['A'][mb] + 3, v, j * 2048 + 1024))
                for nb in range(2):
                    a("ds_read_b128 v[%d:%d], v%d offset:%d" % (S['B'][nb], S['B'][nb] + 3, vLIN, LDS_P[c & 1] + wp * 8192 + j * 2048 + nb * 1024))
            set_tr_addr()
            pv_reads(X, 0, 0, 0)
            for c in range(4):
                for wp in range(2):
                    pv_reads(Y, c, wp, 1); a("s_waitcnt lgkmcnt(6)"); q_mfmas(X)
                    pv_reads(X, c, wp, 2); a("s_waitcnt lgkmcnt(6)"); q_mfmas(Y)
                    pv_reads(Y, c, wp, 3); a("s_waitcnt lgkmcnt(6)"); q_mfmas(X)
                    if wp == 0 and c < 3:
                        softmax_chunk(c + 1)
                        if c == 2:
                            for nb in range(2):
                                a("ds_write_b32 v%d, v%d offset:%d" % (vST, vSUM[nb], LDS_SUM + nb * 1024))
                    a("s_waitcnt lgkmcnt(0)")
                    barrier()
                    next_slot()
                    if not (c == 3 and wp == 1):
                        set_tr_addr()
                        nc, nwp = (c, 1) if wp == 0 else (c + 1, 0)
                        pv_reads(X, nc, nwp, 0)
                    q_mfmas(Y)
            for nb in range(2):
                a("ds_read_b128 v[%d:%d], v%d offset:%d" % (16 + nb * 8, 19 + nb * 8, vSTR, LDS_SUM + nb * 1024))
                a("ds_read_b128 v[%d:%d], v%d offset:%d" % (20 + nb * 8, 23 + nb * 8, vSTR, LDS_SUM + nb * 1024 + 16))
            a("s_waitcnt lgkmcnt(0)")
            self.stamp_compute()
            for nb in range(2):
                b = 16 + nb * 8
                a("v_add_f32 v%d, v%d, v%d" % (b, b, b + 1))
                for k in range(2, 8):
                    a("v_add_f32 v%d, v%d, v%d" % (b, b, b + k))
                a("v_rcp_f32 v%d, v%d" % (vSUM[nb], b))
            a("s_nop 7"); a("s_nop 3")
            a("s_lshl_b32 s%d, s%d, 13" % (sT0, sWAVE))
            a("v_add_u32 v%d, s%d, v%d" % (vTMP, sT0, vLIN))
            for mb in range(2):
                for nb in range(2):
                    acc = ACCQ + (mb * 2 + nb) * 16
                    for r in range(16):
                        a("v_mul_f32 v%d, v%d, v%d" % (acc + r, acc + r, vSUM[nb]))
                    for half in range(2):
                        b0 = acc + 8 * half
                        for j in range(4):
                            a("v_cvt_pk_bf16_f32 v%d, v%d, v%d" % (b0 + j, b0 + 2 * j, b0 + 2 * j + 1))
                        a("ds_write_b128 v%d, v[%d:%d] offset:%d" % (vTMP, b0, b0 + 3, LDS_O + ((2 * mb + half) * 2 + nb) * 1024))
            ACCO = 128
            for r in range(ACCO, ACCO + 112): a("v_mov_b32 v%d, 0" % r)
            a("s_waitcnt lgkmcnt(0)")
            barrier()
            self.stamp_compute()

            XO = dict(A=[64 + 4 * i for i in range(7)], B=92)
            YO = dict(A=[96 + 4 * i for i in range(7)], B=124)
            vW = [12, 13]
            vWA = [8, 9]
            vOB = 10
            a("v_bfe_u32 v3, v0, 2, 2")
            a("v_lshrrev_b32 v14, 5, v0")
            a("v_lshl_add_u32 v3, v14, 2, v3")
            a("v_mul_u32_u24 v3, 896, v3")
            a("v_bfe_u32 v14, v0, 4, 1")
            a("v_lshl_add_u32 v3, v14, 5, v3")
            a("v_and_b32 v14, 3, v0")
            a("v_lshl_add_u32 v3, v14, 3, v3")
            a("s_lshr_b32 s%d, s%d, 1" % (sT0, sWAVE))
            a("s_mul_i32 s%d, s%d, 448" % (sT1, sT0))
            a("v_add_u32 v3, s%d, v3" % sT1)
            a("v_bfe_u32 v14, v0, 3, 1")
            a("v_lshlrev_b32 v14, 6, v14")
            a("v_add_u32 v%d, v3, v14" % vW[0])
            a("v_sub_u32 v%d, v3, v14" % vW[1])
            a("s_cmp_eq_u32 s%d, 0" % sT0)
            a("s_cbranch_scc1 O_NOSWAP")
            a("v_mov_b32 v3, v%d" % vW[0])
            a("v_mov_b32 v%d, v%d" % (vW[0], vW[1]))
            a("v_mov_b32 v%d, v3" % vW[1])
            a.label("O_NOSWAP")
            a("s_and_b32 s%d, s%d, 1" % (sT0, sWAVE))
            a("s_lshl_b32 s%d, s%d, 10" % (sT0, sT0))
            a("s_add_u32 s%d, s%d, %d" % (sT0, sT0, LDS_O))
            a("v_add_u32 v%d, s%d, v%d" % (vOB, sT0, vLIN))
            def set_w_addr():
                a("v_add_u32 v%d, s%d, v%d" % (vWA[0], sSLOT, vW[0]))
                a("v_add_u32 v%d, s%d, v%d" % (vWA[1], sSLOT, vW[1]))
            def o_reads(S, ks):
                for n in range(7):
                    v = vWA[n & 1]
                    off = 16 * ks * 896 + n * 64
                    a("ds_read_b64_tr_b16 v[%d:%d], v%d offset:%d" % (S['A'][n], S['A'][n] + 1, v, off))
                    a("ds_read_b64_tr_b16 v[%d:%d], v%d offset:%d" % (S['A'][n] + 2, S['A'][n] + 3, v, off + 8 * 896))
                a("ds_read_b128 v[%d:%d], v%d offset:%d" % (S['B'], S['B'] + 3, vOB, ks * 2048))
            def o_mfmas(S):
                for n in range(7):
                    mfma(ACCO + 16 * n, S['A'][n], S['B'])
            set_w_addr()
            o_reads(XO, 0)
            a("s_mov_b32 s%d, 0" % sLOOP)
            a.label("O_LOOP")
            o_reads(YO, 1); a("s_waitcnt lgkmcnt(15)"); o_mfmas(XO)
            a("s_add_u32 s%d, s%d, 1" % (sLOOP, sLOOP))
            a("s_cmp_eq_u32 s%d, 8" % sLOOP)
            a("s_cbranch_scc1 O_LAST")
            a("s_waitcnt lgkmcnt(0)")
            barrier()
            next_slot()
            set_w_addr()
            a("v_add_u32 v%d, 0x1000, v%d" % (vOB, vOB))
            o_reads(XO, 0)
            o_mfmas(YO)
            a("s_branch O_LOOP")
            a.label("O_LAST")
            a("s_waitcnt lgkmcnt(0)")
            o_mfmas(YO)
            a("s_nop 7"); a("s_nop 7")
            self.stamp_compute()
            a("s_mul_i32 s%d, s%d, 14336" % (sT0, sWAVE))
            a("v_add_u32 v3, s%d, v%d" % (sT0, vLIN))
            for n in range(7):
                for half in range(2):
                    b0 = ACCO + 16 * n + 8 * half
                    for j in range(4):
                        a("v_cvt_pk_bf16_f32 v%d, v%d, v%d" % (b0 + j, b0 + 2 * j, b0 + 2 * j + 1))
                    idx = n * 2 + half
                    a("s_mov_b32 s%d, %d" % (sOFF, idx * 1024))
                    a("buffer_store_dwordx4 v[%d:%d], v3, s[%d:%d], s%d offen%s" % (b0, b0 + 3, S_WS, S_WS + 3, sOFF, o.storeflags))
        if o.diag:
            a("s_waitcnt vmcnt(0)")
            a("s_memrealtime s[%d:%d]" % (sSTA, sSTA + 1))
            a("s_waitcnt lgkmcnt(0)")
            a("v_writelane_b32 v15, s%d, 62" % sSTB)
            a("v_writelane_b32 v15, s%d, 63" % sSTA)
            self.diag_store(15, 0)
        a.label("K1_END")
        a("s_endpgm")

    def gen(self):
        self.prologue()
        self.compute()
        self.loader()
        return self.a.text()

def gen_k2():
    a = Asm()
    kernel_begin(a, "k2_kernel")
    a("s_cmp_ge_u32 s2, 224")
    a("s_cbranch_scc1 K2_END")
    a("s_load_dwordx2 s[4:5], s[0:1], 40")
    a("s_load_dwordx2 s[6:7], s[0:1], 56")
    a("v_lshrrev_b32 v1, 6, v0")
    a("v_and_b32 v0, 63, v0")
    a("v_readfirstlane_b32 s3, v1")
    a("s_lshl_b32 s8, s2, 2")
    a("s_add_u32 s8, s8, s3")
    a("s_mul_i32 s9, s8, 9363")
    a("s_lshr_b32 s9, s9, 19")
    a("s_mul_i32 s10, s9, 56")
    a("s_sub_u32 s10, s8, s10")
    a("s_mul_i32 s11, s9, %d" % (16 * 57344))
    a("s_lshl_b32 s12, s10, 10")
    a("s_add_u32 s11, s11, s12")
    a("s_waitcnt lgkmcnt(0)")
    a("s_add_u32 s16, s6, s11")
    a("s_addc_u32 s17, s7, 0")
    a("s_mov_b32 s18, %d" % (16 * 57344))
    a("s_mov_b32 s19, 0x00020000")
    a("v_lshlrev_b32 v2, 4, v0")
    a("s_mov_b32 s20, 0")
    for h in range(16):
        a("buffer_load_dwordx4 v[%d:%d], v2, s[16:19], s20 offen" % (16 + 4 * h, 19 + 4 * h))
        if h < 15: a("s_add_u32 s20, s20, 57344")
    a("s_lshr_b32 s21, s10, 1")
    a("s_and_b32 s22, s10, 1")
    a("s_mul_i32 s23, s21, 9363")
    a("s_lshr_b32 s23, s23, 16")
    a("s_mul_i32 s24, s23, 7")
    a("s_sub_u32 s24, s21, s24")
    a("s_and_b32 s25, s23, 1")
    a("s_lshl_b32 s25, s25, 5")
    a("s_lshl_b32 s26, s9, 6")
    a("s_add_u32 s25, s25, s26")
    a("s_lshr_b32 s26, s23, 1")
    a("s_mul_i32 s26, s26, 224")
    a("s_lshl_b32 s27, s24, 5")
    a("s_add_u32 s26, s26, s27")
    a("s_lshl_b32 s27, s22, 4")
    a("s_add_u32 s26, s26, s27")
    a("s_mul_i32 s25, s25, 896")
    a("s_lshl_b32 s26, s26, 1")
    a("s_add_u32 s25, s25, s26")
    a("v_and_b32 v3, 31, v0")
    a("v_mul_u32_u24 v3, 896, v3")
    a("v_lshrrev_b32 v4, 5, v0")
    a("v_lshl_add_u32 v3, v4, 4, v3")
    a("v_add_u32 v3, s25, v3")
    a("s_mov_b32 s28, s4\ns_mov_b32 s29, s5\ns_mov_b32 s30, %d\ns_mov_b32 s31, 0x00020000" % (1024 * 896))
    for j in range(8): a("v_mov_b32 v%d, 0" % (4 + j))
    for h in range(16):
        a("s_waitcnt vmcnt(%d)" % (15 - h))
        for j in range(4):
            r = 16 + 4 * h + j
            a("v_lshlrev_b32 v12, 16, v%d" % r)
            a("v_and_b32 v13, 0xffff0000, v%d" % r)
            a("v_add_f32 v%d, v%d, v12" % (4 + 2 * j, 4 + 2 * j))
            a("v_add_f32 v%d, v%d, v13" % (5 + 2 * j, 5 + 2 * j))
    for j in range(4):
        a("v_cvt_pk_bf16_f32 v%d, v%d, v%d" % (12 + j, 4 + 2 * j, 5 + 2 * j))
    a("s_nop 1")
    a("v_permlane32_swap_b32 v12, v14")
    a("v_permlane32_swap_b32 v13, v15")
    a("buffer_store_dwordx4 v[12:15], v3, s[28:31], 0 offen")
    a.label("K2_END")
    a("s_endpgm")
    return a.text()

def build(opt):
    k1 = K1(opt).gen()
    k2 = gen_k2()
    s = HEADER
    s += "; @launch kernel=k1_kernel grid=(256,1,1) block=(512,1,1) lds=%d\n" % LDS_TOTAL
    if not opt.nok2:
        s += "; @launch kernel=k2_kernel grid=(224,1,1) block=(256,1,1) lds=0\n"
    s += '.amdgcn_target "amdgcn-amd-amdhsa--gfx950"\n.text\n'
    s += k1
    if not opt.nok2: s += k2
    s += '.section .rodata,"a"\n.p2align 6\n' + kernel_desc("k1_kernel", 256, 96)
    if not opt.nok2:
        s += '.p2align 6\n' + kernel_desc("k2_kernel", 80, 40)
    return s

if __name__ == "__main__":
    ap = argparse.ArgumentParser()
    ap.add_argument("-o", default="k1.s")
    ap.add_argument("--diag", action="store_true")
    ap.add_argument("--nocompute", action="store_true")
    ap.add_argument("--fakemfma", action="store_true")
    ap.add_argument("--nok2", action="store_true")
    ap.add_argument("--storeflags", default="")
    opt = ap.parse_args()
    open(opt.o, "w").write(build(opt))
```

```python
import sys, argparse
from asmlib import *

LDS_X = 0
LDS_Q = 0
LDS_P = [16384, 0]
LDS_O = 24576
LDS_MAX = 57344
LDS_SUM = 59392
RING = 65536
SLOT = 32768
LDS_TOTAL = 163840
WS_PART = 0
WS_DIAG = 16 << 20

S_X, S_K, S_V, S_WQ, S_WO, S_WS = 20, 24, 28, 32, 36, 40
sWAVE = 3
sHQ, sB, sRH, sHKV = 44, 45, 46, 47
sC1 = 48
sSLOT = 49
sT0, sT1, sT2, sT3 = 50, 51, 52, 53
sOFF = 54
sLOOP = 55
sGRP = 56
sSTA, sSTB = 58, 60

def srd(a, s, ptr, off_sgpr, nbytes):
    if off_sgpr is None:
        a("s_mov_b32 s%d, s%d" % (s, ptr))
        a("s_mov_b32 s%d, s%d" % (s + 1, ptr + 1))
    else:
        a("s_add_u32 s%d, s%d, s%d" % (s, ptr, off_sgpr))
        a("s_addc_u32 s%d, s%d, 0" % (s + 1, ptr + 1))
    a("s_mov_b32 s%d, 0x%x" % (s + 2, nbytes))
    a("s_mov_b32 s%d, 0x00020000" % (s + 3))

class K1:
    def __init__(self, opt):
        self.o = opt
        self.a = Asm()
        self.nstamp_l = 0
        self.nstamp_c = 0

    def stamp_loader(self):
        if not self.o.diag: return
        a = self.a
        a("s_memtime s[%d:%d]" % (sSTA, sSTA + 1))
        a("s_waitcnt lgkmcnt(0)")
        a("v_writelane_b32 v60, s%d, %d" % (sSTA, self.nstamp_l))
        self.nstamp_l += 1

    def stamp_compute(self):
        if not self.o.diag: return
        a = self.a
        a("s_memtime s[%d:%d]" % (sSTA, sSTA + 1))
        a("s_waitcnt lgkmcnt(0)")
        a("v_writelane_b32 v15, s%d, %d" % (sSTA, self.nstamp_c))
        self.nstamp_c += 1

    def prologue(self):
        a = self.a
        kernel_begin(a, "k1_kernel")
        a("s_cmp_ge_u32 s2, 256")
        a("s_cbranch_scc1 K1_END")
        a("s_load_dwordx16 s[4:19], s[0:1], 0")
        if self.o.diag or self.o.dbgstamp:
            a("s_memrealtime s[%d:%d]" % (sSTB, sSTB + 1))
            a("s_memtime s[70:71]")
        a("v_lshrrev_b32 v1, 6, v0")
        a("v_and_b32 v0, 63, v0")
        a("v_readfirstlane_b32 s%d, v1" % sWAVE)
        a("s_and_b32 s%d, s2, 7" % sHKV)
        a("s_lshr_b32 s%d, s2, 5" % sB)
        a("s_bfe_u32 s%d, s2, 0x10004" % sT0)
        a("s_bfe_u32 s%d, s2, 0x10003" % sRH)
        a("s_lshl_b32 s%d, s%d, 1" % (sHQ, sHKV))
        a("s_add_u32 s%d, s%d, s%d" % (sHQ, sHQ, sT0))
        a("s_mov_b32 s%d, 0x3db8aa3b" % sC1)
        a("s_lshl_b32 s%d, s%d, 1" % (sGRP, sB))
        a("s_add_u32 s%d, s%d, s%d" % (sGRP, sGRP, sRH))
        a("s_mul_i32 s%d, s%d, 57344" % (sT0, sGRP))
        a("s_lshl_b32 s%d, s%d, 3" % (sT1, sB))
        a("s_add_u32 s%d, s%d, s%d" % (sT1, sT1, sHKV))
        a("s_lshl_b32 s%d, s%d, 18" % (sT1, sT1))
        a("s_lshl_b32 s%d, s%d, 9" % (sT2, sHQ))
        a("s_mul_i32 s%d, s%d, 229376" % (sT3, sHQ))
        a("s_waitcnt lgkmcnt(0)")
        srd(a, S_X, 4, sT0, 57344)
        srd(a, S_K, 6, sT1, 262144)
        srd(a, S_V, 8, sT1, 262144)
        srd(a, S_WQ, 10, sT2, 448 * 8192 - 15 * 512)
        srd(a, S_WO, 12, sT3, 229376)
        a("s_lshl_b32 s%d, s%d, 4" % (sT0, sGRP))
        a("s_add_u32 s%d, s%d, s%d" % (sT0, sT0, sHQ))
        a("s_mul_i32 s%d, s%d, 57344" % (sT0, sT0))
        srd(a, S_WS, 18, sT0, 57344)
        a("s_cmp_ge_u32 s%d, 4" % sWAVE)
        a("s_cbranch_scc1 K1_LOADER")

    def loader(self):
        a = self.a
        o = self.o
        a.label("K1_LOADER")
        a("s_sub_u32 s%d, s%d, 4" % (sWAVE, sWAVE))
        vL = 0
        vX = 16
        vWO = 32
        vWQ, vK0, vK1, vV = 40, 41, 42, 43
        a("v_lshrrev_b32 v1, 3, v0")
        a("v_and_b32 v2, 7, v0")
        a("v_bfe_u32 v3, v0, 4, 1")
        a("v_lshlrev_b32 v3, 2, v3")
        a("v_xor_b32 v3, v2, v3")
        a("v_lshlrev_b32 v3, 4, v3")
        a("s_lshl_b32 s%d, s%d, 7" % (sT0, sWAVE))
        a("v_add_u32 v3, s%d, v3" % sT0)
        a("v_lshl_add_u32 v%d, v1, 13, v3" % vWQ)
        a("v_lshl_add_u32 v%d, v1, 9, v3" % vV)
        a("v_lshrrev_b32 v4, 4, v0")
        a("v_xor_b32 v5, v2, v4")
        a("v_lshlrev_b32 v5, 4, v5")
        a("s_lshl_b32 s%d, s%d, 16" % (sT0, sWAVE))
        a("v_add_u32 v5, s%d, v5" % sT0)
        a("v_lshl_add_u32 v%d, v1, 9, v5" % vK0)
        a("v_xor_b32 v%d, 64, v%d" % (vK1, vK0))
        a("s_mul_i32 s%d, s%d, 896" % (sT0, sWAVE))
        a("v_add_u32 v6, s%d, v0" % sT0)
        for j in range(14):
            a("v_add_u32 v7, %d, v6" % (64 * j))
            a("v_mul_u32_u24 v8, 4682, v7")
            a("v_lshrrev_b32 v8, 19, v8")
            a("v_and_b32 v8, 7, v8")
            a("v_xor_b32 v8, v7, v8")
            a("v_lshlrev_b32 v%d, 4, v8" % (vX + j))
        a("s_mul_i32 s%d, s%d, 448" % (sT0, sWAVE))
        a("v_add_u32 v6, s%d, v0" % sT0)
        for j in range(7):
            a("v_add_u32 v7, %d, v6" % (64 * j))
            a("v_mul_u32_u24 v8, 9363, v7")
            a("v_lshrrev_b32 v8, 19, v8")
            a("v_bfe_u32 v8, v8, 1, 1")
            a("v_lshlrev_b32 v8, 2, v8")
            a("v_xor_b32 v8, v7, v8")
            a("v_lshlrev_b32 v%d, 4, v8" % (vWO + j))
        sL8 = 62
        sL7 = 63
        sM = 64
        a("s_lshl_b32 s%d, s%d, 13" % (sL8, sWAVE))
        a("s_mul_i32 s%d, s%d, 7168" % (sL7, sWAVE))
        a("s_mul_i32 s%d, s%d, 14336" % (sT0, sWAVE))
        self.stamp_loader()

        def dma(srdreg, vreg, soff):
            a("buffer_load_dwordx4 v%d, s[%d:%d], %s offen lds" % (vreg, srdreg, srdreg + 3, soff))

        a("s_mov_b32 m0, s%d" % sT0)
        for j in range(14):
            if j: a("s_addk_i32 m0, 0x400")
            a("s_nop 0")
            dma(S_X, vX + j, "0")

        def issue(t):
            slot = RING + (t % 3) * SLOT
            if t <= 6:
                a("s_add_u32 m0, s%d, %d" % (sL8, slot))
                a("s_mov_b32 s%d, %d" % (sOFF, t * 524288))
                for i in range(8):
                    if i:
                        a("s_addk_i32 m0, 0x400")
                        a("s_add_u32 s%d, s%d, 0x10000" % (sOFF, sOFF))
                    dma(S_WQ, vWQ, "s%d" % sOFF)
                return 8
            if t <= 14:
                d, p = (t - 7) >> 1, (t - 7) & 1
                a("s_add_u32 m0, s%d, %d" % (sL8, slot))
                a("s_mov_b32 s%d, %d" % (sOFF, p * 32768 + d * 128))
                for i in range(8):
                    if i:
                        a("s_addk_i32 m0, 0x400")
                        a("s_addk_i32 s%d, 0x1000" % sOFF)
                    dma(S_K, vK1 if i & 1 else vK0, "s%d" % sOFF)
                return 8
            if t <= 22:
                c, wp = (t - 15) >> 1, (t - 15) & 1
                a("s_add_u32 m0, s%d, %d" % (sL8, slot))
                for i in range(8):
                    key = 128 * (2 * wp + (i >> 2)) + 32 * c + 8 * (i & 3)
                    if i: a("s_addk_i32 m0, 0x400")
                    a("s_mov_b32 s%d, %d" % (sOFF, key * 512))
                    dma(S_V, vV, "s%d" % sOFF)
                return 8
            tt = t - 23
            a("s_add_u32 m0, s%d, %d" % (sL7, slot))
            a("s_mov_b32 s%d, %d" % (sOFF, tt * 28672))
            for j in range(7):
                if j: a("s_addk_i32 m0, 0x400")
                a("s_nop 0")
                dma(S_WO, vWO + j, "s%d" % sOFF)
            return 7

        cnt = {}
        cnt[0] = issue(0)
        cnt[1] = issue(1)
        a("s_waitcnt vmcnt(%d)" % cnt[1])
        a("s_barrier")
        self.stamp_loader()
        extra_after = {6: 1, 14: 2, 22: 1}
        for t in range(0, 30):
            n = 0
            if t + 2 <= 30:
                n = issue(t + 2)
            for _ in range(extra_after.get(t - 1, 0)):
                a("s_barrier")
            a("s_waitcnt vmcnt(%d)" % n)
            a("s_barrier")
            self.stamp_loader()
        if o.diag:
            a("s_memrealtime s[%d:%d]" % (sSTA, sSTA + 1))
            a("s_waitcnt lgkmcnt(0)")
            a("v_writelane_b32 v60, s%d, 62" % sSTB)
            a("v_writelane_b32 v60, s%d, 63" % sSTA)
            self.diag_store(60, 4)
        a("s_endpgm")

    def diag_store(self, vreg, waveadd):
        a = self.a
        a("s_lshl_b32 s%d, s2, 3" % sT0)
        a("s_add_u32 s%d, s%d, s%d" % (sT0, sT0, sWAVE))
        a("s_add_u32 s%d, s%d, %d" % (sT0, sT0, waveadd))
        a("s_lshl_b32 s%d, s%d, 8" % (sT0, sT0))
        a("s_add_u32 s%d, s%d, %d" % (sT0, sT0, WS_DIAG))
        a("s_add_u32 s64, s18, s%d" % sT0)
        a("s_addc_u32 s65, s19, 0")
        a("s_mov_b32 s66, 256")
        a("s_mov_b32 s67, 0x00020000")
        a("v_lshlrev_b32 v61, 2, v0")
        a("buffer_store_dword v%d, v61, s[64:67], 0 offen" % vreg)
        a("s_waitcnt vmcnt(0)")

    def compute(self):
        a = self.a
        o = self.o
        vLIN = 2
        vXA = [4, 5, 6, 7]
        vT0, vT1 = 8, 9
        vKA = [8, 9, 10, 11]
        vPAT0, vPAT1 = 12, 13
        vTMP = 3
        vTMP2 = 14
        X = dict(A=[16, 20], B=[24, 28])
        Y = dict(A=[32, 36], B=[40, 44])
        ACCQ = 64
        ACCS = 128
        vM = [48, 49]
        vSUM = [50, 51]
        vSC = list(range(52, 64))

        a("v_lshlrev_b32 v%d, 4, v0" % vLIN)
        a("v_and_b32 v3, 31, v0")
        a("v_lshrrev_b32 v14, 1, v3")
        a("v_mul_u32_u24 v4, 1792, v14")
        a("v_and_b32 v5, 1, v3")
        a("v_mul_u32_u24 v5, 896, v5")
        a("v_add_u32 v4, v4, v5")
        a("v_and_b32 v14, 7, v14")
        a("v_lshrrev_b32 v5, 5, v0")
        a("v_xor_b32 v14, v14, v5")
        a("v_lshl_add_u32 v%d, v14, 4, v4" % vXA[0])
        for j in (1, 2, 3):
            a("v_xor_b32 v%d, %d, v%d" % (vXA[j], j << 5, vXA[0]))
        def trpat(dst0, dst1, hshift):
            a("v_bfe_u32 v3, v0, 2, 2")
            a("v_lshlrev_b32 v3, 7, v3")
            a("v_lshrrev_b32 v14, 5, v0")
            a("v_lshlrev_b32 v14, %d, v14" % hshift)
            a("v_add_u32 v3, v3, v14")
            a("v_bfe_u32 v14, v0, 4, 1")
            a("v_lshlrev_b32 v14, 5, v14")
            a("v_add_u32 v3, v3, v14")
            a("v_and_b32 v14, 3, v0")
            a("v_lshlrev_b32 v14, 3, v14")
            a("v_add_u32 v3, v3, v14")
            a("v_bfe_u32 v14, v0, 3, 1")
            a("v_lshlrev_b32 v14, 6, v14")
            a("v_add_u32 v3, v3, v14")
            a("s_lshl_b32 s%d, s%d, 13" % (sT0, sWAVE))
            a("v_add_u32 v%d, s%d, v3" % (dst0, sT0))
            a("v_xor_b32 v%d, 64, v%d" % (dst1, dst0))
        trpat(vPAT0, vPAT1, 10)
        for r in range(ACCS, ACCS + 128): a("v_mov_b32 v%d, 0" % r)
        for r in range(ACCQ, ACCQ + 64): a("v_mov_b32 v%d, 0" % r)
        a("s_mov_b32 s%d, %d" % (sSLOT, RING))

        def next_slot():
            a("s_add_u32 s%d, s%d, %d" % (sSLOT, sSLOT, SLOT))
            a("s_cmp_eq_u32 s%d, %d" % (sSLOT, LDS_TOTAL))
            a("s_cselect_b32 s%d, %d, s%d" % (sSLOT, RING, sSLOT))

        def mfma(acc, A, B, c0=False):
            a("v_mfma_f32_32x32x16_bf16 v[%d:%d], v[%d:%d], v[%d:%d], %s" % (
                acc, acc + 15, A, A + 3, B, B + 3, "0" if c0 else "v[%d:%d]" % (acc, acc + 15)))

        def barrier():
            a("s_barrier")

        nocmp = o.nocompute

        def q_reads(S, ks, xoff):
            for mb in range(2):
                v = vT0 if mb == 0 else vT1
                a("ds_read_b64_tr_b16 v[%d:%d], v%d offset:%d" % (S['A'][mb], S['A'][mb] + 1, v, ks * 2048))
                a("ds_read_b64_tr_b16 v[%d:%d], v%d offset:%d" % (S['A'][mb] + 2, S['A'][mb] + 3, v, ks * 2048 + 512))
            for nb in range(2):
                a("ds_read_b128 v[%d:%d], v%d offset:%d" % (S['B'][nb], S['B'][nb] + 3, vXA[ks], nb * 28672 + xoff))
        def q_mfmas(S):
            for mb in range(2):
                for nb in range(2):
                    mfma(ACCQ + (mb * 2 + nb) * 16, S['A'][mb], S['B'][nb])
        def set_tr_addr():
            a("v_add_u32 v%d, s%d, v%d" % (vT0, sSLOT, vPAT0))
            a("v_add_u32 v%d, s%d, v%d" % (vT1, sSLOT, vPAT1))

        self.stamp_compute()
        barrier()
        self.stamp_compute()
        if nocmp:
            for t in range(30):
                for _ in range({7: 1, 15: 2, 23: 1}.get(t, 0)): barrier()
                if o.fakemfma:
                    for i in range(16): mfma(ACCQ + (i & 3) * 16, 16, 24)
                barrier()
        else:
            set_tr_addr()
            q_reads(X, 0, 0)
            a("s_mov_b32 s%d, 0" % sLOOP)
            a.label("Q_LOOP")
            q_reads(Y, 1, 0); a("s_waitcnt lgkmcnt(6)"); q_mfmas(X)
            q_reads(X, 2, 0); a("s_waitcnt lgkmcnt(6)"); q_mfmas(Y)
            q_reads(Y, 3, 0); a("s_waitcnt lgkmcnt(6)"); q_mfmas(X)
            a("s_waitcnt lgkmcnt(0)")
            barrier()
            next_slot()
            a("s_add_u32 s%d, s%d, 1" % (sLOOP, sLOOP))
            a("s_cmp_eq_u32 s%d, 7" % sLOOP)
            a("s_cbranch_scc1 Q_LAST")
            set_tr_addr()
            for j in range(4): a("v_add_u32 v%d, 128, v%d" % (vXA[j], vXA[j]))
            q_reads(X, 0, 0)
            q_mfmas(Y)
            a("s_branch Q_LOOP")
            a.label("Q_LAST")
            q_mfmas(Y)
            a("s_nop 7"); a("s_nop 7")
            self.stamp_compute()
            a("s_lshl_b32 s%d, s%d, 13" % (sT0, sWAVE))
            a("v_add_u32 v%d, s%d, v%d" % (vTMP, sT0, vLIN))
            for mb in range(2):
                for nb in range(2):
                    acc = ACCQ + (mb * 2 + nb) * 16
                    for half in range(2):
                        b0 = acc + 8 * half
                        for j in range(4):
                            a("v_cvt_pk_bf16_f32 v%d, v%d, v%d" % (b0 + j, b0 + 2 * j, b0 + 2 * j + 1))
                        a("s_nop 1")
                        a("v_permlane32_swap_b32 v%d, v%d" % (b0, b0 + 2))
                        a("v_permlane32_swap_b32 v%d, v%d" % (b0 + 1, b0 + 3))
                        a("ds_write_b128 v%d, v[%d:%d] offset:%d" % (vTMP, b0, b0 + 3, LDS_Q + ((2 * mb + half) * 2 + nb) * 1024))
            a("s_waitcnt lgkmcnt(0)")
            for r in range(ACCQ, ACCQ + 64): a("v_mov_b32 v%d, 0" % r)
            barrier()
            self.stamp_compute()

            vQA = 12
            a("v_and_b32 v3, 31, v0")
            a("v_bfe_u32 v14, v0, 1, 3")
            a("v_lshrrev_b32 v13, 5, v0")
            a("v_xor_b32 v14, v14, v13")
            a("v_lshlrev_b32 v14, 4, v14")
            a("v_lshl_add_u32 v3, v3, 7, v14")
            a("s_lshl_b32 s%d, s%d, 13" % (sT0, sWAVE))
            a("v_add_u32 v13, s%d, v3" % sT0)
            a("v_mov_b32 v%d, v%d" % (vQA, vLIN))
            def set_k_addr():
                a("v_add_u32 v%d, s%d, v13" % (vKA[0], sSLOT))
                for j in (1, 2, 3):
                    a("v_xor_b32 v%d, %d, v%d" % (vKA[j], j << 5, vKA[0]))
            def s_reads(S, ks):
                for mb in range(2):
                    a("ds_read_b128 v[%d:%d], v%d offset:%d" % (S['A'][mb], S['A'][mb] + 3, vKA[ks], mb * 4096))
                for nb in range(2):
                    a("ds_read_b128 v[%d:%d], v%d offset:%d" % (S['B'][nb], S['B'][nb] + 3, vQA, LDS_Q + (ks * 2 + nb) * 1024))
            def s_mfmas(S, p):
                for mb in range(2):
                    for nb in range(2):
                        mfma(ACCS + ((2 * p + mb) * 2 + nb) * 16, S['A'][mb], S['B'][nb])
            set_k_addr()
            s_reads(X, 0)
            a("s_mov_b32 s%d, 0" % sLOOP)
            a.label("S_LOOP")
            for p in range(2):
                s_reads(Y, 1); a("s_waitcnt lgkmcnt(4)"); s_mfmas(X, p)
                s_reads(X, 2); a("s_waitcnt lgkmcnt(4)"); s_mfmas(Y, p)
                s_reads(Y, 3); a("s_waitcnt lgkmcnt(4)"); s_mfmas(X, p)
                a("s_waitcnt lgkmcnt(0)")
                barrier()
                next_slot()
                if p == 1:
                    a("s_add_u32 s%d, s%d, 1" % (sLOOP, sLOOP))
                    a("s_cmp_eq_u32 s%d, 4" % sLOOP)
                    a("s_cbranch_scc1 S_LAST")
                    a("v_add_u32 v%d, 0x2000, v%d" % (vQA, vQA))
                set_k_addr()
                s_reads(X, 0)
                s_mfmas(Y, p)
            a("s_branch S_LOOP")
            a.label("S_LAST")
            s_mfmas(Y, 1)
            a("s_nop 7"); a("s_nop 7")
            self.stamp_compute()
            for nb in range(2):
                regs = [ACCS + (mb * 2 + nb) * 16 + r for mb in range(4) for r in range(16)]
                d = vM[nb]
                a("v_max3_f32 v%d, v%d, v%d, v%d" % (d, regs[0], regs[1], regs[2]))
                i = 3
                while i + 1 < len(regs):
                    a("v_max3_f32 v%d, v%d, v%d, v%d" % (d, d, regs[i], regs[i + 1]))
                    i += 2
                if i < len(regs):
                    a("v_max_f32 v%d, v%d, v%d" % (d, d, regs[i]))
            vST = 3
            a("v_and_b32 v14, 31, v0")
            a("v_lshlrev_b32 v14, 5, v14")
            a("v_lshrrev_b32 v3, 5, v0")
            a("v_lshl_add_u32 v3, v3, 2, v14")
            a("s_lshl_b32 s%d, s%d, 3" % (sT0, sWAVE))
            a("v_add_u32 v%d, s%d, v3" % (vST, sT0))
            vSTR = 14
            for nb in range(2):
                a("ds_write_b32 v%d, v%d offset:%d" % (vST, vM[nb], LDS_MAX + nb * 1024))
            a("s_waitcnt lgkmcnt(0)")
            barrier()
            for nb in range(2):
                a("ds_read_b128 v[%d:%d], v%d offset:%d" % (16 + nb * 8, 19 + nb * 8, vSTR, LDS_MAX + nb * 1024))
                a("ds_read_b128 v[%d:%d], v%d offset:%d" % (20 + nb * 8, 23 + nb * 8, vSTR, LDS_MAX + nb * 1024 + 16))
            a("s_waitcnt lgkmcnt(0)")
            for nb in range(2):
                b = 16 + nb * 8
                a("v_max3_f32 v%d, v%d, v%d, v%d" % (vM[nb], b, b + 1, b + 2))
                a("v_max3_f32 v%d, v%d, v%d, v%d" % (vM[nb], vM[nb], b + 3, b + 4))
                a("v_max3_f32 v%d, v%d, v%d, v%d" % (vM[nb], vM[nb], b + 5, b + 6))
                a("v_max_f32 v%d, v%d, v%d" % (vM[nb], vM[nb], b + 7))
                a("v_mul_f32 v%d, s%d, v%d" % (vM[nb], sC1, vM[nb]))
                a("v_mov_b32 v%d, 0" % vSUM[nb])
            vPW = 12
            a("s_lshl_b32 s%d, s%d, 12" % (sT0, sWAVE))
            a("v_add_u32 v%d, s%d, v%d" % (vPW, sT0, vLIN))

            def softmax_chunk(c):
                for nb in range(2):
                    acc = ACCS + (c * 2 + nb) * 16
                    for r in range(16):
                        a("v_fma_f32 v%d, v%d, s%d, -v%d" % (acc + r, acc + r, sC1, vM[nb]))
                    for r in range(16):
                        a("v_exp_f32 v%d, v%d" % (acc + r, acc + r))
                    a("s_nop 0")
                    for r in range(16):
                        a("v_add_f32 v%d, v%d, v%d" % (vSUM[nb], vSUM[nb], acc + r))
                    for half in range(2):
                        b0 = acc + 8 * half
                        for j in range(4):
                            a("v_cvt_pk_bf16_f32 v%d, v%d, v%d" % (b0 + j, b0 + 2 * j, b0 + 2 * j + 1))
                        a("ds_write_b128 v%d, v[%d:%d] offset:%d" % (vPW, b0, b0 + 3, LDS_P[c & 1] + (half * 2 + nb) * 1024))
            softmax_chunk(0)
            a("s_waitcnt lgkmcnt(0)")
            barrier()
            self.stamp_compute()

            trpat(vPAT0, vPAT1, 9)
            a("s_lshl_b32 s%d, s%d, 12" % (sT0, sWAVE))
            a("v_add_u32 v52, s%d, v%d" % (sT0, vLIN))
            vPW = 52
            a("v_and_b32 v54, 31, v0")
            a("v_lshlrev_b32 v54, 5, v54")
            a("v_lshrrev_b32 v53, 5, v0")
            a("v_lshl_add_u32 v53, v53, 2, v54")
            a("s_lshl_b32 s%d, s%d, 3" % (sT0, sWAVE))
            a("v_add_u32 v53, s%d, v53" % sT0)
            vST, vSTR = 53, 54
            def pv_reads(S, c, wp, j):
                for mb in range(2):
                    v = vT0 if mb == 0 else vT1
                    a("ds_read_b64_tr_b16 v[%d:%d], v%d offset:%d" % (S['A'][mb], S['A'][mb] + 1, v, j * 2048))
                    a("ds_read_b64_tr_b16 v[%d:%d], v%d offset:%d" % (S['A'][mb] + 2, S['A'][mb] + 3, v, j * 2048 + 1024))
                for nb in range(2):
                    a("ds_read_b128 v[%d:%d], v%d offset:%d" % (S['B'][nb], S['B'][nb] + 3, vLIN, LDS_P[c & 1] + wp * 8192 + j * 2048 + nb * 1024))
            set_tr_addr()
            pv_reads(X, 0, 0, 0)
            for c in range(4):
                for wp in range(2):
                    pv_reads(Y, c, wp, 1); a("s_waitcnt lgkmcnt(6)"); q_mfmas(X)
                    pv_reads(X, c, wp, 2); a("s_waitcnt lgkmcnt(6)"); q_mfmas(Y)
                    pv_reads(Y, c, wp, 3); a("s_waitcnt lgkmcnt(6)"); q_mfmas(X)
                    if wp == 0 and c < 3:
                        softmax_chunk(c + 1)
                        if c == 2:
                            for nb in range(2):
                                a("ds_write_b32 v%d, v%d offset:%d" % (vST, vSUM[nb], LDS_SUM + nb * 1024))
                    a("s_waitcnt lgkmcnt(0)")
                    barrier()
                    next_slot()
                    if not (c == 3 and wp == 1):
                        set_tr_addr()
                        nc, nwp = (c, 1) if wp == 0 else (c + 1, 0)
                        pv_reads(X, nc, nwp, 0)
                    q_mfmas(Y)
            for nb in range(2):
                a("ds_read_b128 v[%d:%d], v%d offset:%d" % (16 + nb * 8, 19 + nb * 8, vSTR, LDS_SUM + nb * 1024))
                a("ds_read_b128 v[%d:%d], v%d offset:%d" % (20 + nb * 8, 23 + nb * 8, vSTR, LDS_SUM + nb * 1024 + 16))
            a("s_waitcnt lgkmcnt(0)")
            self.stamp_compute()
            for nb in range(2):
                b = 16 + nb * 8
                a("v_add_f32 v%d, v%d, v%d" % (b, b, b + 1))
                for k in range(2, 8):
                    a("v_add_f32 v%d, v%d, v%d" % (b, b, b + k))
                a("v_rcp_f32 v%d, v%d" % (vSUM[nb], b))
            a("s_nop 7"); a("s_nop 3")
            a("s_lshl_b32 s%d, s%d, 13" % (sT0, sWAVE))
            a("v_add_u32 v%d, s%d, v%d" % (vTMP, sT0, vLIN))
            for mb in range(2):
                for nb in range(2):
                    acc = ACCQ + (mb * 2 + nb) * 16
                    for r in range(16):
                        a("v_mul_f32 v%d, v%d, v%d" % (acc + r, acc + r, vSUM[nb]))
                    for half in range(2):
                        b0 = acc + 8 * half
                        for j in range(4):
                            a("v_cvt_pk_bf16_f32 v%d, v%d, v%d" % (b0 + j, b0 + 2 * j, b0 + 2 * j + 1))
                        a("ds_write_b128 v%d, v[%d:%d] offset:%d" % (vTMP, b0, b0 + 3, LDS_O + ((2 * mb + half) * 2 + nb) * 1024))
            ACCO = 128
            for r in range(ACCO, ACCO + 112): a("v_mov_b32 v%d, 0" % r)
            a("s_waitcnt lgkmcnt(0)")
            barrier()
            self.stamp_compute()

            XO = dict(A=[64 + 4 * i for i in range(7)], B=92)
            YO = dict(A=[96 + 4 * i for i in range(7)], B=124)
            vW = [12, 13]
            vWA = [8, 9]
            vOB = 10
            a("v_bfe_u32 v3, v0, 2, 2")
            a("v_lshrrev_b32 v14, 5, v0")
            a("v_lshl_add_u32 v3, v14, 2, v3")
            a("v_mul_u32_u24 v3, 896, v3")
            a("v_bfe_u32 v14, v0, 4, 1")
            a("v_lshl_add_u32 v3, v14, 5, v3")
            a("v_and_b32 v14, 3, v0")
            a("v_lshl_add_u32 v3, v14, 3, v3")
            a("s_lshr_b32 s%d, s%d, 1" % (sT0, sWAVE))
            a("s_mul_i32 s%d, s%d, 448" % (sT1, sT0))
            a("v_add_u32 v3, s%d, v3" % sT1)
            a("v_bfe_u32 v14, v0, 3, 1")
            a("v_lshlrev_b32 v14, 6, v14")
            a("v_add_u32 v%d, v3, v14" % vW[0])
            a("v_sub_u32 v%d, v3, v14" % vW[1])
            a("s_cmp_eq_u32 s%d, 0" % sT0)
            a("s_cbranch_scc1 O_NOSWAP")
            a("v_mov_b32 v3, v%d" % vW[0])
            a("v_mov_b32 v%d, v%d" % (vW[0], vW[1]))
            a("v_mov_b32 v%d, v3" % vW[1])
            a.label("O_NOSWAP")
            a("s_and_b32 s%d, s%d, 1" % (sT0, sWAVE))
            a("s_lshl_b32 s%d, s%d, 10" % (sT0, sT0))
            a("s_add_u32 s%d, s%d, %d" % (sT0, sT0, LDS_O))
            a("v_add_u32 v%d, s%d, v%d" % (vOB, sT0, vLIN))
            def set_w_addr():
                a("v_add_u32 v%d, s%d, v%d" % (vWA[0], sSLOT, vW[0]))
                a("v_add_u32 v%d, s%d, v%d" % (vWA[1], sSLOT, vW[1]))
            def o_reads(S, ks):
                for n in range(7):
                    v = vWA[n & 1]
                    off = 16 * ks * 896 + n * 64
                    a("ds_read_b64_tr_b16 v[%d:%d], v%d offset:%d" % (S['A'][n], S['A'][n] + 1, v, off))
                    a("ds_read_b64_tr_b16 v[%d:%d], v%d offset:%d" % (S['A'][n] + 2, S['A'][n] + 3, v, off + 8 * 896))
                a("ds_read_b128 v[%d:%d], v%d offset:%d" % (S['B'], S['B'] + 3, vOB, ks * 2048))
            def o_mfmas(S):
                for n in range(7):
                    mfma(ACCO + 16 * n, S['A'][n], S['B'])
            set_w_addr()
            o_reads(XO, 0)
            a("s_mov_b32 s%d, 0" % sLOOP)
            a.label("O_LOOP")
            o_reads(YO, 1); a("s_waitcnt lgkmcnt(15)"); o_mfmas(XO)
            a("s_add_u32 s%d, s%d, 1" % (sLOOP, sLOOP))
            a("s_cmp_eq_u32 s%d, 8" % sLOOP)
            a("s_cbranch_scc1 O_LAST")
            a("s_waitcnt lgkmcnt(0)")
            barrier()
            next_slot()
            set_w_addr()
            a("v_add_u32 v%d, 0x1000, v%d" % (vOB, vOB))
            o_reads(XO, 0)
            o_mfmas(YO)
            a("s_branch O_LOOP")
            a.label("O_LAST")
            a("s_waitcnt lgkmcnt(0)")
            o_mfmas(YO)
            a("s_nop 7"); a("s_nop 7")
            self.stamp_compute()
            a("s_mul_i32 s%d, s%d, 14336" % (sT0, sWAVE))
            a("v_add_u32 v3, s%d, v%d" % (sT0, vLIN))
            for n in range(7):
                for half in range(2):
                    b0 = ACCO + 16 * n + 8 * half
                    for j in range(4):
                        a("v_cvt_pk_bf16_f32 v%d, v%d, v%d" % (b0 + j, b0 + 2 * j, b0 + 2 * j + 1))
                    idx = n * 2 + half
                    a("s_mov_b32 s%d, %d" % (sOFF, idx * 1024))
                    a("buffer_store_dwordx4 v[%d:%d], v3, s[%d:%d], s%d offen%s" % (b0, b0 + 3, S_WS, S_WS + 3, sOFF, o.storeflags))
        if o.diag:
            a("s_waitcnt vmcnt(0)")
            a("s_memrealtime s[%d:%d]" % (sSTA, sSTA + 1))
            a("s_waitcnt lgkmcnt(0)")
            a("v_writelane_b32 v15, s%d, 62" % sSTB)
            a("v_writelane_b32 v15, s%d, 63" % sSTA)
            self.diag_store(15, 0)
        if o.dbgstamp:
            a("s_waitcnt vmcnt(0)")
            a("s_memrealtime s[%d:%d]" % (sSTA, sSTA + 1))
            a("s_memtime s[72:73]")
            a("s_waitcnt lgkmcnt(0)")
            a("s_not_b32 s%d, s%d" % (sSTB, sSTB))
            a("s_sub_u32 s72, s72, s70")
            a("s_mov_b32 s64, s16\ns_mov_b32 s65, s17\ns_mov_b32 s66, 256\ns_mov_b32 s67, 0x00020000")
            a("v_mov_b32 v3, s%d" % sSTB)
            a("v_mov_b32 v4, s%d" % sSTA)
            a("v_mov_b32 v5, s72")
            a("v_mov_b32 v6, 0")
            a("v_cmp_eq_u32 vcc, 0, v0")
            a("s_and_saveexec_b64 s[68:69], vcc")
            a("buffer_atomic_umax v3, v6, s[64:67], 0 offen")
            a("buffer_atomic_umax v4, v6, s[64:67], 0 offen offset:4")
            a("buffer_atomic_umax v5, v6, s[64:67], 0 offen offset:8")
            a("s_waitcnt vmcnt(0)")
        a.label("K1_END")
        a("s_endpgm")

    def gen(self):
        self.prologue()
        self.compute()
        self.loader()
        return self.a.text()

def gen_k2():
    a = Asm()
    kernel_begin(a, "k2_kernel")
    a("s_cmp_ge_u32 s2, 224")
    a("s_cbranch_scc1 K2_END")
    a("s_load_dwordx2 s[4:5], s[0:1], 40")
    a("s_load_dwordx2 s[6:7], s[0:1], 56")
    a("v_lshrrev_b32 v1, 6, v0")
    a("v_and_b32 v0, 63, v0")
    a("v_readfirstlane_b32 s3, v1")
    a("s_lshl_b32 s8, s2, 2")
    a("s_add_u32 s8, s8, s3")
    a("s_mul_i32 s9, s8, 9363")
    a("s_lshr_b32 s9, s9, 19")
    a("s_mul_i32 s10, s9, 56")
    a("s_sub_u32 s10, s8, s10")
    a("s_mul_i32 s11, s9, %d" % (16 * 57344))
    a("s_lshl_b32 s12, s10, 10")
    a("s_add_u32 s11, s11, s12")
    a("s_waitcnt lgkmcnt(0)")
    a("s_add_u32 s16, s6, s11")
    a("s_addc_u32 s17, s7, 0")
    a("s_mov_b32 s18, %d" % (16 * 57344))
    a("s_mov_b32 s19, 0x00020000")
    a("v_lshlrev_b32 v2, 4, v0")
    a("s_mov_b32 s20, 0")
    for h in range(16):
        a("buffer_load_dwordx4 v[%d:%d], v2, s[16:19], s20 offen" % (16 + 4 * h, 19 + 4 * h))
        if h < 15: a("s_add_u32 s20, s20, 57344")
    a("s_lshr_b32 s21, s10, 1")
    a("s_and_b32 s22, s10, 1")
    a("s_mul_i32 s23, s21, 9363")
    a("s_lshr_b32 s23, s23, 16")
    a("s_mul_i32 s24, s23, 7")
    a("s_sub_u32 s24, s21, s24")
    a("s_and_b32 s25, s23, 1")
    a("s_lshl_b32 s25, s25, 5")
    a("s_lshl_b32 s26, s9, 6")
    a("s_add_u32 s25, s25, s26")
    a("s_lshr_b32 s26, s23, 1")
    a("s_mul_i32 s26, s26, 224")
    a("s_lshl_b32 s27, s24, 5")
    a("s_add_u32 s26, s26, s27")
    a("s_lshl_b32 s27, s22, 4")
    a("s_add_u32 s26, s26, s27")
    a("s_mul_i32 s25, s25, 896")
    a("s_lshl_b32 s26, s26, 1")
    a("s_add_u32 s25, s25, s26")
    a("v_and_b32 v3, 31, v0")
    a("v_mul_u32_u24 v3, 896, v3")
    a("v_lshrrev_b32 v4, 5, v0")
    a("v_lshl_add_u32 v3, v4, 4, v3")
    a("v_add_u32 v3, s25, v3")
    a("s_mov_b32 s28, s4\ns_mov_b32 s29, s5\ns_mov_b32 s30, %d\ns_mov_b32 s31, 0x00020000" % (1024 * 896))
    for j in range(8): a("v_mov_b32 v%d, 0" % (4 + j))
    for h in range(16):
        a("s_waitcnt vmcnt(%d)" % (15 - h))
        for j in range(4):
            r = 16 + 4 * h + j
            a("v_lshlrev_b32 v12, 16, v%d" % r)
            a("v_and_b32 v13, 0xffff0000, v%d" % r)
            a("v_add_f32 v%d, v%d, v12" % (4 + 2 * j, 4 + 2 * j))
            a("v_add_f32 v%d, v%d, v13" % (5 + 2 * j, 5 + 2 * j))
    for j in range(4):
        a("v_cvt_pk_bf16_f32 v%d, v%d, v%d" % (12 + j, 4 + 2 * j, 5 + 2 * j))
    a("s_nop 1")
    a("v_permlane32_swap_b32 v12, v14")
    a("v_permlane32_swap_b32 v13, v15")
    a("buffer_store_dwordx4 v[12:15], v3, s[28:31], 0 offen")
    a.label("K2_END")
    a("s_endpgm")
    return a.text()

def build(opt):
    k1 = K1(opt).gen()
    k2 = gen_k2()
    s = HEADER
    s += "; @launch kernel=k1_kernel grid=(256,1,1) block=(512,1,1) lds=%d\n" % LDS_TOTAL
    if not opt.nok2:
        s += "; @launch kernel=k2_kernel grid=(224,1,1) block=(256,1,1) lds=0\n"
    s += '.amdgcn_target "amdgcn-amd-amdhsa--gfx950"\n.text\n'
    s += k1
    if not opt.nok2: s += k2
    s += '.section .rodata,"a"\n.p2align 6\n' + kernel_desc("k1_kernel", 256, 96)
    if not opt.nok2:
        s += '.p2align 6\n' + kernel_desc("k2_kernel", 80, 40)
    return s

if __name__ == "__main__":
    ap = argparse.ArgumentParser()
    ap.add_argument("-o", default="k1.s")
    ap.add_argument("--diag", action="store_true")
    ap.add_argument("--nocompute", action="store_true")
    ap.add_argument("--fakemfma", action="store_true")
    ap.add_argument("--nok2", action="store_true")
    ap.add_argument("--dbgstamp", action="store_true")
    ap.add_argument("--storeflags", default="")
    opt = ap.parse_args()
    open(opt.o, "w").write(build(opt))
```

```python
import sys, argparse
from asmlib import *

LDS_X = 0
LDS_Q = 0
LDS_P = [16384, 0]
LDS_O = 24576
LDS_MAX = 57344
LDS_SUM = 59392
RING = 65536
SLOT = 32768
LDS_TOTAL = 163840
WS_PART = 0
WS_DIAG = 16 << 20

S_X, S_K, S_V, S_WQ, S_WO, S_WS = 20, 24, 28, 32, 36, 40
sWAVE = 3
sHQ, sB, sRH, sHKV = 44, 45, 46, 47
sC1 = 48
sSLOT = 49
sT0, sT1, sT2, sT3 = 50, 51, 52, 53
sOFF = 54
sLOOP = 55
sGRP = 56
sSTA, sSTB = 58, 60

def srd(a, s, ptr, off_sgpr, nbytes):
    if off_sgpr is None:
        a("s_mov_b32 s%d, s%d" % (s, ptr))
        a("s_mov_b32 s%d, s%d" % (s + 1, ptr + 1))
    else:
        a("s_add_u32 s%d, s%d, s%d" % (s, ptr, off_sgpr))
        a("s_addc_u32 s%d, s%d, 0" % (s + 1, ptr + 1))
    a("s_mov_b32 s%d, 0x%x" % (s + 2, nbytes))
    a("s_mov_b32 s%d, 0x00020000" % (s + 3))

class K1:
    def __init__(self, opt):
        self.o = opt
        self.a = Asm()
        self.nstamp_l = 0
        self.nstamp_c = 0

    def stamp_loader(self):
        if not self.o.diag: return
        a = self.a
        a("s_memtime s[%d:%d]" % (sSTA, sSTA + 1))
        a("s_waitcnt lgkmcnt(0)")
        a("v_writelane_b32 v60, s%d, %d" % (sSTA, self.nstamp_l))
        self.nstamp_l += 1

    def stamp_compute(self):
        if not self.o.diag: return
        a = self.a
        a("s_memtime s[%d:%d]" % (sSTA, sSTA + 1))
        a("s_waitcnt lgkmcnt(0)")
        a("v_writelane_b32 v15, s%d, %d" % (sSTA, self.nstamp_c))
        self.nstamp_c += 1

    def prologue(self):
        a = self.a
        kernel_begin(a, "k1_kernel")
        a("s_cmp_ge_u32 s2, 256")
        a("s_cbranch_scc1 K1_END")
        a("s_load_dwordx16 s[4:19], s[0:1], 0")
        if self.o.diag or self.o.dbgstamp:
            a("s_memrealtime s[%d:%d]" % (sSTB, sSTB + 1))
            a("s_memtime s[70:71]")
        a("v_lshrrev_b32 v1, 6, v0")
        a("v_and_b32 v0, 63, v0")
        a("v_readfirstlane_b32 s%d, v1" % sWAVE)
        a("s_and_b32 s%d, s2, 7" % sHKV)
        a("s_lshr_b32 s%d, s2, 5" % sB)
        a("s_bfe_u32 s%d, s2, 0x10004" % sT0)
        a("s_bfe_u32 s%d, s2, 0x10003" % sRH)
        a("s_lshl_b32 s%d, s%d, 1" % (sHQ, sHKV))
        a("s_add_u32 s%d, s%d, s%d" % (sHQ, sHQ, sT0))
        a("s_mov_b32 s%d, 0x3db8aa3b" % sC1)
        a("s_lshl_b32 s%d, s%d, 1" % (sGRP, sB))
        a("s_add_u32 s%d, s%d, s%d" % (sGRP, sGRP, sRH))
        a("s_mul_i32 s%d, s%d, 57344" % (sT0, sGRP))
        a("s_lshl_b32 s%d, s%d, 3" % (sT1, sB))
        a("s_add_u32 s%d, s%d, s%d" % (sT1, sT1, sHKV))
        a("s_lshl_b32 s%d, s%d, 18" % (sT1, sT1))
        a("s_lshl_b32 s%d, s%d, 9" % (sT2, sHQ))
        a("s_mul_i32 s%d, s%d, 229376" % (sT3, sHQ))
        a("s_waitcnt lgkmcnt(0)")
        srd(a, S_X, 4, sT0, 57344)
        srd(a, S_K, 6, sT1, 262144)
        srd(a, S_V, 8, sT1, 262144)
        srd(a, S_WQ, 10, sT2, 448 * 8192 - 15 * 512)
        srd(a, S_WO, 12, sT3, 229376)
        a("s_lshl_b32 s%d, s%d, 4" % (sT0, sGRP))
        a("s_add_u32 s%d, s%d, s%d" % (sT0, sT0, sHQ))
        a("s_mul_i32 s%d, s%d, 57344" % (sT0, sT0))
        srd(a, S_WS, 18, sT0, 57344)
        a("s_cmp_ge_u32 s%d, 4" % sWAVE)
        a("s_cbranch_scc1 K1_LOADER")

    def loader(self):
        a = self.a
        o = self.o
        a.label("K1_LOADER")
        a("s_sub_u32 s%d, s%d, 4" % (sWAVE, sWAVE))
        vL = 0
        vX = 16
        vWO = 32
        vWQ, vK0, vK1, vV = 40, 41, 42, 43
        a("v_lshrrev_b32 v1, 3, v0")
        a("v_and_b32 v2, 7, v0")
        a("v_bfe_u32 v3, v0, 4, 1")
        a("v_lshlrev_b32 v3, 2, v3")
        a("v_xor_b32 v3, v2, v3")
        a("v_lshlrev_b32 v3, 4, v3")
        a("s_lshl_b32 s%d, s%d, 7" % (sT0, sWAVE))
        a("v_add_u32 v3, s%d, v3" % sT0)
        a("v_lshl_add_u32 v%d, v1, 13, v3" % vWQ)
        a("v_lshl_add_u32 v%d, v1, 9, v3" % vV)
        a("v_lshrrev_b32 v4, 4, v0")
        a("v_xor_b32 v5, v2, v4")
        a("v_lshlrev_b32 v5, 4, v5")
        a("s_lshl_b32 s%d, s%d, 16" % (sT0, sWAVE))
        a("v_add_u32 v5, s%d, v5" % sT0)
        a("v_lshl_add_u32 v%d, v1, 9, v5" % vK0)
        a("v_xor_b32 v%d, 64, v%d" % (vK1, vK0))
        a("s_mul_i32 s%d, s%d, 896" % (sT0, sWAVE))
        a("v_add_u32 v6, s%d, v0" % sT0)
        for j in range(14):
            a("v_add_u32 v7, %d, v6" % (64 * j))
            a("v_mul_u32_u24 v8, 4682, v7")
            a("v_lshrrev_b32 v8, 19, v8")
            a("v_and_b32 v8, 7, v8")
            a("v_xor_b32 v8, v7, v8")
            a("v_lshlrev_b32 v%d, 4, v8" % (vX + j))
        a("s_mul_i32 s%d, s%d, 448" % (sT0, sWAVE))
        a("v_add_u32 v6, s%d, v0" % sT0)
        for j in range(7):
            a("v_add_u32 v7, %d, v6" % (64 * j))
            a("v_mul_u32_u24 v8, 9363, v7")
            a("v_lshrrev_b32 v8, 19, v8")
            a("v_bfe_u32 v8, v8, 1, 1")
            a("v_lshlrev_b32 v8, 2, v8")
            a("v_xor_b32 v8, v7, v8")
            a("v_lshlrev_b32 v%d, 4, v8" % (vWO + j))
        sL8 = 62
        sL7 = 63
        sM = 64
        a("s_lshl_b32 s%d, s%d, 13" % (sL8, sWAVE))
        a("s_mul_i32 s%d, s%d, 7168" % (sL7, sWAVE))
        a("s_mul_i32 s%d, s%d, 14336" % (sT0, sWAVE))
        self.stamp_loader()

        def dma(srdreg, vreg, soff):
            a("buffer_load_dwordx4 v%d, s[%d:%d], %s offen lds" % (vreg, srdreg, srdreg + 3, soff))

        a("s_mov_b32 m0, s%d" % sT0)
        for j in range(14):
            if j: a("s_addk_i32 m0, 0x400")
            a("s_nop 0")
            dma(S_X, vX + j, "0")

        def issue(t):
            slot = RING + (t % 3) * SLOT
            if t <= 6:
                a("s_add_u32 m0, s%d, %d" % (sL8, slot))
                a("s_mov_b32 s%d, %d" % (sOFF, t * 524288))
                for i in range(8):
                    if i:
                        a("s_addk_i32 m0, 0x400")
                        a("s_add_u32 s%d, s%d, 0x10000" % (sOFF, sOFF))
                    dma(S_WQ, vWQ, "s%d" % sOFF)
                return 8
            if t <= 14:
                d, p = (t - 7) >> 1, (t - 7) & 1
                a("s_add_u32 m0, s%d, %d" % (sL8, slot))
                a("s_mov_b32 s%d, %d" % (sOFF, p * 32768 + d * 128))
                for i in range(8):
                    if i:
                        a("s_addk_i32 m0, 0x400")
                        a("s_addk_i32 s%d, 0x1000" % sOFF)
                    dma(S_K, vK1 if i & 1 else vK0, "s%d" % sOFF)
                return 8
            if t <= 22:
                c, wp = (t - 15) >> 1, (t - 15) & 1
                a("s_add_u32 m0, s%d, %d" % (sL8, slot))
                for i in range(8):
                    key = 128 * (2 * wp + (i >> 2)) + 32 * c + 8 * (i & 3)
                    if i: a("s_addk_i32 m0, 0x400")
                    a("s_mov_b32 s%d, %d" % (sOFF, key * 512))
                    dma(S_V, vV, "s%d" % sOFF)
                return 8
            tt = t - 23
            a("s_add_u32 m0, s%d, %d" % (sL7, slot))
            a("s_mov_b32 s%d, %d" % (sOFF, tt * 28672))
            for j in range(7):
                if j: a("s_addk_i32 m0, 0x400")
                a("s_nop 0")
                dma(S_WO, vWO + j, "s%d" % sOFF)
            return 7

        cnt = {}
        cnt[0] = issue(0)
        cnt[1] = issue(1)
        a("s_waitcnt vmcnt(%d)" % cnt[1])
        a("s_barrier")
        self.stamp_loader()
        extra_after = {6: 1, 14: 2, 22: 1}
        for t in range(0, 30):
            n = 0
            if t + 2 <= 30:
                n = issue(t + 2)
            for _ in range(extra_after.get(t - 1, 0)):
                a("s_barrier")
            a("s_waitcnt vmcnt(%d)" % n)
            a("s_barrier")
            self.stamp_loader()
        if o.diag:
            a("s_memrealtime s[%d:%d]" % (sSTA, sSTA + 1))
            a("s_waitcnt lgkmcnt(0)")
            a("v_writelane_b32 v60, s%d, 62" % sSTB)
            a("v_writelane_b32 v60, s%d, 63" % sSTA)
            self.diag_store(60, 4)
        a("s_endpgm")

    def diag_store(self, vreg, waveadd):
        a = self.a
        a("s_lshl_b32 s%d, s2, 3" % sT0)
        a("s_add_u32 s%d, s%d, s%d" % (sT0, sT0, sWAVE))
        a("s_add_u32 s%d, s%d, %d" % (sT0, sT0, waveadd))
        a("s_lshl_b32 s%d, s%d, 8" % (sT0, sT0))
        a("s_add_u32 s%d, s%d, %d" % (sT0, sT0, WS_DIAG))
        a("s_add_u32 s64, s18, s%d" % sT0)
        a("s_addc_u32 s65, s19, 0")
        a("s_mov_b32 s66, 256")
        a("s_mov_b32 s67, 0x00020000")
        a("v_lshlrev_b32 v61, 2, v0")
        a("buffer_store_dword v%d, v61, s[64:67], 0 offen" % vreg)
        a("s_waitcnt vmcnt(0)")

    def compute(self):
        a = self.a
        o = self.o
        vLIN = 2
        vXA = [4, 5, 6, 7]
        vT0, vT1 = 8, 9
        vKA = [8, 9, 10, 11]
        vPAT0, vPAT1 = 12, 13
        vTMP = 3
        vTMP2 = 14
        X = dict(A=[16, 20], B=[24, 28])
        Y = dict(A=[32, 36], B=[40, 44])
        ACCQ = 64
        ACCS = 128
        vM = [48, 49]
        vSUM = [50, 51]
        vSC = list(range(52, 64))

        a("v_lshlrev_b32 v%d, 4, v0" % vLIN)
        a("v_and_b32 v3, 31, v0")
        a("v_lshrrev_b32 v14, 1, v3")
        a("v_mul_u32_u24 v4, 1792, v14")
        a("v_and_b32 v5, 1, v3")
        a("v_mul_u32_u24 v5, 896, v5")
        a("v_add_u32 v4, v4, v5")
        a("v_and_b32 v14, 7, v14")
        a("v_lshrrev_b32 v5, 5, v0")
        a("v_xor_b32 v14, v14, v5")
        a("v_lshl_add_u32 v%d, v14, 4, v4" % vXA[0])
        for j in (1, 2, 3):
            a("v_xor_b32 v%d, %d, v%d" % (vXA[j], j << 5, vXA[0]))
        def trpat(dst0, dst1, hshift):
            a("v_bfe_u32 v3, v0, 2, 2")
            a("v_lshlrev_b32 v3, 7, v3")
            a("v_lshrrev_b32 v14, 5, v0")
            a("v_lshlrev_b32 v14, %d, v14" % hshift)
            a("v_add_u32 v3, v3, v14")
            a("v_bfe_u32 v14, v0, 4, 1")
            a("v_lshlrev_b32 v14, 5, v14")
            a("v_add_u32 v3, v3, v14")
            a("v_and_b32 v14, 3, v0")
            a("v_lshlrev_b32 v14, 3, v14")
            a("v_add_u32 v3, v3, v14")
            a("v_bfe_u32 v14, v0, 3, 1")
            a("v_lshlrev_b32 v14, 6, v14")
            a("v_add_u32 v3, v3, v14")
            a("s_lshl_b32 s%d, s%d, 13" % (sT0, sWAVE))
            a("v_add_u32 v%d, s%d, v3" % (dst0, sT0))
            a("v_xor_b32 v%d, 64, v%d" % (dst1, dst0))
        trpat(vPAT0, vPAT1, 10)
        for r in range(ACCS, ACCS + 128): a("v_mov_b32 v%d, 0" % r)
        for r in range(ACCQ, ACCQ + 64): a("v_mov_b32 v%d, 0" % r)
        a("s_mov_b32 s%d, %d" % (sSLOT, RING))

        def next_slot():
            a("s_add_u32 s%d, s%d, %d" % (sSLOT, sSLOT, SLOT))
            a("s_cmp_eq_u32 s%d, %d" % (sSLOT, LDS_TOTAL))
            a("s_cselect_b32 s%d, %d, s%d" % (sSLOT, RING, sSLOT))

        def mfma(acc, A, B, c0=False):
            a("v_mfma_f32_32x32x16_bf16 v[%d:%d], v[%d:%d], v[%d:%d], %s" % (
                acc, acc + 15, A, A + 3, B, B + 3, "0" if c0 else "v[%d:%d]" % (acc, acc + 15)))

        def barrier():
            a("s_barrier")

        nocmp = o.nocompute

        def q_reads(S, ks, xoff):
            for mb in range(2):
                v = vT0 if mb == 0 else vT1
                a("ds_read_b64_tr_b16 v[%d:%d], v%d offset:%d" % (S['A'][mb], S['A'][mb] + 1, v, ks * 2048))
                a("ds_read_b64_tr_b16 v[%d:%d], v%d offset:%d" % (S['A'][mb] + 2, S['A'][mb] + 3, v, ks * 2048 + 512))
            for nb in range(2):
                a("ds_read_b128 v[%d:%d], v%d offset:%d" % (S['B'][nb], S['B'][nb] + 3, vXA[ks], nb * 28672 + xoff))
        def q_mfmas(S):
            for mb in range(2):
                for nb in range(2):
                    mfma(ACCQ + (mb * 2 + nb) * 16, S['A'][mb], S['B'][nb])
        def set_tr_addr():
            a("v_add_u32 v%d, s%d, v%d" % (vT0, sSLOT, vPAT0))
            a("v_add_u32 v%d, s%d, v%d" % (vT1, sSLOT, vPAT1))

        self.stamp_compute()
        barrier()
        self.stamp_compute()
        if nocmp:
            for t in range(30):
                for _ in range({7: 1, 15: 2, 23: 1}.get(t, 0)): barrier()
                if o.fakemfma:
                    for i in range(16): mfma(ACCQ + (i & 3) * 16, 16, 24)
                barrier()
        else:
            set_tr_addr()
            q_reads(X, 0, 0)
            a("s_mov_b32 s%d, 0" % sLOOP)
            a.label("Q_LOOP")
            q_reads(Y, 1, 0); a("s_waitcnt lgkmcnt(6)"); q_mfmas(X)
            q_reads(X, 2, 0); a("s_waitcnt lgkmcnt(6)"); q_mfmas(Y)
            q_reads(Y, 3, 0); a("s_waitcnt lgkmcnt(6)"); q_mfmas(X)
            a("s_waitcnt lgkmcnt(0)")
            barrier()
            next_slot()
            a("s_add_u32 s%d, s%d, 1" % (sLOOP, sLOOP))
            a("s_cmp_eq_u32 s%d, 7" % sLOOP)
            a("s_cbranch_scc1 Q_LAST")
            set_tr_addr()
            for j in range(4): a("v_add_u32 v%d, 128, v%d" % (vXA[j], vXA[j]))
            q_reads(X, 0, 0)
            q_mfmas(Y)
            a("s_branch Q_LOOP")
            a.label("Q_LAST")
            q_mfmas(Y)
            a("s_nop 7"); a("s_nop 7")
            self.stamp_compute()
            a("s_lshl_b32 s%d, s%d, 13" % (sT0, sWAVE))
            a("v_add_u32 v%d, s%d, v%d" % (vTMP, sT0, vLIN))
            for mb in range(2):
                for nb in range(2):
                    acc = ACCQ + (mb * 2 + nb) * 16
                    for half in range(2):
                        b0 = acc + 8 * half
                        for j in range(4):
                            a("v_cvt_pk_bf16_f32 v%d, v%d, v%d" % (b0 + j, b0 + 2 * j, b0 + 2 * j + 1))
                        a("s_nop 1")
                        a("v_permlane32_swap_b32 v%d, v%d" % (b0, b0 + 2))
                        a("v_permlane32_swap_b32 v%d, v%d" % (b0 + 1, b0 + 3))
                        a("ds_write_b128 v%d, v[%d:%d] offset:%d" % (vTMP, b0, b0 + 3, LDS_Q + ((2 * mb + half) * 2 + nb) * 1024))
            a("s_waitcnt lgkmcnt(0)")
            for r in range(ACCQ, ACCQ + 64): a("v_mov_b32 v%d, 0" % r)
            barrier()
            self.stamp_compute()

            vQA = 12
            a("v_and_b32 v3, 31, v0")
            a("v_bfe_u32 v14, v0, 1, 3")
            a("v_lshrrev_b32 v13, 5, v0")
            a("v_xor_b32 v14, v14, v13")
            a("v_lshlrev_b32 v14, 4, v14")
            a("v_lshl_add_u32 v3, v3, 7, v14")
            a("s_lshl_b32 s%d, s%d, 13" % (sT0, sWAVE))
            a("v_add_u32 v13, s%d, v3" % sT0)
            a("v_mov_b32 v%d, v%d" % (vQA, vLIN))
            def set_k_addr():
                a("v_add_u32 v%d, s%d, v13" % (vKA[0], sSLOT))
                for j in (1, 2, 3):
                    a("v_xor_b32 v%d, %d, v%d" % (vKA[j], j << 5, vKA[0]))
            def s_reads(S, ks):
                for mb in range(2):
                    a("ds_read_b128 v[%d:%d], v%d offset:%d" % (S['A'][mb], S['A'][mb] + 3, vKA[ks], mb * 4096))
                for nb in range(2):
                    a("ds_read_b128 v[%d:%d], v%d offset:%d" % (S['B'][nb], S['B'][nb] + 3, vQA, LDS_Q + (ks * 2 + nb) * 1024))
            def s_mfmas(S, p):
                for mb in range(2):
                    for nb in range(2):
                        mfma(ACCS + ((2 * p + mb) * 2 + nb) * 16, S['A'][mb], S['B'][nb])
            set_k_addr()
            s_reads(X, 0)
            a("s_mov_b32 s%d, 0" % sLOOP)
            a.label("S_LOOP")
            for p in range(2):
                s_reads(Y, 1); a("s_waitcnt lgkmcnt(4)"); s_mfmas(X, p)
                s_reads(X, 2); a("s_waitcnt lgkmcnt(4)"); s_mfmas(Y, p)
                s_reads(Y, 3); a("s_waitcnt lgkmcnt(4)"); s_mfmas(X, p)
                a("s_waitcnt lgkmcnt(0)")
                barrier()
                next_slot()
                if p == 1:
                    a("s_add_u32 s%d, s%d, 1" % (sLOOP, sLOOP))
                    a("s_cmp_eq_u32 s%d, 4" % sLOOP)
                    a("s_cbranch_scc1 S_LAST")
                    a("v_add_u32 v%d, 0x2000, v%d" % (vQA, vQA))
                set_k_addr()
                s_reads(X, 0)
                s_mfmas(Y, p)
            a("s_branch S_LOOP")
            a.label("S_LAST")
            s_mfmas(Y, 1)
            a("s_nop 7"); a("s_nop 7")
            self.stamp_compute()
            for nb in range(2):
                regs = [ACCS + (mb * 2 + nb) * 16 + r for mb in range(4) for r in range(16)]
                d = vM[nb]
                a("v_max3_f32 v%d, v%d, v%d, v%d" % (d, regs[0], regs[1], regs[2]))
                i = 3
                while i + 1 < len(regs):
                    a("v_max3_f32 v%d, v%d, v%d, v%d" % (d, d, regs[i], regs[i + 1]))
                    i += 2
                if i < len(regs):
                    a("v_max_f32 v%d, v%d, v%d" % (d, d, regs[i]))
            vST = 3
            a("v_and_b32 v14, 31, v0")
            a("v_lshlrev_b32 v14, 5, v14")
            a("v_lshrrev_b32 v3, 5, v0")
            a("v_lshl_add_u32 v3, v3, 2, v14")
            a("s_lshl_b32 s%d, s%d, 3" % (sT0, sWAVE))
            a("v_add_u32 v%d, s%d, v3" % (vST, sT0))
            vSTR = 14
            for nb in range(2):
                a("ds_write_b32 v%d, v%d offset:%d" % (vST, vM[nb], LDS_MAX + nb * 1024))
            a("s_waitcnt lgkmcnt(0)")
            barrier()
            for nb in range(2):
                a("ds_read_b128 v[%d:%d], v%d offset:%d" % (16 + nb * 8, 19 + nb * 8, vSTR, LDS_MAX + nb * 1024))
                a("ds_read_b128 v[%d:%d], v%d offset:%d" % (20 + nb * 8, 23 + nb * 8, vSTR, LDS_MAX + nb * 1024 + 16))
            a("s_waitcnt lgkmcnt(0)")
            for nb in range(2):
                b = 16 + nb * 8
                a("v_max3_f32 v%d, v%d, v%d, v%d" % (vM[nb], b, b + 1, b + 2))
                a("v_max3_f32 v%d, v%d, v%d, v%d" % (vM[nb], vM[nb], b + 3, b + 4))
                a("v_max3_f32 v%d, v%d, v%d, v%d" % (vM[nb], vM[nb], b + 5, b + 6))
                a("v_max_f32 v%d, v%d, v%d" % (vM[nb], vM[nb], b + 7))
                a("v_mul_f32 v%d, s%d, v%d" % (vM[nb], sC1, vM[nb]))
                a("v_mov_b32 v%d, 0" % vSUM[nb])
            vPW = 12
            a("s_lshl_b32 s%d, s%d, 12" % (sT0, sWAVE))
            a("v_add_u32 v%d, s%d, v%d" % (vPW, sT0, vLIN))

            def softmax_chunk(c):
                for nb in range(2):
                    acc = ACCS + (c * 2 + nb) * 16
                    for r in range(16):
                        a("v_fma_f32 v%d, v%d, s%d, -v%d" % (acc + r, acc + r, sC1, vM[nb]))
                    for r in range(16):
                        a("v_exp_f32 v%d, v%d" % (acc + r, acc + r))
                    a("s_nop 0")
                    for r in range(16):
                        a("v_add_f32 v%d, v%d, v%d" % (vSUM[nb], vSUM[nb], acc + r))
                    for half in range(2):
                        b0 = acc + 8 * half
                        for j in range(4):
                            a("v_cvt_pk_bf16_f32 v%d, v%d, v%d" % (b0 + j, b0 + 2 * j, b0 + 2 * j + 1))
                        a("ds_write_b128 v%d, v[%d:%d] offset:%d" % (vPW, b0, b0 + 3, LDS_P[c & 1] + (half * 2 + nb) * 1024))
            softmax_chunk(0)
            a("s_waitcnt lgkmcnt(0)")
            barrier()
            self.stamp_compute()

            trpat(vPAT0, vPAT1, 9)
            a("s_lshl_b32 s%d, s%d, 12" % (sT0, sWAVE))
            a("v_add_u32 v52, s%d, v%d" % (sT0, vLIN))
            vPW = 52
            a("v_and_b32 v54, 31, v0")
            a("v_lshlrev_b32 v54, 5, v54")
            a("v_lshrrev_b32 v53, 5, v0")
            a("v_lshl_add_u32 v53, v53, 2, v54")
            a("s_lshl_b32 s%d, s%d, 3" % (sT0, sWAVE))
            a("v_add_u32 v53, s%d, v53" % sT0)
            vST, vSTR = 53, 54
            def pv_reads(S, c, wp, j):
                for mb in range(2):
                    v = vT0 if mb == 0 else vT1
                    a("ds_read_b64_tr_b16 v[%d:%d], v%d offset:%d" % (S['A'][mb], S['A'][mb] + 1, v, j * 2048))
                    a("ds_read_b64_tr_b16 v[%d:%d], v%d offset:%d" % (S['A'][mb] + 2, S['A'][mb] + 3, v, j * 2048 + 1024))
                for nb in range(2):
                    a("ds_read_b128 v[%d:%d], v%d offset:%d" % (S['B'][nb], S['B'][nb] + 3, vLIN, LDS_P[c & 1] + wp * 8192 + j * 2048 + nb * 1024))
            set_tr_addr()
            pv_reads(X, 0, 0, 0)
            for c in range(4):
                for wp in range(2):
                    pv_reads(Y, c, wp, 1); a("s_waitcnt lgkmcnt(6)"); q_mfmas(X)
                    pv_reads(X, c, wp, 2); a("s_waitcnt lgkmcnt(6)"); q_mfmas(Y)
                    pv_reads(Y, c, wp, 3); a("s_waitcnt lgkmcnt(6)"); q_mfmas(X)
                    if wp == 0 and c < 3:
                        softmax_chunk(c + 1)
                        if c == 2:
                            for nb in range(2):
                                a("ds_write_b32 v%d, v%d offset:%d" % (vST, vSUM[nb], LDS_SUM + nb * 1024))
                    a("s_waitcnt lgkmcnt(0)")
                    barrier()
                    next_slot()
                    if not (c == 3 and wp == 1):
                        set_tr_addr()
                        nc, nwp = (c, 1) if wp == 0 else (c + 1, 0)
                        pv_reads(X, nc, nwp, 0)
                    q_mfmas(Y)
            for nb in range(2):
                a("ds_read_b128 v[%d:%d], v%d offset:%d" % (16 + nb * 8, 19 + nb * 8, vSTR, LDS_SUM + nb * 1024))
                a("ds_read_b128 v[%d:%d], v%d offset:%d" % (20 + nb * 8, 23 + nb * 8, vSTR, LDS_SUM + nb * 1024 + 16))
            a("s_waitcnt lgkmcnt(0)")
            self.stamp_compute()
            for nb in range(2):
                b = 16 + nb * 8
                a("v_add_f32 v%d, v%d, v%d" % (b, b, b + 1))
                for k in range(2, 8):
                    a("v_add_f32 v%d, v%d, v%d" % (b, b, b + k))
                a("v_rcp_f32 v%d, v%d" % (vSUM[nb], b))
            a("s_nop 7"); a("s_nop 3")
            a("s_lshl_b32 s%d, s%d, 13" % (sT0, sWAVE))
            a("v_add_u32 v%d, s%d, v%d" % (vTMP, sT0, vLIN))
            for mb in range(2):
                for nb in range(2):
                    acc = ACCQ + (mb * 2 + nb) * 16
                    for r in range(16):
                        a("v_mul_f32 v%d, v%d, v%d" % (acc + r, acc + r, vSUM[nb]))
                    for half in range(2):
                        b0 = acc + 8 * half
                        for j in range(4):
                            a("v_cvt_pk_bf16_f32 v%d, v%d, v%d" % (b0 + j, b0 + 2 * j, b0 + 2 * j + 1))
                        a("ds_write_b128 v%d, v[%d:%d] offset:%d" % (vTMP, b0, b0 + 3, LDS_O + ((2 * mb + half) * 2 + nb) * 1024))
            ACCO = 128
            for r in range(ACCO, ACCO + 112): a("v_mov_b32 v%d, 0" % r)
            a("s_waitcnt lgkmcnt(0)")
            barrier()
            self.stamp_compute()

            XO = dict(A=[64 + 4 * i for i in range(7)], B=92)
            YO = dict(A=[96 + 4 * i for i in range(7)], B=124)
            vW = [12, 13]
            vWA = [8, 9]
            vOB = 10
            a("v_bfe_u32 v3, v0, 2, 2")
            a("v_lshrrev_b32 v14, 5, v0")
            a("v_lshl_add_u32 v3, v14, 2, v3")
            a("v_mul_u32_u24 v3, 896, v3")
            a("v_bfe_u32 v14, v0, 4, 1")
            a("v_lshl_add_u32 v3, v14, 5, v3")
            a("v_and_b32 v14, 3, v0")
            a("v_lshl_add_u32 v3, v14, 3, v3")
            a("s_lshr_b32 s%d, s%d, 1" % (sT0, sWAVE))
            a("s_mul_i32 s%d, s%d, 448" % (sT1, sT0))
            a("v_add_u32 v3, s%d, v3" % sT1)
            a("v_bfe_u32 v14, v0, 3, 1")
            a("v_lshlrev_b32 v14, 6, v14")
            a("v_add_u32 v%d, v3, v14" % vW[0])
            a("v_sub_u32 v%d, v3, v14" % vW[1])
            a("s_cmp_eq_u32 s%d, 0" % sT0)
            a("s_cbranch_scc1 O_NOSWAP")
            a("v_mov_b32 v3, v%d" % vW[0])
            a("v_mov_b32 v%d, v%d" % (vW[0], vW[1]))
            a("v_mov_b32 v%d, v3" % vW[1])
            a.label("O_NOSWAP")
            a("s_and_b32 s%d, s%d, 1" % (sT0, sWAVE))
            a("s_lshl_b32 s%d, s%d, 10" % (sT0, sT0))
            a("s_add_u32 s%d, s%d, %d" % (sT0, sT0, LDS_O))
            a("v_add_u32 v%d, s%d, v%d" % (vOB, sT0, vLIN))
            def set_w_addr():
                a("v_add_u32 v%d, s%d, v%d" % (vWA[0], sSLOT, vW[0]))
                a("v_add_u32 v%d, s%d, v%d" % (vWA[1], sSLOT, vW[1]))
            def o_reads(S, ks):
                for n in range(7):
                    v = vWA[n & 1]
                    off = 16 * ks * 896 + n * 64
                    a("ds_read_b64_tr_b16 v[%d:%d], v%d offset:%d" % (S['A'][n], S['A'][n] + 1, v, off))
                    a("ds_read_b64_tr_b16 v[%d:%d], v%d offset:%d" % (S['A'][n] + 2, S['A'][n] + 3, v, off + 8 * 896))
                a("ds_read_b128 v[%d:%d], v%d offset:%d" % (S['B'], S['B'] + 3, vOB, ks * 2048))
            def o_mfmas(S):
                for n in range(7):
                    mfma(ACCO + 16 * n, S['A'][n], S['B'])
            set_w_addr()
            o_reads(XO, 0)
            a("s_mov_b32 s%d, 0" % sLOOP)
            a.label("O_LOOP")
            o_reads(YO, 1); a("s_waitcnt lgkmcnt(15)"); o_mfmas(XO)
            a("s_add_u32 s%d, s%d, 1" % (sLOOP, sLOOP))
            a("s_cmp_eq_u32 s%d, 8" % sLOOP)
            a("s_cbranch_scc1 O_LAST")
            a("s_waitcnt lgkmcnt(0)")
            barrier()
            next_slot()
            set_w_addr()
            a("v_add_u32 v%d, 0x1000, v%d" % (vOB, vOB))
            o_reads(XO, 0)
            o_mfmas(YO)
            a("s_branch O_LOOP")
            a.label("O_LAST")
            a("s_waitcnt lgkmcnt(0)")
            o_mfmas(YO)
            a("s_nop 7"); a("s_nop 7")
            self.stamp_compute()
            a("s_mul_i32 s%d, s%d, 14336" % (sT0, sWAVE))
            a("v_add_u32 v3, s%d, v%d" % (sT0, vLIN))
            for n in range(7):
                for half in range(2):
                    b0 = ACCO + 16 * n + 8 * half
                    for j in range(4):
                        a("v_cvt_pk_bf16_f32 v%d, v%d, v%d" % (b0 + j, b0 + 2 * j, b0 + 2 * j + 1))
                    idx = n * 2 + half
                    a("s_mov_b32 s%d, %d" % (sOFF, idx * 1024))
                    a("buffer_store_dwordx4 v[%d:%d], v3, s[%d:%d], s%d offen%s" % (b0, b0 + 3, S_WS, S_WS + 3, sOFF, o.storeflags))
        if o.diag:
            a("s_waitcnt vmcnt(0)")
            a("s_memrealtime s[%d:%d]" % (sSTA, sSTA + 1))
            a("s_waitcnt lgkmcnt(0)")
            a("v_writelane_b32 v15, s%d, 62" % sSTB)
            a("v_writelane_b32 v15, s%d, 63" % sSTA)
            self.diag_store(15, 0)
        if o.dbgstamp:
            a("s_waitcnt vmcnt(0)")
            a("s_memrealtime s[%d:%d]" % (sSTA, sSTA + 1))
            a("s_memtime s[72:73]")
            a("s_waitcnt lgkmcnt(0)")
            a("s_not_b32 s%d, s%d" % (sSTB, sSTB))
            a("s_sub_u32 s72, s72, s70")
            a("s_lshl_b32 s%d, s2, 2" % sT0)
            a("s_add_u32 s%d, s%d, s%d" % (sT0, sT0, sWAVE))
            a("s_lshl_b32 s%d, s%d, 4" % (sT0, sT0))
            a("s_add_u32 s%d, s%d, %d" % (sT0, sT0, WS_DIAG))
            a("s_add_u32 s64, s18, s%d" % sT0)
            a("s_addc_u32 s65, s19, 0")
            a("s_mov_b32 s66, 16\ns_mov_b32 s67, 0x00020000")
            a("v_mov_b32 v4, s%d" % sSTB)
            a("v_mov_b32 v5, s%d" % sSTA)
            a("v_mov_b32 v6, s72")
            a("v_mov_b32 v7, 0")
            a("v_lshlrev_b32 v3, 4, v0")
            a("buffer_store_dwordx4 v[4:7], v3, s[64:67], 0 offen")
            a("s_waitcnt vmcnt(0)")
        a.label("K1_END")
        a("s_endpgm")

    def gen(self):
        self.prologue()
        self.compute()
        self.loader()
        return self.a.text()

def gen_k2(opt):
    a = Asm()
    kernel_begin(a, "k2_kernel")
    a("s_cmp_ge_u32 s2, 224")
    a("s_cbranch_scc1 K2_END")
    a("s_load_dwordx2 s[4:5], s[0:1], 40")
    a("s_load_dwordx2 s[6:7], s[0:1], 56")
    a("v_lshrrev_b32 v1, 6, v0")
    a("v_and_b32 v0, 63, v0")
    a("v_readfirstlane_b32 s3, v1")
    a("s_lshl_b32 s8, s2, 2")
    a("s_add_u32 s8, s8, s3")
    a("s_mul_i32 s9, s8, 9363")
    a("s_lshr_b32 s9, s9, 19")
    a("s_mul_i32 s10, s9, 56")
    a("s_sub_u32 s10, s8, s10")
    a("s_mul_i32 s11, s9, %d" % (16 * 57344))
    a("s_lshl_b32 s12, s10, 10")
    a("s_add_u32 s11, s11, s12")
    a("s_waitcnt lgkmcnt(0)")
    a("s_add_u32 s16, s6, s11")
    a("s_addc_u32 s17, s7, 0")
    a("s_mov_b32 s18, %d" % (16 * 57344))
    a("s_mov_b32 s19, 0x00020000")
    a("v_lshlrev_b32 v2, 4, v0")
    a("s_mov_b32 s20, 0")
    for h in range(16):
        a("buffer_load_dwordx4 v[%d:%d], v2, s[16:19], s20 offen" % (16 + 4 * h, 19 + 4 * h))
        if h < 15: a("s_add_u32 s20, s20, 57344")
    a("s_lshr_b32 s21, s10, 1")
    a("s_and_b32 s22, s10, 1")
    a("s_mul_i32 s23, s21, 9363")
    a("s_lshr_b32 s23, s23, 16")
    a("s_mul_i32 s24, s23, 7")
    a("s_sub_u32 s24, s21, s24")
    a("s_and_b32 s25, s23, 1")
    a("s_lshl_b32 s25, s25, 5")
    a("s_lshl_b32 s26, s9, 6")
    a("s_add_u32 s25, s25, s26")
    a("s_lshr_b32 s26, s23, 1")
    a("s_mul_i32 s26, s26, 224")
    a("s_lshl_b32 s27, s24, 5")
    a("s_add_u32 s26, s26, s27")
    a("s_lshl_b32 s27, s22, 4")
    a("s_add_u32 s26, s26, s27")
    a("s_mul_i32 s25, s25, 896")
    a("s_lshl_b32 s26, s26, 1")
    a("s_add_u32 s25, s25, s26")
    a("v_and_b32 v3, 31, v0")
    a("v_mul_u32_u24 v3, 896, v3")
    a("v_lshrrev_b32 v4, 5, v0")
    a("v_lshl_add_u32 v3, v4, 4, v3")
    a("v_add_u32 v3, s25, v3")
    a("s_mov_b32 s28, s4\ns_mov_b32 s29, s5\ns_mov_b32 s30, %d\ns_mov_b32 s31, 0x00020000" % (1024 * 896))
    for j in range(8): a("v_mov_b32 v%d, 0" % (4 + j))
    for h in range(16):
        a("s_waitcnt vmcnt(%d)" % (15 - h))
        for j in range(4):
            r = 16 + 4 * h + j
            a("v_lshlrev_b32 v12, 16, v%d" % r)
            a("v_and_b32 v13, 0xffff0000, v%d" % r)
            a("v_add_f32 v%d, v%d, v12" % (4 + 2 * j, 4 + 2 * j))
            a("v_add_f32 v%d, v%d, v13" % (5 + 2 * j, 5 + 2 * j))
    for j in range(4):
        a("v_cvt_pk_bf16_f32 v%d, v%d, v%d" % (12 + j, 4 + 2 * j, 5 + 2 * j))
    a("s_nop 1")
    a("v_permlane32_swap_b32 v12, v14")
    a("v_permlane32_swap_b32 v13, v15")
    a("buffer_store_dwordx4 v[12:15], v3, s[28:31], 0 offen")
    if opt.dbgstamp:
        a("s_cmp_lg_u32 s2, 0")
        a("s_cbranch_scc1 K2_END")
        a("s_load_dwordx2 s[32:33], s[0:1], 48")
        a("s_add_u32 s36, s6, %d" % WS_DIAG)
        a("s_addc_u32 s37, s7, 0")
        a("s_mov_b32 s38, 16384\ns_mov_b32 s39, 0x00020000")
        a("v_lshl_add_u32 v2, s3, 6, v0")
        for k in range(4):
            a("v_lshlrev_b32 v3, 4, v2")
            a("buffer_load_dwordx4 v[4:7], v3, s[36:39], 0 offen offset:0")
            a("s_waitcnt vmcnt(0) lgkmcnt(0)")
            a("s_mov_b32 s34, 256\ns_mov_b32 s35, 0x00020000")
            a("v_mov_b32 v8, 0")
            a("buffer_atomic_umax v4, v8, s[32:35], 0 offen")
            a("buffer_atomic_umax v5, v8, s[32:35], 0 offen offset:4")
            a("buffer_atomic_umax v6, v8, s[32:35], 0 offen offset:8")
            a("s_waitcnt vmcnt(0)")
            a("v_add_u32 v2, 256, v2")
    a.label("K2_END")
    a("s_endpgm")
    return a.text()

def build(opt):
    k1 = K1(opt).gen()
    k2 = gen_k2(opt)
    s = HEADER
    s += "; @launch kernel=k1_kernel grid=(256,1,1) block=(512,1,1) lds=%d\n" % LDS_TOTAL
    if not opt.nok2:
        s += "; @launch kernel=k2_kernel grid=(224,1,1) block=(256,1,1) lds=0\n"
    s += '.amdgcn_target "amdgcn-amd-amdhsa--gfx950"\n.text\n'
    s += k1
    if not opt.nok2: s += k2
    s += '.section .rodata,"a"\n.p2align 6\n' + kernel_desc("k1_kernel", 256, 96)
    if not opt.nok2:
        s += '.p2align 6\n' + kernel_desc("k2_kernel", 80, 48)
    return s

if __name__ == "__main__":
    ap = argparse.ArgumentParser()
    ap.add_argument("-o", default="k1.s")
    ap.add_argument("--diag", action="store_true")
    ap.add_argument("--nocompute", action="store_true")
    ap.add_argument("--fakemfma", action="store_true")
    ap.add_argument("--nok2", action="store_true")
    ap.add_argument("--dbgstamp", action="store_true")
    ap.add_argument("--storeflags", default="")
    opt = ap.parse_args()
    open(opt.o, "w").write(build(opt))
```

```python
import sys, argparse
from asmlib import *

LDS_X = 0
LDS_Q = 0
LDS_P = [16384, 0]
LDS_O = 24576
LDS_MAX = 57344
LDS_SUM = 59392
RING = 65536
SLOT = 32768
LDS_TOTAL = 163840
WS_PART = 0
WS_DIAG = 16 << 20

S_X, S_K, S_V, S_WQ, S_WO, S_WS = 20, 24, 28, 32, 36, 40
sWAVE = 3
sHQ, sB, sRH, sHKV = 44, 45, 46, 47
sC1 = 48
sSLOT = 49
sT0, sT1, sT2, sT3 = 50, 51, 52, 53
sOFF = 54
sLOOP = 55
sGRP = 56
sSTA, sSTB = 58, 60

def srd(a, s, ptr, off_sgpr, nbytes):
    if off_sgpr is None:
        a("s_mov_b32 s%d, s%d" % (s, ptr))
        a("s_mov_b32 s%d, s%d" % (s + 1, ptr + 1))
    else:
        a("s_add_u32 s%d, s%d, s%d" % (s, ptr, off_sgpr))
        a("s_addc_u32 s%d, s%d, 0" % (s + 1, ptr + 1))
    a("s_mov_b32 s%d, 0x%x" % (s + 2, nbytes))
    a("s_mov_b32 s%d, 0x00020000" % (s + 3))

class K1:
    def __init__(self, opt):
        self.o = opt
        self.a = Asm()
        self.nstamp_l = 0
        self.nstamp_c = 0

    def stamp_loader(self):
        if not self.o.diag: return
        a = self.a
        a("s_memtime s[%d:%d]" % (sSTA, sSTA + 1))
        a("s_waitcnt lgkmcnt(0)")
        a("v_writelane_b32 v60, s%d, %d" % (sSTA, self.nstamp_l))
        self.nstamp_l += 1

    def stamp_compute(self):
        if not self.o.diag: return
        a = self.a
        a("s_memtime s[%d:%d]" % (sSTA, sSTA + 1))
        a("s_waitcnt lgkmcnt(0)")
        a("v_writelane_b32 v15, s%d, %d" % (sSTA, self.nstamp_c))
        self.nstamp_c += 1

    def prologue(self):
        a = self.a
        kernel_begin(a, "k1_kernel")
        a("s_cmp_ge_u32 s2, 256")
        a("s_cbranch_scc1 K1_END")
        a("s_load_dwordx16 s[4:19], s[0:1], 0")
        if self.o.diag or self.o.dbgstamp:
            a("s_memrealtime s[%d:%d]" % (sSTB, sSTB + 1))
            a("s_memtime s[70:71]")
        a("v_lshrrev_b32 v1, 6, v0")
        a("v_and_b32 v0, 63, v0")
        a("v_readfirstlane_b32 s%d, v1" % sWAVE)
        a("s_and_b32 s%d, s2, 7" % sHKV)
        a("s_lshr_b32 s%d, s2, 5" % sB)
        a("s_bfe_u32 s%d, s2, 0x10004" % sT0)
        a("s_bfe_u32 s%d, s2, 0x10003" % sRH)
        a("s_lshl_b32 s%d, s%d, 1" % (sHQ, sHKV))
        a("s_add_u32 s%d, s%d, s%d" % (sHQ, sHQ, sT0))
        a("s_mov_b32 s%d, 0x3db8aa3b" % sC1)
        a("s_lshl_b32 s%d, s%d, 1" % (sGRP, sB))
        a("s_add_u32 s%d, s%d, s%d" % (sGRP, sGRP, sRH))
        a("s_mul_i32 s%d, s%d, 57344" % (sT0, sGRP))
        a("s_lshl_b32 s%d, s%d, 3" % (sT1, sB))
        a("s_add_u32 s%d, s%d, s%d" % (sT1, sT1, sHKV))
        a("s_lshl_b32 s%d, s%d, 18" % (sT1, sT1))
        a("s_lshl_b32 s%d, s%d, 9" % (sT2, sHQ))
        a("s_mul_i32 s%d, s%d, 229376" % (sT3, sHQ))
        a("s_waitcnt lgkmcnt(0)")
        srd(a, S_X, 4, sT0, 57344)
        srd(a, S_K, 6, sT1, 262144)
        srd(a, S_V, 8, sT1, 262144)
        srd(a, S_WQ, 10, sT2, 448 * 8192 - 15 * 512)
        srd(a, S_WO, 12, sT3, 229376)
        a("s_lshl_b32 s%d, s%d, 4" % (sT0, sGRP))
        a("s_add_u32 s%d, s%d, s%d" % (sT0, sT0, sHQ))
        a("s_mul_i32 s%d, s%d, 57344" % (sT0, sT0))
        srd(a, S_WS, 18, sT0, 57344)
        a("s_cmp_ge_u32 s%d, 4" % sWAVE)
        a("s_cbranch_scc1 K1_LOADER")

    def loader(self):
        a = self.a
        o = self.o
        a.label("K1_LOADER")
        a("s_sub_u32 s%d, s%d, 4" % (sWAVE, sWAVE))
        vL = 0
        vX = 16
        vWO = 32
        vWQ, vK0, vK1, vV = 40, 41, 42, 43
        a("v_lshrrev_b32 v1, 3, v0")
        a("v_and_b32 v2, 7, v0")
        a("v_bfe_u32 v3, v0, 4, 1")
        a("v_lshlrev_b32 v3, 2, v3")
        a("v_xor_b32 v3, v2, v3")
        a("v_lshlrev_b32 v3, 4, v3")
        a("s_lshl_b32 s%d, s%d, 7" % (sT0, sWAVE))
        a("v_add_u32 v3, s%d, v3" % sT0)
        a("v_lshl_add_u32 v%d, v1, 13, v3" % vWQ)
        a("v_lshl_add_u32 v%d, v1, 9, v3" % vV)
        a("v_lshrrev_b32 v4, 4, v0")
        a("v_xor_b32 v5, v2, v4")
        a("v_lshlrev_b32 v5, 4, v5")
        a("s_lshl_b32 s%d, s%d, 16" % (sT0, sWAVE))
        a("v_add_u32 v5, s%d, v5" % sT0)
        a("v_lshl_add_u32 v%d, v1, 9, v5" % vK0)
        a("v_xor_b32 v%d, 64, v%d" % (vK1, vK0))
        a("s_mul_i32 s%d, s%d, 896" % (sT0, sWAVE))
        a("v_add_u32 v6, s%d, v0" % sT0)
        for j in range(14):
            a("v_add_u32 v7, %d, v6" % (64 * j))
            a("v_mul_u32_u24 v8, 4682, v7")
            a("v_lshrrev_b32 v8, 19, v8")
            a("v_and_b32 v8, 7, v8")
            a("v_xor_b32 v8, v7, v8")
            a("v_lshlrev_b32 v%d, 4, v8" % (vX + j))
        a("s_mul_i32 s%d, s%d, 448" % (sT0, sWAVE))
        a("v_add_u32 v6, s%d, v0" % sT0)
        for j in range(7):
            a("v_add_u32 v7, %d, v6" % (64 * j))
            a("v_mul_u32_u24 v8, 9363, v7")
            a("v_lshrrev_b32 v8, 19, v8")
            a("v_bfe_u32 v8, v8, 1, 1")
            a("v_lshlrev_b32 v8, 2, v8")
            a("v_xor_b32 v8, v7, v8")
            a("v_lshlrev_b32 v%d, 4, v8" % (vWO + j))
        sL8 = 62
        sL7 = 63
        sM = 64
        a("s_lshl_b32 s%d, s%d, 13" % (sL8, sWAVE))
        a("s_mul_i32 s%d, s%d, 7168" % (sL7, sWAVE))
        a("s_mul_i32 s%d, s%d, 14336" % (sT0, sWAVE))
        self.stamp_loader()

        def dma(srdreg, vreg, soff):
            fl = ""
            if srdreg in (S_K, S_V) and "kv" in o.nt: fl = " nt"
            if srdreg in (S_WQ, S_WO) and "w" in o.nt: fl = " nt"
            if srdreg == S_X and "x" in o.nt: fl = " nt"
            a("buffer_load_dwordx4 v%d, s[%d:%d], %s offen%s lds" % (vreg, srdreg, srdreg + 3, soff, fl))

        a("s_mov_b32 m0, s%d" % sT0)
        for j in range(14):
            if j: a("s_addk_i32 m0, 0x400")
            a("s_nop 0")
            dma(S_X, vX + j, "0")

        def issue(t):
            slot = RING + (t % 3) * SLOT
            if t <= 6:
                a("s_add_u32 m0, s%d, %d" % (sL8, slot))
                a("s_mov_b32 s%d, %d" % (sOFF, t * 524288))
                for i in range(8):
                    if i:
                        a("s_addk_i32 m0, 0x400")
                        a("s_add_u32 s%d, s%d, 0x10000" % (sOFF, sOFF))
                    dma(S_WQ, vWQ, "s%d" % sOFF)
                return 8
            if t <= 14:
                d, p = (t - 7) >> 1, (t - 7) & 1
                if o.pouter: p, d = (t - 7) >> 2, (t - 7) & 3
                a("s_add_u32 m0, s%d, %d" % (sL8, slot))
                a("s_mov_b32 s%d, %d" % (sOFF, p * 32768 + d * 128))
                for i in range(8):
                    if i:
                        a("s_addk_i32 m0, 0x400")
                        a("s_addk_i32 s%d, 0x1000" % sOFF)
                    dma(S_K, vK1 if i & 1 else vK0, "s%d" % sOFF)
                return 8
            if t <= 22:
                c, wp = (t - 15) >> 1, (t - 15) & 1
                a("s_add_u32 m0, s%d, %d" % (sL8, slot))
                for i in range(8):
                    key = 128 * (2 * wp + (i >> 2)) + 32 * c + 8 * (i & 3)
                    if i: a("s_addk_i32 m0, 0x400")
                    a("s_mov_b32 s%d, %d" % (sOFF, key * 512))
                    dma(S_V, vV, "s%d" % sOFF)
                return 8
            tt = t - 23
            a("s_add_u32 m0, s%d, %d" % (sL7, slot))
            a("s_mov_b32 s%d, %d" % (sOFF, tt * 28672))
            for j in range(7):
                if j: a("s_addk_i32 m0, 0x400")
                a("s_nop 0")
                dma(S_WO, vWO + j, "s%d" % sOFF)
            return 7

        cnt = {}
        cnt[0] = issue(0)
        cnt[1] = issue(1)
        a("s_waitcnt vmcnt(%d)" % cnt[1])
        a("s_barrier")
        self.stamp_loader()
        extra_after = {6: 1, 14: 2, 22: 1}
        for t in range(0, 30):
            n = 0
            if t + 2 <= 30:
                n = issue(t + 2)
            for _ in range(extra_after.get(t - 1, 0)):
                a("s_barrier")
            a("s_waitcnt vmcnt(%d)" % n)
            a("s_barrier")
            self.stamp_loader()
        if o.diag:
            a("s_memrealtime s[%d:%d]" % (sSTA, sSTA + 1))
            a("s_waitcnt lgkmcnt(0)")
            a("v_writelane_b32 v60, s%d, 62" % sSTB)
            a("v_writelane_b32 v60, s%d, 63" % sSTA)
            self.diag_store(60, 4)
        a("s_endpgm")

    def diag_store(self, vreg, waveadd):
        a = self.a
        a("s_lshl_b32 s%d, s2, 3" % sT0)
        a("s_add_u32 s%d, s%d, s%d" % (sT0, sT0, sWAVE))
        a("s_add_u32 s%d, s%d, %d" % (sT0, sT0, waveadd))
        a("s_lshl_b32 s%d, s%d, 8" % (sT0, sT0))
        a("s_add_u32 s%d, s%d, %d" % (sT0, sT0, WS_DIAG))
        a("s_add_u32 s64, s18, s%d" % sT0)
        a("s_addc_u32 s65, s19, 0")
        a("s_mov_b32 s66, 256")
        a("s_mov_b32 s67, 0x00020000")
        a("v_lshlrev_b32 v61, 2, v0")
        a("buffer_store_dword v%d, v61, s[64:67], 0 offen" % vreg)
        a("s_waitcnt vmcnt(0)")

    def compute(self):
        a = self.a
        o = self.o
        vLIN = 2
        vXA = [4, 5, 6, 7]
        vT0, vT1 = 8, 9
        vKA = [8, 9, 10, 11]
        vPAT0, vPAT1 = 12, 13
        vTMP = 3
        vTMP2 = 14
        X = dict(A=[16, 20], B=[24, 28])
        Y = dict(A=[32, 36], B=[40, 44])
        ACCQ = 64
        ACCS = 128
        vM = [48, 49]
        vSUM = [50, 51]
        vSC = list(range(52, 64))

        a("v_lshlrev_b32 v%d, 4, v0" % vLIN)
        a("v_and_b32 v3, 31, v0")
        a("v_lshrrev_b32 v14, 1, v3")
        a("v_mul_u32_u24 v4, 1792, v14")
        a("v_and_b32 v5, 1, v3")
        a("v_mul_u32_u24 v5, 896, v5")
        a("v_add_u32 v4, v4, v5")
        a("v_and_b32 v14, 7, v14")
        a("v_lshrrev_b32 v5, 5, v0")
        a("v_xor_b32 v14, v14, v5")
        a("v_lshl_add_u32 v%d, v14, 4, v4" % vXA[0])
        for j in (1, 2, 3):
            a("v_xor_b32 v%d, %d, v%d" % (vXA[j], j << 5, vXA[0]))
        def trpat(dst0, dst1, hshift):
            a("v_bfe_u32 v3, v0, 2, 2")
            a("v_lshlrev_b32 v3, 7, v3")
            a("v_lshrrev_b32 v14, 5, v0")
            a("v_lshlrev_b32 v14, %d, v14" % hshift)
            a("v_add_u32 v3, v3, v14")
            a("v_bfe_u32 v14, v0, 4, 1")
            a("v_lshlrev_b32 v14, 5, v14")
            a("v_add_u32 v3, v3, v14")
            a("v_and_b32 v14, 3, v0")
            a("v_lshlrev_b32 v14, 3, v14")
            a("v_add_u32 v3, v3, v14")
            a("v_bfe_u32 v14, v0, 3, 1")
            a("v_lshlrev_b32 v14, 6, v14")
            a("v_add_u32 v3, v3, v14")
            a("s_lshl_b32 s%d, s%d, 13" % (sT0, sWAVE))
            a("v_add_u32 v%d, s%d, v3" % (dst0, sT0))
            a("v_xor_b32 v%d, 64, v%d" % (dst1, dst0))
        trpat(vPAT0, vPAT1, 10)
        for r in range(ACCS, ACCS + 128): a("v_mov_b32 v%d, 0" % r)
        for r in range(ACCQ, ACCQ + 64): a("v_mov_b32 v%d, 0" % r)
        a("s_mov_b32 s%d, %d" % (sSLOT, RING))

        def next_slot():
            a("s_add_u32 s%d, s%d, %d" % (sSLOT, sSLOT, SLOT))
            a("s_cmp_eq_u32 s%d, %d" % (sSLOT, LDS_TOTAL))
            a("s_cselect_b32 s%d, %d, s%d" % (sSLOT, RING, sSLOT))

        def mfma(acc, A, B, c0=False):
            a("v_mfma_f32_32x32x16_bf16 v[%d:%d], v[%d:%d], v[%d:%d], %s" % (
                acc, acc + 15, A, A + 3, B, B + 3, "0" if c0 else "v[%d:%d]" % (acc, acc + 15)))

        def barrier():
            a("s_barrier")

        nocmp = o.nocompute
        vPFK, vPFV, vPFW, vPFO, vPFD = 55, 56, 57, 58, 59
        if o.pf:
            st = o.pfstride
            a("s_bfe_u32 s%d, s2, 0x20003" % sT0)
            a("s_lshl_b32 s%d, s%d, 16" % (sT1, sT0))
            a("v_lshlrev_b32 v%d, 9, v0" % vPFK)
            a("v_add_u32 v%d, s%d, v%d" % (vPFK, sT1, vPFK))
            a("v_lshrrev_b32 v3, 5, v0")
            a("v_and_b32 v14, 31, v0")
            a("v_lshl_add_u32 v3, v3, 7, v14")
            a("v_lshlrev_b32 v3, 9, v3")
            a("s_lshl_b32 s%d, s%d, 7" % (sT1, sT0))
            a("v_add_u32 v%d, s%d, v3" % (vPFV, sT1))
            a("v_lshlrev_b32 v3, 4, v0")
            a("v_add_u32 v3, s%d, v3" % sGRP)
            a("v_lshrrev_b32 v14, 2, v3")
            a("v_lshlrev_b32 v14, 13, v14")
            a("v_and_b32 v%d, 3, v3" % vPFW)
            a("v_lshl_add_u32 v%d, v%d, 7, v14" % (vPFW, vPFW))
            a("v_lshlrev_b32 v%d, 7, v3" % vPFO)
            if o.pfmode == 1:
                a("s_lshl_b32 s%d, s%d, 13" % (sT1, sT0))
                a("v_lshlrev_b32 v%d, 7, v0" % vPFK)
                a("v_add_u32 v%d, s%d, v%d" % (vPFK, sT1, vPFK))
                a("s_lshr_b32 s%d, s%d, 1" % (sT1, sT0))
                a("s_lshl_b32 s%d, s%d, 16" % (sT1, sT1))
                a("s_and_b32 s%d, s%d, 1" % (sT2, sT0))
                a("s_lshl_b32 s%d, s%d, 13" % (sT2, sT2))
                a("s_add_u32 s%d, s%d, s%d" % (sT1, sT1, sT2))
                a("v_lshlrev_b32 v%d, 7, v0" % vPFV)
                a("v_add_u32 v%d, s%d, v%d" % (vPFV, sT1, vPFV))
                a("s_mul_i32 s%d, s%d, 14336" % (sT1, sGRP))
                a("v_lshlrev_b32 v%d, 7, v0" % vPFO)
                a("v_add_u32 v%d, s%d, v%d" % (vPFO, sT1, vPFO))
        def pf(kind, idx):
            if not o.pf: return
            lab = a.newlabel("PF")
            a("s_cmp_lg_u32 s%d, %d" % (sWAVE, idx & 3))
            a("s_cbranch_scc1 %s" % lab)
            reps = [0] if o.pfstride == 128 else [0, 64]
            for extra in reps:
                if kind == "k":
                    d, p = idx >> 1, idx & 1
                    if o.pfmode == 1:
                        p, m = idx >> 2, idx & 3
                        a("s_mov_b32 s%d, %d" % (sOFF, p * 32768 + m * 65536 + extra))
                    else:
                        a("s_mov_b32 s%d, %d" % (sOFF, p * 32768 + d * 128 + extra))
                    a("buffer_load_dword v%d, v%d, s[%d:%d], s%d offen%s" % (vPFD, vPFK, S_K, S_K + 3, sOFF, o.pfflags))
                elif kind == "v":
                    c, wp = idx >> 1, idx & 1
                    a("s_mov_b32 s%d, %d" % (sOFF, (256 * wp + 32 * c) * 512 + extra))
                    a("buffer_load_dword v%d, v%d, s[%d:%d], s%d offen%s" % (vPFD, vPFV, S_V, S_V + 3, sOFF, o.pfflags))
                elif kind == "wq":
                    a("s_mov_b32 s%d, %d" % (sOFF, idx * 256 * 8192 + extra))
                    a("buffer_load_dword v%d, v%d, s[%d:%d], s%d offen%s" % (vPFD, vPFW, S_WQ, S_WQ + 3, sOFF, o.pfflags))
                elif kind == "wo":
                    if o.pfmode == 1:
                        a("s_mov_b32 s%d, %d" % (sOFF, idx * 8192 + extra))
                    else:
                        a("s_mov_b32 s%d, %d" % (sOFF, idx * 64 * 16 * 128 + extra))
                    a("buffer_load_dword v%d, v%d, s[%d:%d], s%d offen%s" % (vPFD, vPFO, S_WO, S_WO + 3, sOFF, o.pfflags))
            a.label(lab)
        sched = {}
        if o.pf:
            order = [("wq", 0), ("wq", 1)] + [("k", i) for i in range(8)] + [("v", i) for i in range(8)] + [("wo", 0), ("wo", 1)]
            order = order[:o.pfn]
            n0 = o.pf0
            sched[-2] = order[:n0]
            rest = order[n0:]
            t = -1
            k = 0
            while k < len(rest):
                sched.setdefault(t, []).extend(rest[k:k + o.pfper])
                k += o.pfper
                t += 1
        self.pf = pf
        self.sched = sched
        for kind, idx in sched.get(-2, []): pf(kind, idx)

        def q_reads(S, ks, xoff):
            for mb in range(2):
                v = vT0 if mb == 0 else vT1
                a("ds_read_b64_tr_b16 v[%d:%d], v%d offset:%d" % (S['A'][mb], S['A'][mb] + 1, v, ks * 2048))
                a("ds_read_b64_tr_b16 v[%d:%d], v%d offset:%d" % (S['A'][mb] + 2, S['A'][mb] + 3, v, ks * 2048 + 512))
            for nb in range(2):
                a("ds_read_b128 v[%d:%d], v%d offset:%d" % (S['B'][nb], S['B'][nb] + 3, vXA[ks], nb * 28672 + xoff))
        def q_mfmas(S):
            for mb in range(2):
                for nb in range(2):
                    mfma(ACCQ + (mb * 2 + nb) * 16, S['A'][mb], S['B'][nb])
        def set_tr_addr():
            a("v_add_u32 v%d, s%d, v%d" % (vT0, sSLOT, vPAT0))
            a("v_add_u32 v%d, s%d, v%d" % (vT1, sSLOT, vPAT1))

        self.stamp_compute()
        barrier()
        self.stamp_compute()
        if nocmp:
            for t in range(30):
                for kind, idx in sched.get(t - 1, []): pf(kind, idx)
                for _ in range({7: 1, 15: 2, 23: 1}.get(t, 0)): barrier()
                if o.fakemfma:
                    for i in range(16): mfma(ACCQ + (i & 3) * 16, 16, 24)
                barrier()
        else:
            set_tr_addr()
            q_reads(X, 0, 0)
            a("s_mov_b32 s%d, 0" % sLOOP)
            a.label("Q_LOOP")
            q_reads(Y, 1, 0); a("s_waitcnt lgkmcnt(6)"); q_mfmas(X)
            q_reads(X, 2, 0); a("s_waitcnt lgkmcnt(6)"); q_mfmas(Y)
            q_reads(Y, 3, 0); a("s_waitcnt lgkmcnt(6)"); q_mfmas(X)
            a("s_waitcnt lgkmcnt(0)")
            barrier()
            next_slot()
            a("s_add_u32 s%d, s%d, 1" % (sLOOP, sLOOP))
            a("s_cmp_eq_u32 s%d, 7" % sLOOP)
            a("s_cbranch_scc1 Q_LAST")
            set_tr_addr()
            for j in range(4): a("v_add_u32 v%d, 128, v%d" % (vXA[j], vXA[j]))
            q_reads(X, 0, 0)
            q_mfmas(Y)
            a("s_branch Q_LOOP")
            a.label("Q_LAST")
            q_mfmas(Y)
            a("s_nop 7"); a("s_nop 7")
            self.stamp_compute()
            a("s_lshl_b32 s%d, s%d, 13" % (sT0, sWAVE))
            a("v_add_u32 v%d, s%d, v%d" % (vTMP, sT0, vLIN))
            for mb in range(2):
                for nb in range(2):
                    acc = ACCQ + (mb * 2 + nb) * 16
                    for half in range(2):
                        b0 = acc + 8 * half
                        for j in range(4):
                            a("v_cvt_pk_bf16_f32 v%d, v%d, v%d" % (b0 + j, b0 + 2 * j, b0 + 2 * j + 1))
                        a("s_nop 1")
                        a("v_permlane32_swap_b32 v%d, v%d" % (b0, b0 + 2))
                        a("v_permlane32_swap_b32 v%d, v%d" % (b0 + 1, b0 + 3))
                        a("ds_write_b128 v%d, v[%d:%d] offset:%d" % (vTMP, b0, b0 + 3, LDS_Q + ((2 * mb + half) * 2 + nb) * 1024))
            a("s_waitcnt lgkmcnt(0)")
            for r in range(ACCQ, ACCQ + 64): a("v_mov_b32 v%d, 0" % r)
            barrier()
            self.stamp_compute()

            vQA = 12
            a("v_and_b32 v3, 31, v0")
            a("v_bfe_u32 v14, v0, 1, 3")
            a("v_lshrrev_b32 v13, 5, v0")
            a("v_xor_b32 v14, v14, v13")
            a("v_lshlrev_b32 v14, 4, v14")
            a("v_lshl_add_u32 v3, v3, 7, v14")
            a("s_lshl_b32 s%d, s%d, 13" % (sT0, sWAVE))
            a("v_add_u32 v13, s%d, v3" % sT0)
            a("v_mov_b32 v%d, v%d" % (vQA, vLIN))
            def set_k_addr():
                a("v_add_u32 v%d, s%d, v13" % (vKA[0], sSLOT))
                for j in (1, 2, 3):
                    a("v_xor_b32 v%d, %d, v%d" % (vKA[j], j << 5, vKA[0]))
            def s_reads(S, ks):
                for mb in range(2):
                    a("ds_read_b128 v[%d:%d], v%d offset:%d" % (S['A'][mb], S['A'][mb] + 3, vKA[ks], mb * 4096))
                for nb in range(2):
                    a("ds_read_b128 v[%d:%d], v%d offset:%d" % (S['B'][nb], S['B'][nb] + 3, vQA, LDS_Q + (ks * 2 + nb) * 1024))
            def s_mfmas(S, p):
                for mb in range(2):
                    for nb in range(2):
                        mfma(ACCS + ((2 * p + mb) * 2 + nb) * 16, S['A'][mb], S['B'][nb])
            set_k_addr()
            s_reads(X, 0)
            a("s_mov_b32 s%d, 0" % sLOOP)
            a.label("S_LOOP")
            for p in range(2):
                s_reads(Y, 1); a("s_waitcnt lgkmcnt(4)"); s_mfmas(X, p)
                s_reads(X, 2); a("s_waitcnt lgkmcnt(4)"); s_mfmas(Y, p)
                s_reads(Y, 3); a("s_waitcnt lgkmcnt(4)"); s_mfmas(X, p)
                a("s_waitcnt lgkmcnt(0)")
                barrier()
                next_slot()
                if p == 1:
                    a("s_add_u32 s%d, s%d, 1" % (sLOOP, sLOOP))
                    a("s_cmp_eq_u32 s%d, 4" % sLOOP)
                    a("s_cbranch_scc1 S_LAST")
                    a("v_add_u32 v%d, 0x2000, v%d" % (vQA, vQA))
                set_k_addr()
                s_reads(X, 0)
                s_mfmas(Y, p)
            a("s_branch S_LOOP")
            a.label("S_LAST")
            s_mfmas(Y, 1)
            a("s_nop 7"); a("s_nop 7")
            self.stamp_compute()
            for nb in range(2):
                regs = [ACCS + (mb * 2 + nb) * 16 + r for mb in range(4) for r in range(16)]
                d = vM[nb]
                a("v_max3_f32 v%d, v%d, v%d, v%d" % (d, regs[0], regs[1], regs[2]))
                i = 3
                while i + 1 < len(regs):
                    a("v_max3_f32 v%d, v%d, v%d, v%d" % (d, d, regs[i], regs[i + 1]))
                    i += 2
                if i < len(regs):
                    a("v_max_f32 v%d, v%d, v%d" % (d, d, regs[i]))
            vST = 3
            a("v_and_b32 v14, 31, v0")
            a("v_lshlrev_b32 v14, 5, v14")
            a("v_lshrrev_b32 v3, 5, v0")
            a("v_lshl_add_u32 v3, v3, 2, v14")
            a("s_lshl_b32 s%d, s%d, 3" % (sT0, sWAVE))
            a("v_add_u32 v%d, s%d, v3" % (vST, sT0))
            vSTR = 14
            for nb in range(2):
                a("ds_write_b32 v%d, v%d offset:%d" % (vST, vM[nb], LDS_MAX + nb * 1024))
            a("s_waitcnt lgkmcnt(0)")
            barrier()
            for nb in range(2):
                a("ds_read_b128 v[%d:%d], v%d offset:%d" % (16 + nb * 8, 19 + nb * 8, vSTR, LDS_MAX + nb * 1024))
                a("ds_read_b128 v[%d:%d], v%d offset:%d" % (20 + nb * 8, 23 + nb * 8, vSTR, LDS_MAX + nb * 1024 + 16))
            a("s_waitcnt lgkmcnt(0)")
            for nb in range(2):
                b = 16 + nb * 8
                a("v_max3_f32 v%d, v%d, v%d, v%d" % (vM[nb], b, b + 1, b + 2))
                a("v_max3_f32 v%d, v%d, v%d, v%d" % (vM[nb], vM[nb], b + 3, b + 4))
                a("v_max3_f32 v%d, v%d, v%d, v%d" % (vM[nb], vM[nb], b + 5, b + 6))
                a("v_max_f32 v%d, v%d, v%d" % (vM[nb], vM[nb], b + 7))
                a("v_mul_f32 v%d, s%d, v%d" % (vM[nb], sC1, vM[nb]))
                a("v_mov_b32 v%d, 0" % vSUM[nb])
            vPW = 12
            a("s_lshl_b32 s%d, s%d, 12" % (sT0, sWAVE))
            a("v_add_u32 v%d, s%d, v%d" % (vPW, sT0, vLIN))

            def softmax_chunk(c):
                for nb in range(2):
                    acc = ACCS + (c * 2 + nb) * 16
                    for r in range(16):
                        a("v_fma_f32 v%d, v%d, s%d, -v%d" % (acc + r, acc + r, sC1, vM[nb]))
                    for r in range(16):
                        a("v_exp_f32 v%d, v%d" % (acc + r, acc + r))
                    a("s_nop 0")
                    for r in range(16):
                        a("v_add_f32 v%d, v%d, v%d" % (vSUM[nb], vSUM[nb], acc + r))
                    for half in range(2):
                        b0 = acc + 8 * half
                        for j in range(4):
                            a("v_cvt_pk_bf16_f32 v%d, v%d, v%d" % (b0 + j, b0 + 2 * j, b0 + 2 * j + 1))
                        a("ds_write_b128 v%d, v[%d:%d] offset:%d" % (vPW, b0, b0 + 3, LDS_P[c & 1] + (half * 2 + nb) * 1024))
            softmax_chunk(0)
            a("s_waitcnt lgkmcnt(0)")
            barrier()
            self.stamp_compute()

            trpat(vPAT0, vPAT1, 9)
            a("s_lshl_b32 s%d, s%d, 12" % (sT0, sWAVE))
            a("v_add_u32 v52, s%d, v%d" % (sT0, vLIN))
            vPW = 52
            a("v_and_b32 v54, 31, v0")
            a("v_lshlrev_b32 v54, 5, v54")
            a("v_lshrrev_b32 v53, 5, v0")
            a("v_lshl_add_u32 v53, v53, 2, v54")
            a("s_lshl_b32 s%d, s%d, 3" % (sT0, sWAVE))
            a("v_add_u32 v53, s%d, v53" % sT0)
            vST, vSTR = 53, 54
            def pv_reads(S, c, wp, j):
                for mb in range(2):
                    v = vT0 if mb == 0 else vT1
                    a("ds_read_b64_tr_b16 v[%d:%d], v%d offset:%d" % (S['A'][mb], S['A'][mb] + 1, v, j * 2048))
                    a("ds_read_b64_tr_b16 v[%d:%d], v%d offset:%d" % (S['A'][mb] + 2, S['A'][mb] + 3, v, j * 2048 + 1024))
                for nb in range(2):
                    a("ds_read_b128 v[%d:%d], v%d offset:%d" % (S['B'][nb], S['B'][nb] + 3, vLIN, LDS_P[c & 1] + wp * 8192 + j * 2048 + nb * 1024))
            set_tr_addr()
            pv_reads(X, 0, 0, 0)
            for c in range(4):
                for wp in range(2):
                    pv_reads(Y, c, wp, 1); a("s_waitcnt lgkmcnt(6)"); q_mfmas(X)
                    pv_reads(X, c, wp, 2); a("s_waitcnt lgkmcnt(6)"); q_mfmas(Y)
                    pv_reads(Y, c, wp, 3); a("s_waitcnt lgkmcnt(6)"); q_mfmas(X)
                    if wp == 0 and c < 3:
                        softmax_chunk(c + 1)
                        if c == 2:
                            for nb in range(2):
                                a("ds_write_b32 v%d, v%d offset:%d" % (vST, vSUM[nb], LDS_SUM + nb * 1024))
                    a("s_waitcnt lgkmcnt(0)")
                    barrier()
                    next_slot()
                    if not (c == 3 and wp == 1):
                        set_tr_addr()
                        nc, nwp = (c, 1) if wp == 0 else (c + 1, 0)
                        pv_reads(X, nc, nwp, 0)
                    q_mfmas(Y)
            for nb in range(2):
                a("ds_read_b128 v[%d:%d], v%d offset:%d" % (16 + nb * 8, 19 + nb * 8, vSTR, LDS_SUM + nb * 1024))
                a("ds_read_b128 v[%d:%d], v%d offset:%d" % (20 + nb * 8, 23 + nb * 8, vSTR, LDS_SUM + nb * 1024 + 16))
            a("s_waitcnt lgkmcnt(0)")
            self.stamp_compute()
            for nb in range(2):
                b = 16 + nb * 8
                a("v_add_f32 v%d, v%d, v%d" % (b, b, b + 1))
                for k in range(2, 8):
                    a("v_add_f32 v%d, v%d, v%d" % (b, b, b + k))
                a("v_rcp_f32 v%d, v%d" % (vSUM[nb], b))
            a("s_nop 7"); a("s_nop 3")
            a("s_lshl_b32 s%d, s%d, 13" % (sT0, sWAVE))
            a("v_add_u32 v%d, s%d, v%d" % (vTMP, sT0, vLIN))
            for mb in range(2):
                for nb in range(2):
                    acc = ACCQ + (mb * 2 + nb) * 16
                    for r in range(16):
                        a("v_mul_f32 v%d, v%d, v%d" % (acc + r, acc + r, vSUM[nb]))
                    for half in range(2):
                        b0 = acc + 8 * half
                        for j in range(4):
                            a("v_cvt_pk_bf16_f32 v%d, v%d, v%d" % (b0 + j, b0 + 2 * j, b0 + 2 * j + 1))
                        a("ds_write_b128 v%d, v[%d:%d] offset:%d" % (vTMP, b0, b0 + 3, LDS_O + ((2 * mb + half) * 2 + nb) * 1024))
            ACCO = 128
            for r in range(ACCO, ACCO + 112): a("v_mov_b32 v%d, 0" % r)
            a("s_waitcnt lgkmcnt(0)")
            barrier()
            self.stamp_compute()

            XO = dict(A=[64 + 4 * i for i in range(7)], B=92)
            YO = dict(A=[96 + 4 * i for i in range(7)], B=124)
            vW = [12, 13]
            vWA = [8, 9]
            vOB = 10
            a("v_bfe_u32 v3, v0, 2, 2")
            a("v_lshrrev_b32 v14, 5, v0")
            a("v_lshl_add_u32 v3, v14, 2, v3")
            a("v_mul_u32_u24 v3, 896, v3")
            a("v_bfe_u32 v14, v0, 4, 1")
            a("v_lshl_add_u32 v3, v14, 5, v3")
            a("v_and_b32 v14, 3, v0")
            a("v_lshl_add_u32 v3, v14, 3, v3")
            a("s_lshr_b32 s%d, s%d, 1" % (sT0, sWAVE))
            a("s_mul_i32 s%d, s%d, 448" % (sT1, sT0))
            a("v_add_u32 v3, s%d, v3" % sT1)
            a("v_bfe_u32 v14, v0, 3, 1")
            a("v_lshlrev_b32 v14, 6, v14")
            a("v_add_u32 v%d, v3, v14" % vW[0])
            a("v_sub_u32 v%d, v3, v14" % vW[1])
            a("s_cmp_eq_u32 s%d, 0" % sT0)
            a("s_cbranch_scc1 O_NOSWAP")
            a("v_mov_b32 v3, v%d" % vW[0])
            a("v_mov_b32 v%d, v%d" % (vW[0], vW[1]))
            a("v_mov_b32 v%d, v3" % vW[1])
            a.label("O_NOSWAP")
            a("s_and_b32 s%d, s%d, 1" % (sT0, sWAVE))
            a("s_lshl_b32 s%d, s%d, 10" % (sT0, sT0))
            a("s_add_u32 s%d, s%d, %d" % (sT0, sT0, LDS_O))
            a("v_add_u32 v%d, s%d, v%d" % (vOB, sT0, vLIN))
            def set_w_addr():
                a("v_add_u32 v%d, s%d, v%d" % (vWA[0], sSLOT, vW[0]))
                a("v_add_u32 v%d, s%d, v%d" % (vWA[1], sSLOT, vW[1]))
            def o_reads(S, ks):
                for n in range(7):
                    v = vWA[n & 1]
                    off = 16 * ks * 896 + n * 64
                    a("ds_read_b64_tr_b16 v[%d:%d], v%d offset:%d" % (S['A'][n], S['A'][n] + 1, v, off))
                    a("ds_read_b64_tr_b16 v[%d:%d], v%d offset:%d" % (S['A'][n] + 2, S['A'][n] + 3, v, off + 8 * 896))
                a("ds_read_b128 v[%d:%d], v%d offset:%d" % (S['B'], S['B'] + 3, vOB, ks * 2048))
            def o_mfmas(S):
                for n in range(7):
                    mfma(ACCO + 16 * n, S['A'][n], S['B'])
            set_w_addr()
            o_reads(XO, 0)
            a("s_mov_b32 s%d, 0" % sLOOP)
            a.label("O_LOOP")
            o_reads(YO, 1); a("s_waitcnt lgkmcnt(15)"); o_mfmas(XO)
            a("s_add_u32 s%d, s%d, 1" % (sLOOP, sLOOP))
            a("s_cmp_eq_u32 s%d, 8" % sLOOP)
            a("s_cbranch_scc1 O_LAST")
            a("s_waitcnt lgkmcnt(0)")
            barrier()
            next_slot()
            set_w_addr()
            a("v_add_u32 v%d, 0x1000, v%d" % (vOB, vOB))
            o_reads(XO, 0)
            o_mfmas(YO)
            a("s_branch O_LOOP")
            a.label("O_LAST")
            a("s_waitcnt lgkmcnt(0)")
            o_mfmas(YO)
            a("s_nop 7"); a("s_nop 7")
            self.stamp_compute()
            a("s_mul_i32 s%d, s%d, 14336" % (sT0, sWAVE))
            a("v_add_u32 v3, s%d, v%d" % (sT0, vLIN))
            for n in range(7):
                for half in range(2):
                    b0 = ACCO + 16 * n + 8 * half
                    for j in range(4):
                        a("v_cvt_pk_bf16_f32 v%d, v%d, v%d" % (b0 + j, b0 + 2 * j, b0 + 2 * j + 1))
                    idx = n * 2 + half
                    a("s_mov_b32 s%d, %d" % (sOFF, idx * 1024))
                    a("buffer_store_dwordx4 v[%d:%d], v3, s[%d:%d], s%d offen%s" % (b0, b0 + 3, S_WS, S_WS + 3, sOFF, o.storeflags))
        if o.diag:
            a("s_waitcnt vmcnt(0)")
            a("s_memrealtime s[%d:%d]" % (sSTA, sSTA + 1))
            a("s_waitcnt lgkmcnt(0)")
            a("v_writelane_b32 v15, s%d, 62" % sSTB)
            a("v_writelane_b32 v15, s%d, 63" % sSTA)
            self.diag_store(15, 0)
        if o.dbgstamp:
            a("s_waitcnt vmcnt(0)")
            a("s_memrealtime s[%d:%d]" % (sSTA, sSTA + 1))
            a("s_memtime s[72:73]")
            a("s_waitcnt lgkmcnt(0)")
            a("s_not_b32 s%d, s%d" % (sSTB, sSTB))
            a("s_sub_u32 s72, s72, s70")
            a("s_lshl_b32 s%d, s2, 2" % sT0)
            a("s_add_u32 s%d, s%d, s%d" % (sT0, sT0, sWAVE))
            a("s_lshl_b32 s%d, s%d, 4" % (sT0, sT0))
            a("s_add_u32 s%d, s%d, %d" % (sT0, sT0, WS_DIAG))
            a("s_add_u32 s64, s18, s%d" % sT0)
            a("s_addc_u32 s65, s19, 0")
            a("s_mov_b32 s66, 16\ns_mov_b32 s67, 0x00020000")
            a("v_mov_b32 v4, s%d" % sSTB)
            a("v_mov_b32 v5, s%d" % sSTA)
            a("v_mov_b32 v6, s72")
            a("v_mov_b32 v7, 0")
            a("v_lshlrev_b32 v3, 4, v0")
            a("buffer_store_dwordx4 v[4:7], v3, s[64:67], 0 offen")
            a("s_waitcnt vmcnt(0)")
        a.label("K1_END")
        a("s_endpgm")

    def gen(self):
        self.prologue()
        self.compute()
        self.loader()
        return self.a.text()

def gen_k2(opt):
    a = Asm()
    kernel_begin(a, "k2_kernel")
    a("s_cmp_ge_u32 s2, 224")
    a("s_cbranch_scc1 K2_END")
    a("s_load_dwordx2 s[4:5], s[0:1], 40")
    a("s_load_dwordx2 s[6:7], s[0:1], 56")
    a("v_lshrrev_b32 v1, 6, v0")
    a("v_and_b32 v0, 63, v0")
    a("v_readfirstlane_b32 s3, v1")
    a("s_lshl_b32 s8, s2, 2")
    a("s_add_u32 s8, s8, s3")
    a("s_mul_i32 s9, s8, 9363")
    a("s_lshr_b32 s9, s9, 19")
    a("s_mul_i32 s10, s9, 56")
    a("s_sub_u32 s10, s8, s10")
    a("s_mul_i32 s11, s9, %d" % (16 * 57344))
    a("s_lshl_b32 s12, s10, 10")
    a("s_add_u32 s11, s11, s12")
    a("s_waitcnt lgkmcnt(0)")
    a("s_add_u32 s16, s6, s11")
    a("s_addc_u32 s17, s7, 0")
    a("s_mov_b32 s18, %d" % (16 * 57344))
    a("s_mov_b32 s19, 0x00020000")
    a("v_lshlrev_b32 v2, 4, v0")
    a("s_mov_b32 s20, 0")
    for h in range(16):
        a("buffer_load_dwordx4 v[%d:%d], v2, s[16:19], s20 offen" % (16 + 4 * h, 19 + 4 * h))
        if h < 15: a("s_add_u32 s20, s20, 57344")
    a("s_lshr_b32 s21, s10, 1")
    a("s_and_b32 s22, s10, 1")
    a("s_mul_i32 s23, s21, 9363")
    a("s_lshr_b32 s23, s23, 16")
    a("s_mul_i32 s24, s23, 7")
    a("s_sub_u32 s24, s21, s24")
    a("s_and_b32 s25, s23, 1")
    a("s_lshl_b32 s25, s25, 5")
    a("s_lshl_b32 s26, s9, 6")
    a("s_add_u32 s25, s25, s26")
    a("s_lshr_b32 s26, s23, 1")
    a("s_mul_i32 s26, s26, 224")
    a("s_lshl_b32 s27, s24, 5")
    a("s_add_u32 s26, s26, s27")
    a("s_lshl_b32 s27, s22, 4")
    a("s_add_u32 s26, s26, s27")
    a("s_mul_i32 s25, s25, 896")
    a("s_lshl_b32 s26, s26, 1")
    a("s_add_u32 s25, s25, s26")
    a("v_and_b32 v3, 31, v0")
    a("v_mul_u32_u24 v3, 896, v3")
    a("v_lshrrev_b32 v4, 5, v0")
    a("v_lshl_add_u32 v3, v4, 4, v3")
    a("v_add_u32 v3, s25, v3")
    a("s_mov_b32 s28, s4\ns_mov_b32 s29, s5\ns_mov_b32 s30, %d\ns_mov_b32 s31, 0x00020000" % (1024 * 896))
    for j in range(8): a("v_mov_b32 v%d, 0" % (4 + j))
    for h in range(16):
        a("s_waitcnt vmcnt(%d)" % (15 - h))
        for j in range(4):
            r = 16 + 4 * h + j
            a("v_lshlrev_b32 v12, 16, v%d" % r)
            a("v_and_b32 v13, 0xffff0000, v%d" % r)
            a("v_add_f32 v%d, v%d, v12" % (4 + 2 * j, 4 + 2 * j))
            a("v_add_f32 v%d, v%d, v13" % (5 + 2 * j, 5 + 2 * j))
    for j in range(4):
        a("v_cvt_pk_bf16_f32 v%d, v%d, v%d" % (12 + j, 4 + 2 * j, 5 + 2 * j))
    a("s_nop 1")
    a("v_permlane32_swap_b32 v12, v14")
    a("v_permlane32_swap_b32 v13, v15")
    a("buffer_store_dwordx4 v[12:15], v3, s[28:31], 0 offen")
    if opt.dbgstamp:
        a("s_cmp_lg_u32 s2, 0")
        a("s_cbranch_scc1 K2_END")
        a("s_load_dwordx2 s[32:33], s[0:1], 48")
        a("s_add_u32 s36, s6, %d" % WS_DIAG)
        a("s_addc_u32 s37, s7, 0")
        a("s_mov_b32 s38, 16384\ns_mov_b32 s39, 0x00020000")
        a("v_lshl_add_u32 v2, s3, 6, v0")
        for k in range(4):
            a("v_lshlrev_b32 v3, 4, v2")
            a("buffer_load_dwordx4 v[4:7], v3, s[36:39], 0 offen offset:0")
            a("s_waitcnt vmcnt(0) lgkmcnt(0)")
            a("s_mov_b32 s34, 256\ns_mov_b32 s35, 0x00020000")
            a("v_mov_b32 v8, 0")
            a("buffer_atomic_umax v4, v8, s[32:35], 0 offen")
            a("buffer_atomic_umax v5, v8, s[32:35], 0 offen offset:4")
            a("buffer_atomic_umax v6, v8, s[32:35], 0 offen offset:8")
            a("s_waitcnt vmcnt(0)")
            a("v_add_u32 v2, 256, v2")
    a.label("K2_END")
    a("s_endpgm")
    return a.text()

def build(opt):
    k1 = K1(opt).gen()
    k2 = gen_k2(opt)
    s = HEADER
    s += "; @launch kernel=k1_kernel grid=(256,1,1) block=(512,1,1) lds=%d\n" % LDS_TOTAL
    if not opt.nok2:
        s += "; @launch kernel=k2_kernel grid=(224,1,1) block=(256,1,1) lds=0\n"
    s += '.amdgcn_target "amdgcn-amd-amdhsa--gfx950"\n.text\n'
    s += k1
    if not opt.nok2: s += k2
    s += '.section .rodata,"a"\n.p2align 6\n' + kernel_desc("k1_kernel", 256, 96)
    if not opt.nok2:
        s += '.p2align 6\n' + kernel_desc("k2_kernel", 80, 48)
    return s

if __name__ == "__main__":
    ap = argparse.ArgumentParser()
    ap.add_argument("-o", default="k1.s")
    ap.add_argument("--diag", action="store_true")
    ap.add_argument("--nocompute", action="store_true")
    ap.add_argument("--fakemfma", action="store_true")
    ap.add_argument("--nok2", action="store_true")
    ap.add_argument("--dbgstamp", action="store_true")
    ap.add_argument("--storeflags", default="")
    ap.add_argument("--pf", action="store_true")
    ap.add_argument("--pfstride", type=int, default=128)
    ap.add_argument("--pfflags", default="")
    ap.add_argument("--pf0", type=int, default=2)
    ap.add_argument("--nt", default="")
    ap.add_argument("--pfn", type=int, default=20)
    ap.add_argument("--pfmode", type=int, default=0)
    ap.add_argument("--pouter", action="store_true")
    ap.add_argument("--pfper", type=int, default=1)
    opt = ap.parse_args()
    open(opt.o, "w").write(build(opt))
```

```python
import sys, argparse
from asmlib import *

LDS_X = 0
LDS_Q = 0
LDS_P = [16384, 0]
LDS_O = 24576
LDS_MAX = 57344
LDS_SUM = 59392
RING = 65536
SLOT = 32768
LDS_TOTAL = 163840
WS_PART = 0
WS_DIAG = 16 << 20

S_X, S_K, S_V, S_WQ, S_WO, S_WS = 20, 24, 28, 32, 36, 40
sWAVE = 3
sHQ, sB, sRH, sHKV = 44, 45, 46, 47
sC1 = 48
sSLOT = 49
sT0, sT1, sT2, sT3 = 50, 51, 52, 53
sOFF = 54
sLOOP = 55
sGRP = 56
sSTA, sSTB = 58, 60

def srd(a, s, ptr, off_sgpr, nbytes):
    if off_sgpr is None:
        a("s_mov_b32 s%d, s%d" % (s, ptr))
        a("s_mov_b32 s%d, s%d" % (s + 1, ptr + 1))
    else:
        a("s_add_u32 s%d, s%d, s%d" % (s, ptr, off_sgpr))
        a("s_addc_u32 s%d, s%d, 0" % (s + 1, ptr + 1))
    a("s_mov_b32 s%d, 0x%x" % (s + 2, nbytes))
    a("s_mov_b32 s%d, 0x00020000" % (s + 3))

class K1:
    def __init__(self, opt):
        self.o = opt
        self.a = Asm()
        self.nstamp_l = 0
        self.nstamp_c = 0

    def stamp_loader(self):
        if not self.o.diag: return
        a = self.a
        a("s_memtime s[%d:%d]" % (sSTA, sSTA + 1))
        a("s_waitcnt lgkmcnt(0)")
        a("v_writelane_b32 v60, s%d, %d" % (sSTA, self.nstamp_l))
        self.nstamp_l += 1

    def stamp_compute(self):
        if not self.o.diag: return
        a = self.a
        a("s_memtime s[%d:%d]" % (sSTA, sSTA + 1))
        a("s_waitcnt lgkmcnt(0)")
        a("v_writelane_b32 v15, s%d, %d" % (sSTA, self.nstamp_c))
        self.nstamp_c += 1

    def prologue(self):
        a = self.a
        kernel_begin(a, "k1_kernel")
        a("s_cmp_ge_u32 s2, 256")
        a("s_cbranch_scc1 K1_END")
        a("s_load_dwordx16 s[4:19], s[0:1], 0")
        if self.o.diag or self.o.dbgstamp:
            a("s_memrealtime s[%d:%d]" % (sSTB, sSTB + 1))
            a("s_memtime s[70:71]")
        a("v_lshrrev_b32 v1, 6, v0")
        a("v_and_b32 v0, 63, v0")
        a("v_readfirstlane_b32 s%d, v1" % sWAVE)
        a("s_and_b32 s%d, s2, 7" % sHKV)
        a("s_lshr_b32 s%d, s2, 5" % sB)
        a("s_bfe_u32 s%d, s2, 0x10004" % sT0)
        a("s_bfe_u32 s%d, s2, 0x10003" % sRH)
        a("s_lshl_b32 s%d, s%d, 1" % (sHQ, sHKV))
        a("s_add_u32 s%d, s%d, s%d" % (sHQ, sHQ, sT0))
        a("s_mov_b32 s%d, 0x3db8aa3b" % sC1)
        a("s_lshl_b32 s%d, s%d, 1" % (sGRP, sB))
        a("s_add_u32 s%d, s%d, s%d" % (sGRP, sGRP, sRH))
        a("s_mul_i32 s%d, s%d, 57344" % (sT0, sGRP))
        a("s_lshl_b32 s%d, s%d, 3" % (sT1, sB))
        a("s_add_u32 s%d, s%d, s%d" % (sT1, sT1, sHKV))
        a("s_lshl_b32 s%d, s%d, 18" % (sT1, sT1))
        a("s_lshl_b32 s%d, s%d, 9" % (sT2, sHQ))
        a("s_mul_i32 s%d, s%d, 229376" % (sT3, sHQ))
        a("s_waitcnt lgkmcnt(0)")
        srd(a, S_X, 4, sT0, 57344)
        srd(a, S_K, 6, sT1, 262144)
        srd(a, S_V, 8, sT1, 262144)
        srd(a, S_WQ, 10, sT2, 448 * 8192 - 15 * 512)
        srd(a, S_WO, 12, sT3, 229376)
        a("s_lshl_b32 s%d, s%d, 4" % (sT0, sGRP))
        a("s_add_u32 s%d, s%d, s%d" % (sT0, sT0, sHQ))
        a("s_mul_i32 s%d, s%d, 57344" % (sT0, sT0))
        srd(a, S_WS, 18, sT0, 57344)
        a("s_cmp_ge_u32 s%d, 4" % sWAVE)
        a("s_cbranch_scc1 K1_LOADER")

    def loader(self):
        a = self.a
        o = self.o
        a.label("K1_LOADER")
        a("s_sub_u32 s%d, s%d, 4" % (sWAVE, sWAVE))
        vL = 0
        vX = 16
        vWO = 32
        vWQ, vK0, vK1, vV = 40, 41, 42, 43
        a("v_lshrrev_b32 v1, 3, v0")
        a("v_and_b32 v2, 7, v0")
        a("v_bfe_u32 v3, v0, 4, 1")
        a("v_lshlrev_b32 v3, 2, v3")
        a("v_xor_b32 v3, v2, v3")
        a("v_lshlrev_b32 v3, 4, v3")
        a("s_lshl_b32 s%d, s%d, 7" % (sT0, sWAVE))
        a("v_add_u32 v3, s%d, v3" % sT0)
        a("v_lshl_add_u32 v%d, v1, 13, v3" % vWQ)
        a("v_lshl_add_u32 v%d, v1, 9, v3" % vV)
        a("v_lshrrev_b32 v4, 4, v0")
        a("v_xor_b32 v5, v2, v4")
        a("v_lshlrev_b32 v5, 4, v5")
        a("s_lshl_b32 s%d, s%d, 16" % (sT0, sWAVE))
        a("v_add_u32 v5, s%d, v5" % sT0)
        a("v_lshl_add_u32 v%d, v1, 9, v5" % vK0)
        a("v_xor_b32 v%d, 64, v%d" % (vK1, vK0))
        a("s_mul_i32 s%d, s%d, 896" % (sT0, sWAVE))
        a("v_add_u32 v6, s%d, v0" % sT0)
        for j in range(14):
            a("v_add_u32 v7, %d, v6" % (64 * j))
            a("v_mul_u32_u24 v8, 4682, v7")
            a("v_lshrrev_b32 v8, 19, v8")
            a("v_and_b32 v8, 7, v8")
            a("v_xor_b32 v8, v7, v8")
            a("v_lshlrev_b32 v%d, 4, v8" % (vX + j))
        a("s_mul_i32 s%d, s%d, 448" % (sT0, sWAVE))
        a("v_add_u32 v6, s%d, v0" % sT0)
        for j in range(7):
            a("v_add_u32 v7, %d, v6" % (64 * j))
            a("v_mul_u32_u24 v8, 9363, v7")
            a("v_lshrrev_b32 v8, 19, v8")
            a("v_bfe_u32 v8, v8, 1, 1")
            a("v_lshlrev_b32 v8, 2, v8")
            a("v_xor_b32 v8, v7, v8")
            a("v_lshlrev_b32 v%d, 4, v8" % (vWO + j))
        sL8 = 62
        sL7 = 63
        sM = 64
        a("s_lshl_b32 s%d, s%d, 13" % (sL8, sWAVE))
        a("s_mul_i32 s%d, s%d, 7168" % (sL7, sWAVE))
        a("s_mul_i32 s%d, s%d, 14336" % (sT0, sWAVE))
        self.stamp_loader()

        def dma(srdreg, vreg, soff):
            fl = ""
            if srdreg in (S_K, S_V) and "kv" in o.nt: fl = " nt"
            if srdreg in (S_WQ, S_WO) and "w" in o.nt: fl = " nt"
            if srdreg == S_X and "x" in o.nt: fl = " nt"
            a("buffer_load_dwordx4 v%d, s[%d:%d], %s offen%s lds" % (vreg, srdreg, srdreg + 3, soff, fl))

        a("s_mov_b32 m0, s%d" % sT0)
        for j in range(14):
            if j: a("s_addk_i32 m0, 0x400")
            a("s_nop 0")
            dma(S_X, vX + j, "0")

        def issue(t):
            slot = RING + (t % 3) * SLOT
            if t <= 6:
                a("s_add_u32 m0, s%d, %d" % (sL8, slot))
                a("s_mov_b32 s%d, %d" % (sOFF, t * 524288))
                for i in range(8):
                    if i:
                        a("s_addk_i32 m0, 0x400")
                        a("s_add_u32 s%d, s%d, 0x10000" % (sOFF, sOFF))
                    dma(S_WQ, vWQ, "s%d" % sOFF)
                return 8
            if t <= 14:
                d, p = (t - 7) >> 1, (t - 7) & 1
                if o.pouter: p, d = (t - 7) >> 2, (t - 7) & 3
                a("s_add_u32 m0, s%d, %d" % (sL8, slot))
                a("s_mov_b32 s%d, %d" % (sOFF, p * 32768 + d * 128))
                for i in range(8):
                    if i:
                        a("s_addk_i32 m0, 0x400")
                        a("s_addk_i32 s%d, 0x1000" % sOFF)
                    dma(S_K, vK1 if i & 1 else vK0, "s%d" % sOFF)
                return 8
            if t <= 22:
                c, wp = (t - 15) >> 1, (t - 15) & 1
                a("s_add_u32 m0, s%d, %d" % (sL8, slot))
                for i in range(8):
                    key = 128 * (2 * wp + (i >> 2)) + 32 * c + 8 * (i & 3)
                    if i: a("s_addk_i32 m0, 0x400")
                    a("s_mov_b32 s%d, %d" % (sOFF, key * 512))
                    dma(S_V, vV, "s%d" % sOFF)
                return 8
            tt = t - 23
            a("s_add_u32 m0, s%d, %d" % (sL7, slot))
            a("s_mov_b32 s%d, %d" % (sOFF, tt * 28672))
            for j in range(7):
                if j: a("s_addk_i32 m0, 0x400")
                a("s_nop 0")
                dma(S_WO, vWO + j, "s%d" % sOFF)
            return 7

        cnt = {}
        cnt[0] = issue(0)
        cnt[1] = issue(1)
        a("s_waitcnt vmcnt(%d)" % cnt[1])
        a("s_barrier")
        self.stamp_loader()
        extra_after = {6: 1, 14: 2, 22: 1}
        for t in range(0, 30):
            n = 0
            if t + 2 <= 30:
                n = issue(t + 2)
            for _ in range(extra_after.get(t - 1, 0)):
                a("s_barrier")
            a("s_waitcnt vmcnt(%d)" % n)
            a("s_barrier")
            self.stamp_loader()
        if o.diag:
            a("s_memrealtime s[%d:%d]" % (sSTA, sSTA + 1))
            a("s_waitcnt lgkmcnt(0)")
            a("v_writelane_b32 v60, s%d, 62" % sSTB)
            a("v_writelane_b32 v60, s%d, 63" % sSTA)
            self.diag_store(60, 4)
        a("s_endpgm")

    def diag_store(self, vreg, waveadd):
        a = self.a
        a("s_lshl_b32 s%d, s2, 3" % sT0)
        a("s_add_u32 s%d, s%d, s%d" % (sT0, sT0, sWAVE))
        a("s_add_u32 s%d, s%d, %d" % (sT0, sT0, waveadd))
        a("s_lshl_b32 s%d, s%d, 8" % (sT0, sT0))
        a("s_add_u32 s%d, s%d, %d" % (sT0, sT0, WS_DIAG))
        a("s_add_u32 s64, s18, s%d" % sT0)
        a("s_addc_u32 s65, s19, 0")
        a("s_mov_b32 s66, 256")
        a("s_mov_b32 s67, 0x00020000")
        a("v_lshlrev_b32 v61, 2, v0")
        a("buffer_store_dword v%d, v61, s[64:67], 0 offen" % vreg)
        a("s_waitcnt vmcnt(0)")

    def compute(self):
        a = self.a
        o = self.o
        vLIN = 2
        vXA = [4, 5, 6, 7]
        vT0, vT1 = 8, 9
        vKA = [8, 9, 10, 11]
        vPAT0, vPAT1 = 12, 13
        vTMP = 3
        vTMP2 = 14
        X = dict(A=[16, 20], B=[24, 28])
        Y = dict(A=[32, 36], B=[40, 44])
        ACCQ = 64
        ACCS = 128
        vM = [48, 49]
        vSUM = [50, 51]
        vSC = list(range(52, 64))

        a("v_lshlrev_b32 v%d, 4, v0" % vLIN)
        a("v_and_b32 v3, 31, v0")
        a("v_lshrrev_b32 v14, 1, v3")
        a("v_mul_u32_u24 v4, 1792, v14")
        a("v_and_b32 v5, 1, v3")
        a("v_mul_u32_u24 v5, 896, v5")
        a("v_add_u32 v4, v4, v5")
        a("v_and_b32 v14, 7, v14")
        a("v_lshrrev_b32 v5, 5, v0")
        a("v_xor_b32 v14, v14, v5")
        a("v_lshl_add_u32 v%d, v14, 4, v4" % vXA[0])
        for j in (1, 2, 3):
            a("v_xor_b32 v%d, %d, v%d" % (vXA[j], j << 5, vXA[0]))
        def trpat(dst0, dst1, hshift):
            a("v_bfe_u32 v3, v0, 2, 2")
            a("v_lshlrev_b32 v3, 7, v3")
            a("v_lshrrev_b32 v14, 5, v0")
            a("v_lshlrev_b32 v14, %d, v14" % hshift)
            a("v_add_u32 v3, v3, v14")
            a("v_bfe_u32 v14, v0, 4, 1")
            a("v_lshlrev_b32 v14, 5, v14")
            a("v_add_u32 v3, v3, v14")
            a("v_and_b32 v14, 3, v0")
            a("v_lshlrev_b32 v14, 3, v14")
            a("v_add_u32 v3, v3, v14")
            a("v_bfe_u32 v14, v0, 3, 1")
            a("v_lshlrev_b32 v14, 6, v14")
            a("v_add_u32 v3, v3, v14")
            a("s_lshl_b32 s%d, s%d, 13" % (sT0, sWAVE))
            a("v_add_u32 v%d, s%d, v3" % (dst0, sT0))
            a("v_xor_b32 v%d, 64, v%d" % (dst1, dst0))
        trpat(vPAT0, vPAT1, 10)
        for r in range(ACCS, ACCS + 128): a("v_mov_b32 v%d, 0" % r)
        for r in range(ACCQ, ACCQ + 64): a("v_mov_b32 v%d, 0" % r)
        a("s_mov_b32 s%d, %d" % (sSLOT, RING))

        def next_slot():
            a("s_add_u32 s%d, s%d, %d" % (sSLOT, sSLOT, SLOT))
            a("s_cmp_eq_u32 s%d, %d" % (sSLOT, LDS_TOTAL))
            a("s_cselect_b32 s%d, %d, s%d" % (sSLOT, RING, sSLOT))

        def mfma(acc, A, B, c0=False):
            a("v_mfma_f32_32x32x16_bf16 v[%d:%d], v[%d:%d], v[%d:%d], %s" % (
                acc, acc + 15, A, A + 3, B, B + 3, "0" if c0 else "v[%d:%d]" % (acc, acc + 15)))

        def barrier():
            a("s_barrier")

        nocmp = o.nocompute
        vPFK, vPFV, vPFW, vPFO, vPFD = 55, 56, 57, 58, 59
        if o.pf:
            st = o.pfstride
            a("s_bfe_u32 s%d, s2, 0x20003" % sT0)
            a("s_lshl_b32 s%d, s%d, 16" % (sT1, sT0))
            a("v_lshlrev_b32 v%d, 9, v0" % vPFK)
            a("v_add_u32 v%d, s%d, v%d" % (vPFK, sT1, vPFK))
            a("v_lshrrev_b32 v3, 5, v0")
            a("v_and_b32 v14, 31, v0")
            a("v_lshl_add_u32 v3, v3, 7, v14")
            a("v_lshlrev_b32 v3, 9, v3")
            a("s_lshl_b32 s%d, s%d, 7" % (sT1, sT0))
            a("v_add_u32 v%d, s%d, v3" % (vPFV, sT1))
            a("v_lshlrev_b32 v3, 4, v0")
            a("v_add_u32 v3, s%d, v3" % sGRP)
            a("v_lshrrev_b32 v14, 2, v3")
            a("v_lshlrev_b32 v14, 13, v14")
            a("v_and_b32 v%d, 3, v3" % vPFW)
            a("v_lshl_add_u32 v%d, v%d, 7, v14" % (vPFW, vPFW))
            a("v_lshlrev_b32 v%d, 7, v3" % vPFO)
            if o.pfmode == 1:
                a("s_lshl_b32 s%d, s%d, 13" % (sT1, sT0))
                a("v_lshlrev_b32 v%d, 7, v0" % vPFK)
                a("v_add_u32 v%d, s%d, v%d" % (vPFK, sT1, vPFK))
                a("s_lshr_b32 s%d, s%d, 1" % (sT1, sT0))
                a("s_lshl_b32 s%d, s%d, 16" % (sT1, sT1))
                a("s_and_b32 s%d, s%d, 1" % (sT2, sT0))
                a("s_lshl_b32 s%d, s%d, 13" % (sT2, sT2))
                a("s_add_u32 s%d, s%d, s%d" % (sT1, sT1, sT2))
                a("v_lshlrev_b32 v%d, 7, v0" % vPFV)
                a("v_add_u32 v%d, s%d, v%d" % (vPFV, sT1, vPFV))
                a("s_mul_i32 s%d, s%d, 14336" % (sT1, sGRP))
                a("v_lshlrev_b32 v%d, 7, v0" % vPFO)
                a("v_add_u32 v%d, s%d, v%d" % (vPFO, sT1, vPFO))
        def pf(kind, idx):
            if not o.pf: return
            lab = a.newlabel("PF")
            a("s_cmp_lg_u32 s%d, %d" % (sWAVE, idx & 3))
            a("s_cbranch_scc1 %s" % lab)
            reps = [0] if o.pfstride == 128 else [0, 64]
            for extra in reps:
                if kind == "k":
                    d, p = idx >> 1, idx & 1
                    if o.pfmode == 1:
                        p, m = idx >> 2, idx & 3
                        a("s_mov_b32 s%d, %d" % (sOFF, p * 32768 + m * 65536 + extra))
                    else:
                        a("s_mov_b32 s%d, %d" % (sOFF, p * 32768 + d * 128 + extra))
                    a("buffer_load_dword v%d, v%d, s[%d:%d], s%d offen%s" % (vPFD, vPFK, S_K, S_K + 3, sOFF, o.pfflags))
                elif kind == "v":
                    c, wp = idx >> 1, idx & 1
                    a("s_mov_b32 s%d, %d" % (sOFF, (256 * wp + 32 * c) * 512 + extra))
                    a("buffer_load_dword v%d, v%d, s[%d:%d], s%d offen%s" % (vPFD, vPFV, S_V, S_V + 3, sOFF, o.pfflags))
                elif kind == "wq":
                    a("s_mov_b32 s%d, %d" % (sOFF, idx * 256 * 8192 + extra))
                    a("buffer_load_dword v%d, v%d, s[%d:%d], s%d offen%s" % (vPFD, vPFW, S_WQ, S_WQ + 3, sOFF, o.pfflags))
                elif kind == "wo":
                    if o.pfmode == 1:
                        a("s_mov_b32 s%d, %d" % (sOFF, idx * 8192 + extra))
                    else:
                        a("s_mov_b32 s%d, %d" % (sOFF, idx * 64 * 16 * 128 + extra))
                    a("buffer_load_dword v%d, v%d, s[%d:%d], s%d offen%s" % (vPFD, vPFO, S_WO, S_WO + 3, sOFF, o.pfflags))
            a.label(lab)
        sched = {}
        if o.pf:
            order = [("wq", 0), ("wq", 1)] + [("k", i) for i in range(8)] + [("v", i) for i in range(8)] + [("wo", 0), ("wo", 1)]
            order = order[:o.pfn]
            n0 = o.pf0
            sched[-2] = order[:n0]
            rest = order[n0:]
            t = -1
            k = 0
            while k < len(rest):
                sched.setdefault(t, []).extend(rest[k:k + o.pfper])
                k += o.pfper
                t += 1
        self.pf = pf
        self.sched = sched
        for kind, idx in sched.get(-2, []): pf(kind, idx)

        def q_reads(S, ks, xoff):
            for mb in range(2):
                v = vT0 if mb == 0 else vT1
                a("ds_read_b64_tr_b16 v[%d:%d], v%d offset:%d" % (S['A'][mb], S['A'][mb] + 1, v, ks * 2048))
                a("ds_read_b64_tr_b16 v[%d:%d], v%d offset:%d" % (S['A'][mb] + 2, S['A'][mb] + 3, v, ks * 2048 + 512))
            for nb in range(2):
                a("ds_read_b128 v[%d:%d], v%d offset:%d" % (S['B'][nb], S['B'][nb] + 3, vXA[ks], nb * 28672 + xoff))
        def q_mfmas(S):
            for mb in range(2):
                for nb in range(2):
                    mfma(ACCQ + (mb * 2 + nb) * 16, S['A'][mb], S['B'][nb])
        def set_tr_addr():
            a("v_add_u32 v%d, s%d, v%d" % (vT0, sSLOT, vPAT0))
            a("v_add_u32 v%d, s%d, v%d" % (vT1, sSLOT, vPAT1))

        self.stamp_compute()
        barrier()
        self.stamp_compute()
        if nocmp:
            for t in range(30):
                for kind, idx in sched.get(t - 1, []): pf(kind, idx)
                for _ in range({7: 1, 15: 2, 23: 1}.get(t, 0)): barrier()
                if o.fakemfma:
                    for i in range(16): mfma(ACCQ + (i & 3) * 16, 16, 24)
                barrier()
        else:
            set_tr_addr()
            q_reads(X, 0, 0)
            a("s_mov_b32 s%d, 0" % sLOOP)
            a.label("Q_LOOP")
            q_reads(Y, 1, 0); a("s_waitcnt lgkmcnt(6)"); q_mfmas(X)
            q_reads(X, 2, 0); a("s_waitcnt lgkmcnt(6)"); q_mfmas(Y)
            q_reads(Y, 3, 0); a("s_waitcnt lgkmcnt(6)"); q_mfmas(X)
            a("s_waitcnt lgkmcnt(0)")
            barrier()
            next_slot()
            a("s_add_u32 s%d, s%d, 1" % (sLOOP, sLOOP))
            a("s_cmp_eq_u32 s%d, 7" % sLOOP)
            a("s_cbranch_scc1 Q_LAST")
            set_tr_addr()
            for j in range(4): a("v_add_u32 v%d, 128, v%d" % (vXA[j], vXA[j]))
            q_reads(X, 0, 0)
            q_mfmas(Y)
            a("s_branch Q_LOOP")
            a.label("Q_LAST")
            q_mfmas(Y)
            a("s_nop 7"); a("s_nop 7")
            self.stamp_compute()
            a("s_lshl_b32 s%d, s%d, 13" % (sT0, sWAVE))
            a("v_add_u32 v%d, s%d, v%d" % (vTMP, sT0, vLIN))
            for mb in range(2):
                for nb in range(2):
                    acc = ACCQ + (mb * 2 + nb) * 16
                    for half in range(2):
                        b0 = acc + 8 * half
                        for j in range(4):
                            a("v_cvt_pk_bf16_f32 v%d, v%d, v%d" % (b0 + j, b0 + 2 * j, b0 + 2 * j + 1))
                        a("s_nop 1")
                        a("v_permlane32_swap_b32 v%d, v%d" % (b0, b0 + 2))
                        a("v_permlane32_swap_b32 v%d, v%d" % (b0 + 1, b0 + 3))
                        a("ds_write_b128 v%d, v[%d:%d] offset:%d" % (vTMP, b0, b0 + 3, LDS_Q + ((2 * mb + half) * 2 + nb) * 1024))
            a("s_waitcnt lgkmcnt(0)")
            for r in range(ACCQ, ACCQ + 64): a("v_mov_b32 v%d, 0" % r)
            barrier()
            self.stamp_compute()

            vQA = 12
            a("v_and_b32 v3, 31, v0")
            a("v_bfe_u32 v14, v0, 1, 3")
            a("v_lshrrev_b32 v13, 5, v0")
            a("v_xor_b32 v14, v14, v13")
            a("v_lshlrev_b32 v14, 4, v14")
            a("v_lshl_add_u32 v3, v3, 7, v14")
            a("s_lshl_b32 s%d, s%d, 13" % (sT0, sWAVE))
            a("v_add_u32 v13, s%d, v3" % sT0)
            a("v_mov_b32 v%d, v%d" % (vQA, vLIN))
            def set_k_addr():
                a("v_add_u32 v%d, s%d, v13" % (vKA[0], sSLOT))
                for j in (1, 2, 3):
                    a("v_xor_b32 v%d, %d, v%d" % (vKA[j], j << 5, vKA[0]))
            def s_reads(S, ks):
                for mb in range(2):
                    a("ds_read_b128 v[%d:%d], v%d offset:%d" % (S['A'][mb], S['A'][mb] + 3, vKA[ks], mb * 4096))
                for nb in range(2):
                    a("ds_read_b128 v[%d:%d], v%d offset:%d" % (S['B'][nb], S['B'][nb] + 3, vQA, LDS_Q + (ks * 2 + nb) * 1024))
            def s_mfmas(S, p):
                for mb in range(2):
                    for nb in range(2):
                        mfma(ACCS + ((2 * p + mb) * 2 + nb) * 16, S['A'][mb], S['B'][nb])
            set_k_addr()
            s_reads(X, 0)
            a("s_mov_b32 s%d, 0" % sLOOP)
            a.label("S_LOOP")
            for p in range(2):
                s_reads(Y, 1); a("s_waitcnt lgkmcnt(4)"); s_mfmas(X, p)
                s_reads(X, 2); a("s_waitcnt lgkmcnt(4)"); s_mfmas(Y, p)
                s_reads(Y, 3); a("s_waitcnt lgkmcnt(4)"); s_mfmas(X, p)
                a("s_waitcnt lgkmcnt(0)")
                barrier()
                next_slot()
                if p == 1:
                    a("s_add_u32 s%d, s%d, 1" % (sLOOP, sLOOP))
                    a("s_cmp_eq_u32 s%d, 4" % sLOOP)
                    a("s_cbranch_scc1 S_LAST")
                    a("v_add_u32 v%d, 0x2000, v%d" % (vQA, vQA))
                set_k_addr()
                s_reads(X, 0)
                s_mfmas(Y, p)
            a("s_branch S_LOOP")
            a.label("S_LAST")
            s_mfmas(Y, 1)
            a("s_nop 7"); a("s_nop 7")
            self.stamp_compute()
            for nb in range(2):
                regs = [ACCS + (mb * 2 + nb) * 16 + r for mb in range(4) for r in range(16)]
                d = vM[nb]
                a("v_max3_f32 v%d, v%d, v%d, v%d" % (d, regs[0], regs[1], regs[2]))
                i = 3
                while i + 1 < len(regs):
                    a("v_max3_f32 v%d, v%d, v%d, v%d" % (d, d, regs[i], regs[i + 1]))
                    i += 2
                if i < len(regs):
                    a("v_max_f32 v%d, v%d, v%d" % (d, d, regs[i]))
            vST = 3
            a("v_and_b32 v14, 31, v0")
            a("v_lshlrev_b32 v14, 5, v14")
            a("v_lshrrev_b32 v3, 5, v0")
            a("v_lshl_add_u32 v3, v3, 2, v14")
            a("s_lshl_b32 s%d, s%d, 3" % (sT0, sWAVE))
            a("v_add_u32 v%d, s%d, v3" % (vST, sT0))
            vSTR = 14
            for nb in range(2):
                a("ds_write_b32 v%d, v%d offset:%d" % (vST, vM[nb], LDS_MAX + nb * 1024))
            a("s_waitcnt lgkmcnt(0)")
            barrier()
            for nb in range(2):
                a("ds_read_b128 v[%d:%d], v%d offset:%d" % (16 + nb * 8, 19 + nb * 8, vSTR, LDS_MAX + nb * 1024))
                a("ds_read_b128 v[%d:%d], v%d offset:%d" % (20 + nb * 8, 23 + nb * 8, vSTR, LDS_MAX + nb * 1024 + 16))
            a("s_waitcnt lgkmcnt(0)")
            for nb in range(2):
                b = 16 + nb * 8
                a("v_max3_f32 v%d, v%d, v%d, v%d" % (vM[nb], b, b + 1, b + 2))
                a("v_max3_f32 v%d, v%d, v%d, v%d" % (vM[nb], vM[nb], b + 3, b + 4))
                a("v_max3_f32 v%d, v%d, v%d, v%d" % (vM[nb], vM[nb], b + 5, b + 6))
                a("v_max_f32 v%d, v%d, v%d" % (vM[nb], vM[nb], b + 7))
                a("v_mul_f32 v%d, s%d, v%d" % (vM[nb], sC1, vM[nb]))
                a("v_mov_b32 v%d, 0" % vSUM[nb])
            vPW = 12
            a("s_lshl_b32 s%d, s%d, 12" % (sT0, sWAVE))
            a("v_add_u32 v%d, s%d, v%d" % (vPW, sT0, vLIN))

            def softmax_chunk(c):
                for nb in range(2):
                    acc = ACCS + (c * 2 + nb) * 16
                    for r in range(16):
                        a("v_fma_f32 v%d, v%d, s%d, -v%d" % (acc + r, acc + r, sC1, vM[nb]))
                    for r in range(16):
                        a("v_exp_f32 v%d, v%d" % (acc + r, acc + r))
                    a("s_nop 0")
                    for r in range(16):
                        a("v_add_f32 v%d, v%d, v%d" % (vSUM[nb], vSUM[nb], acc + r))
                    for half in range(2):
                        b0 = acc + 8 * half
                        for j in range(4):
                            a("v_cvt_pk_bf16_f32 v%d, v%d, v%d" % (b0 + j, b0 + 2 * j, b0 + 2 * j + 1))
                        a("ds_write_b128 v%d, v[%d:%d] offset:%d" % (vPW, b0, b0 + 3, LDS_P[c & 1] + (half * 2 + nb) * 1024))
            softmax_chunk(0)
            a("s_waitcnt lgkmcnt(0)")
            barrier()
            self.stamp_compute()

            trpat(vPAT0, vPAT1, 9)
            a("s_lshl_b32 s%d, s%d, 12" % (sT0, sWAVE))
            a("v_add_u32 v52, s%d, v%d" % (sT0, vLIN))
            vPW = 52
            a("v_and_b32 v54, 31, v0")
            a("v_lshlrev_b32 v54, 5, v54")
            a("v_lshrrev_b32 v53, 5, v0")
            a("v_lshl_add_u32 v53, v53, 2, v54")
            a("s_lshl_b32 s%d, s%d, 3" % (sT0, sWAVE))
            a("v_add_u32 v53, s%d, v53" % sT0)
            vST, vSTR = 53, 54
            def pv_reads(S, c, wp, j):
                for mb in range(2):
                    v = vT0 if mb == 0 else vT1
                    a("ds_read_b64_tr_b16 v[%d:%d], v%d offset:%d" % (S['A'][mb], S['A'][mb] + 1, v, j * 2048))
                    a("ds_read_b64_tr_b16 v[%d:%d], v%d offset:%d" % (S['A'][mb] + 2, S['A'][mb] + 3, v, j * 2048 + 1024))
                for nb in range(2):
                    a("ds_read_b128 v[%d:%d], v%d offset:%d" % (S['B'][nb], S['B'][nb] + 3, vLIN, LDS_P[c & 1] + wp * 8192 + j * 2048 + nb * 1024))
            set_tr_addr()
            pv_reads(X, 0, 0, 0)
            for c in range(4):
                for wp in range(2):
                    pv_reads(Y, c, wp, 1); a("s_waitcnt lgkmcnt(6)"); q_mfmas(X)
                    pv_reads(X, c, wp, 2); a("s_waitcnt lgkmcnt(6)"); q_mfmas(Y)
                    pv_reads(Y, c, wp, 3); a("s_waitcnt lgkmcnt(6)"); q_mfmas(X)
                    if wp == 0 and c < 3:
                        softmax_chunk(c + 1)
                        if c == 2:
                            for nb in range(2):
                                a("ds_write_b32 v%d, v%d offset:%d" % (vST, vSUM[nb], LDS_SUM + nb * 1024))
                    a("s_waitcnt lgkmcnt(0)")
                    barrier()
                    next_slot()
                    if not (c == 3 and wp == 1):
                        set_tr_addr()
                        nc, nwp = (c, 1) if wp == 0 else (c + 1, 0)
                        pv_reads(X, nc, nwp, 0)
                    q_mfmas(Y)
            for nb in range(2):
                a("ds_read_b128 v[%d:%d], v%d offset:%d" % (16 + nb * 8, 19 + nb * 8, vSTR, LDS_SUM + nb * 1024))
                a("ds_read_b128 v[%d:%d], v%d offset:%d" % (20 + nb * 8, 23 + nb * 8, vSTR, LDS_SUM + nb * 1024 + 16))
            a("s_waitcnt lgkmcnt(0)")
            self.stamp_compute()
            for nb in range(2):
                b = 16 + nb * 8
                a("v_add_f32 v%d, v%d, v%d" % (b, b, b + 1))
                for k in range(2, 8):
                    a("v_add_f32 v%d, v%d, v%d" % (b, b, b + k))
                a("v_rcp_f32 v%d, v%d" % (vSUM[nb], b))
            a("s_nop 7"); a("s_nop 3")
            a("s_lshl_b32 s%d, s%d, 13" % (sT0, sWAVE))
            a("v_add_u32 v%d, s%d, v%d" % (vTMP, sT0, vLIN))
            for mb in range(2):
                for nb in range(2):
                    acc = ACCQ + (mb * 2 + nb) * 16
                    for r in range(16):
                        a("v_mul_f32 v%d, v%d, v%d" % (acc + r, acc + r, vSUM[nb]))
                    for half in range(2):
                        b0 = acc + 8 * half
                        for j in range(4):
                            a("v_cvt_pk_bf16_f32 v%d, v%d, v%d" % (b0 + j, b0 + 2 * j, b0 + 2 * j + 1))
                        a("ds_write_b128 v%d, v[%d:%d] offset:%d" % (vTMP, b0, b0 + 3, LDS_O + ((2 * mb + half) * 2 + nb) * 1024))
            ACCO = 128
            for r in range(ACCO, ACCO + 112): a("v_mov_b32 v%d, 0" % r)
            a("s_waitcnt lgkmcnt(0)")
            barrier()
            self.stamp_compute()

            XO = dict(A=[64 + 4 * i for i in range(7)], B=92)
            YO = dict(A=[96 + 4 * i for i in range(7)], B=124)
            vW = [12, 13]
            vWA = [8, 9]
            vOB = 10
            a("v_bfe_u32 v3, v0, 2, 2")
            a("v_lshrrev_b32 v14, 5, v0")
            a("v_lshl_add_u32 v3, v14, 2, v3")
            a("v_mul_u32_u24 v3, 896, v3")
            a("v_bfe_u32 v14, v0, 4, 1")
            a("v_lshl_add_u32 v3, v14, 5, v3")
            a("v_and_b32 v14, 3, v0")
            a("v_lshl_add_u32 v3, v14, 3, v3")
            a("s_lshr_b32 s%d, s%d, 1" % (sT0, sWAVE))
            a("s_mul_i32 s%d, s%d, 448" % (sT1, sT0))
            a("v_add_u32 v3, s%d, v3" % sT1)
            a("v_bfe_u32 v14, v0, 3, 1")
            a("v_lshlrev_b32 v14, 6, v14")
            a("v_add_u32 v%d, v3, v14" % vW[0])
            a("v_sub_u32 v%d, v3, v14" % vW[1])
            a("s_cmp_eq_u32 s%d, 0" % sT0)
            a("s_cbranch_scc1 O_NOSWAP")
            a("v_mov_b32 v3, v%d" % vW[0])
            a("v_mov_b32 v%d, v%d" % (vW[0], vW[1]))
            a("v_mov_b32 v%d, v3" % vW[1])
            a.label("O_NOSWAP")
            a("s_and_b32 s%d, s%d, 1" % (sT0, sWAVE))
            a("s_lshl_b32 s%d, s%d, 10" % (sT0, sT0))
            a("s_add_u32 s%d, s%d, %d" % (sT0, sT0, LDS_O))
            a("v_add_u32 v%d, s%d, v%d" % (vOB, sT0, vLIN))
            def set_w_addr():
                a("v_add_u32 v%d, s%d, v%d" % (vWA[0], sSLOT, vW[0]))
                a("v_add_u32 v%d, s%d, v%d" % (vWA[1], sSLOT, vW[1]))
            def o_reads(S, ks):
                for n in range(7):
                    v = vWA[n & 1]
                    off = 16 * ks * 896 + n * 64
                    a("ds_read_b64_tr_b16 v[%d:%d], v%d offset:%d" % (S['A'][n], S['A'][n] + 1, v, off))
                    a("ds_read_b64_tr_b16 v[%d:%d], v%d offset:%d" % (S['A'][n] + 2, S['A'][n] + 3, v, off + 8 * 896))
                a("ds_read_b128 v[%d:%d], v%d offset:%d" % (S['B'], S['B'] + 3, vOB, ks * 2048))
            def o_mfmas(S):
                for n in range(7):
                    mfma(ACCO + 16 * n, S['A'][n], S['B'])
            set_w_addr()
            o_reads(XO, 0)
            a("s_mov_b32 s%d, 0" % sLOOP)
            a.label("O_LOOP")
            o_reads(YO, 1); a("s_waitcnt lgkmcnt(15)"); o_mfmas(XO)
            a("s_add_u32 s%d, s%d, 1" % (sLOOP, sLOOP))
            a("s_cmp_eq_u32 s%d, 8" % sLOOP)
            a("s_cbranch_scc1 O_LAST")
            a("s_waitcnt lgkmcnt(0)")
            barrier()
            next_slot()
            set_w_addr()
            a("v_add_u32 v%d, 0x1000, v%d" % (vOB, vOB))
            o_reads(XO, 0)
            o_mfmas(YO)
            a("s_branch O_LOOP")
            a.label("O_LAST")
            a("s_waitcnt lgkmcnt(0)")
            o_mfmas(YO)
            a("s_nop 7"); a("s_nop 7")
            self.stamp_compute()
            a("s_mul_i32 s%d, s%d, 14336" % (sT0, sWAVE))
            a("v_add_u32 v3, s%d, v%d" % (sT0, vLIN))
            for n in range(7):
                for half in range(2):
                    b0 = ACCO + 16 * n + 8 * half
                    for j in range(4):
                        a("v_cvt_pk_bf16_f32 v%d, v%d, v%d" % (b0 + j, b0 + 2 * j, b0 + 2 * j + 1))
                    idx = n * 2 + half
                    a("s_mov_b32 s%d, %d" % (sOFF, idx * 1024))
                    a("buffer_store_dwordx4 v[%d:%d], v3, s[%d:%d], s%d offen%s" % (b0, b0 + 3, S_WS, S_WS + 3, sOFF, o.storeflags))
        if o.diag:
            a("s_waitcnt vmcnt(0)")
            a("s_memrealtime s[%d:%d]" % (sSTA, sSTA + 1))
            a("s_waitcnt lgkmcnt(0)")
            a("v_writelane_b32 v15, s%d, 62" % sSTB)
            a("v_writelane_b32 v15, s%d, 63" % sSTA)
            self.diag_store(15, 0)
        if o.dbgstamp:
            a("s_waitcnt vmcnt(0)")
            a("s_memrealtime s[%d:%d]" % (sSTA, sSTA + 1))
            a("s_memtime s[72:73]")
            a("s_waitcnt lgkmcnt(0)")
            a("s_not_b32 s%d, s%d" % (sSTB, sSTB))
            a("s_sub_u32 s72, s72, s70")
            a("s_lshl_b32 s%d, s2, 2" % sT0)
            a("s_add_u32 s%d, s%d, s%d" % (sT0, sT0, sWAVE))
            a("s_lshl_b32 s%d, s%d, 4" % (sT0, sT0))
            a("s_add_u32 s%d, s%d, %d" % (sT0, sT0, WS_DIAG))
            a("s_add_u32 s64, s18, s%d" % sT0)
            a("s_addc_u32 s65, s19, 0")
            a("s_mov_b32 s66, 16\ns_mov_b32 s67, 0x00020000")
            a("v_mov_b32 v4, s%d" % sSTB)
            a("v_mov_b32 v5, s%d" % sSTA)
            a("v_mov_b32 v6, s72")
            a("v_mov_b32 v7, 0")
            a("v_lshlrev_b32 v3, 4, v0")
            a("buffer_store_dwordx4 v[4:7], v3, s[64:67], 0 offen")
            a("s_waitcnt vmcnt(0)")
        a.label("K1_END")
        a("s_endpgm")

    def gen(self):
        self.prologue()
        self.compute()
        self.loader()
        return self.a.text()

def gen_k2(opt):
    a = Asm()
    kernel_begin(a, "k2_kernel")
    a("s_cmp_ge_u32 s2, 224")
    a("s_cbranch_scc1 K2_END")
    a("s_load_dwordx2 s[4:5], s[0:1], 40")
    a("s_load_dwordx2 s[6:7], s[0:1], 56")
    a("v_lshrrev_b32 v1, 6, v0")
    a("v_and_b32 v0, 63, v0")
    a("v_readfirstlane_b32 s3, v1")
    a("s_lshl_b32 s8, s2, 2")
    a("s_add_u32 s8, s8, s3")
    a("s_mul_i32 s9, s8, 9363")
    a("s_lshr_b32 s9, s9, 19")
    a("s_mul_i32 s10, s9, 56")
    a("s_sub_u32 s10, s8, s10")
    a("s_mul_i32 s11, s9, %d" % (16 * 57344))
    a("s_lshl_b32 s12, s10, 10")
    a("s_add_u32 s11, s11, s12")
    a("s_waitcnt lgkmcnt(0)")
    a("s_add_u32 s16, s6, s11")
    a("s_addc_u32 s17, s7, 0")
    a("s_mov_b32 s18, %d" % (16 * 57344))
    a("s_mov_b32 s19, 0x00020000")
    a("v_lshlrev_b32 v2, 4, v0")
    a("s_mov_b32 s20, 0")
    for h in range(16):
        a("buffer_load_dwordx4 v[%d:%d], v2, s[16:19], s20 offen" % (16 + 4 * h, 19 + 4 * h))
        if h < 15: a("s_add_u32 s20, s20, 57344")
    a("s_lshr_b32 s21, s10, 1")
    a("s_and_b32 s22, s10, 1")
    a("s_mul_i32 s23, s21, 9363")
    a("s_lshr_b32 s23, s23, 16")
    a("s_mul_i32 s24, s23, 7")
    a("s_sub_u32 s24, s21, s24")
    a("s_and_b32 s25, s23, 1")
    a("s_lshl_b32 s25, s25, 5")
    a("s_lshl_b32 s26, s9, 6")
    a("s_add_u32 s25, s25, s26")
    a("s_lshr_b32 s26, s23, 1")
    a("s_mul_i32 s26, s26, 224")
    a("s_lshl_b32 s27, s24, 5")
    a("s_add_u32 s26, s26, s27")
    a("s_lshl_b32 s27, s22, 4")
    a("s_add_u32 s26, s26, s27")
    a("s_mul_i32 s25, s25, 896")
    a("s_lshl_b32 s26, s26, 1")
    a("s_add_u32 s25, s25, s26")
    a("v_and_b32 v3, 31, v0")
    a("v_mul_u32_u24 v3, 896, v3")
    a("v_lshrrev_b32 v4, 5, v0")
    a("v_lshl_add_u32 v3, v4, 4, v3")
    a("v_add_u32 v3, s25, v3")
    a("s_mov_b32 s28, s4\ns_mov_b32 s29, s5\ns_mov_b32 s30, %d\ns_mov_b32 s31, 0x00020000" % (1024 * 896))
    for j in range(8): a("v_mov_b32 v%d, 0" % (4 + j))
    for h in range(16):
        a("s_waitcnt vmcnt(%d)" % (15 - h))
        for j in range(4):
            r = 16 + 4 * h + j
            a("v_lshlrev_b32 v12, 16, v%d" % r)
            a("v_and_b32 v13, 0xffff0000, v%d" % r)
            a("v_add_f32 v%d, v%d, v12" % (4 + 2 * j, 4 + 2 * j))
            a("v_add_f32 v%d, v%d, v13" % (5 + 2 * j, 5 + 2 * j))
    for j in range(4):
        a("v_cvt_pk_bf16_f32 v%d, v%d, v%d" % (12 + j, 4 + 2 * j, 5 + 2 * j))
    a("s_nop 1")
    a("v_permlane32_swap_b32 v12, v14")
    a("v_permlane32_swap_b32 v13, v15")
    a("buffer_store_dwordx4 v[12:15], v3, s[28:31], 0 offen")
    if opt.dbgstamp and not opt.spin:
        a("s_cmp_lg_u32 s2, 0")
        a("s_cbranch_scc1 K2_END")
        a("s_load_dwordx2 s[32:33], s[0:1], 48")
        a("s_add_u32 s36, s6, %d" % WS_DIAG)
        a("s_addc_u32 s37, s7, 0")
        a("s_mov_b32 s38, 16384\ns_mov_b32 s39, 0x00020000")
        a("v_lshl_add_u32 v2, s3, 6, v0")
        for k in range(4):
            a("v_lshlrev_b32 v3, 4, v2")
            a("buffer_load_dwordx4 v[4:7], v3, s[36:39], 0 offen offset:0")
            a("s_waitcnt vmcnt(0) lgkmcnt(0)")
            a("s_mov_b32 s34, 256\ns_mov_b32 s35, 0x00020000")
            a("v_mov_b32 v8, 0")
            a("buffer_atomic_umax v4, v8, s[32:35], 0 offen")
            a("buffer_atomic_umax v5, v8, s[32:35], 0 offen offset:4")
            a("buffer_atomic_umax v6, v8, s[32:35], 0 offen offset:8")
            a("s_waitcnt vmcnt(0)")
            a("v_add_u32 v2, 256, v2")
    if opt.spin:
        a("s_cmp_lg_u32 s2, 0")
        a("s_cbranch_scc1 K2_END")
        a("s_add_u32 s36, s6, %d" % (WS_DIAG + opt.spinwg * 64))
        a("s_addc_u32 s37, s7, 0")
        a("s_load_dwordx2 s[32:33], s[36:37], 0")
        a("s_memrealtime s[34:35]")
        a("s_waitcnt lgkmcnt(0)")
        a("s_not_b32 s32, s32")
        a("s_sub_u32 s33, s33, s32")
        a("s_mul_i32 s33, s33, %d" % opt.spin)
        a("s_min_u32 s33, s33, 100000")
        a.label("K2_SPIN")
        a("s_memrealtime s[38:39]")
        a("s_waitcnt lgkmcnt(0)")
        a("s_sub_u32 s38, s38, s34")
        a("s_cmp_lt_u32 s38, s33")
        a("s_cbranch_scc1 K2_SPIN")
    a.label("K2_END")
    a("s_endpgm")
    return a.text()

def build(opt):
    k1 = K1(opt).gen()
    k2 = gen_k2(opt)
    s = HEADER
    s += "; @launch kernel=k1_kernel grid=(256,1,1) block=(512,1,1) lds=%d\n" % LDS_TOTAL
    if not opt.nok2:
        s += "; @launch kernel=k2_kernel grid=(224,1,1) block=(256,1,1) lds=0\n"
    s += '.amdgcn_target "amdgcn-amd-amdhsa--gfx950"\n.text\n'
    s += k1
    if not opt.nok2: s += k2
    s += '.section .rodata,"a"\n.p2align 6\n' + kernel_desc("k1_kernel", 256, 96)
    if not opt.nok2:
        s += '.p2align 6\n' + kernel_desc("k2_kernel", 80, 48)
    return s

if __name__ == "__main__":
    ap = argparse.ArgumentParser()
    ap.add_argument("-o", default="k1.s")
    ap.add_argument("--diag", action="store_true")
    ap.add_argument("--nocompute", action="store_true")
    ap.add_argument("--fakemfma", action="store_true")
    ap.add_argument("--nok2", action="store_true")
    ap.add_argument("--dbgstamp", action="store_true")
    ap.add_argument("--storeflags", default="")
    ap.add_argument("--pf", action="store_true")
    ap.add_argument("--pfstride", type=int, default=128)
    ap.add_argument("--pfflags", default="")
    ap.add_argument("--pf0", type=int, default=2)
    ap.add_argument("--spin", type=int, default=0)
    ap.add_argument("--spinwg", type=int, default=0)
    ap.add_argument("--nt", default="")
    ap.add_argument("--pfn", type=int, default=20)
    ap.add_argument("--pfmode", type=int, default=0)
    ap.add_argument("--pouter", action="store_true")
    ap.add_argument("--pfper", type=int, default=1)
    opt = ap.parse_args()
    open(opt.o, "w").write(build(opt))
```

```python
import sys, argparse
from asmlib import *

LDS_X = 0
LDS_Q = 0
LDS_P = [16384, 0]
LDS_O = 24576
LDS_MAX = 57344
LDS_SUM = 59392
RING = 65536
SLOT = 32768
LDS_TOTAL = 163840
WS_PART = 0
WS_DIAG = 16 << 20

S_X, S_K, S_V, S_WQ, S_WO, S_WS = 20, 24, 28, 32, 36, 40
sWAVE = 3
sHQ, sB, sRH, sHKV = 44, 45, 46, 47
sC1 = 48
sSLOT = 49
sT0, sT1, sT2, sT3 = 50, 51, 52, 53
sOFF = 54
sLOOP = 55
sGRP = 56
sSTA, sSTB = 58, 60

def srd(a, s, ptr, off_sgpr, nbytes):
    if off_sgpr is None:
        a("s_mov_b32 s%d, s%d" % (s, ptr))
        a("s_mov_b32 s%d, s%d" % (s + 1, ptr + 1))
    else:
        a("s_add_u32 s%d, s%d, s%d" % (s, ptr, off_sgpr))
        a("s_addc_u32 s%d, s%d, 0" % (s + 1, ptr + 1))
    a("s_mov_b32 s%d, 0x%x" % (s + 2, nbytes))
    a("s_mov_b32 s%d, 0x00020000" % (s + 3))

class K1:
    def __init__(self, opt):
        self.o = opt
        self.a = Asm()
        self.nstamp_l = 0
        self.nstamp_c = 0

    def stamp_loader(self):
        if not self.o.diag: return
        a = self.a
        a("%s s[%d:%d]" % ("s_memrealtime" if self.o.rt else "s_memtime", sSTA, sSTA + 1))
        a("s_waitcnt lgkmcnt(0)")
        a("v_writelane_b32 v60, s%d, %d" % (sSTA, self.nstamp_l))
        self.nstamp_l += 1

    def stamp_compute(self):
        if not self.o.diag: return
        a = self.a
        a("s_memtime s[%d:%d]" % (sSTA, sSTA + 1))
        a("s_waitcnt lgkmcnt(0)")
        a("v_writelane_b32 v15, s%d, %d" % (sSTA, self.nstamp_c))
        self.nstamp_c += 1

    def prologue(self):
        a = self.a
        kernel_begin(a, "k1_kernel")
        a("s_cmp_ge_u32 s2, 256")
        a("s_cbranch_scc1 K1_END")
        a("s_load_dwordx16 s[4:19], s[0:1], 0")
        if self.o.diag or self.o.dbgstamp:
            a("s_memrealtime s[%d:%d]" % (sSTB, sSTB + 1))
            a("s_memtime s[70:71]")
        a("v_lshrrev_b32 v1, 6, v0")
        a("v_and_b32 v0, 63, v0")
        a("v_readfirstlane_b32 s%d, v1" % sWAVE)
        a("s_and_b32 s%d, s2, 7" % sHKV)
        a("s_lshr_b32 s%d, s2, 5" % sB)
        a("s_bfe_u32 s%d, s2, 0x10004" % sT0)
        a("s_bfe_u32 s%d, s2, 0x10003" % sRH)
        a("s_lshl_b32 s%d, s%d, 1" % (sHQ, sHKV))
        a("s_add_u32 s%d, s%d, s%d" % (sHQ, sHQ, sT0))
        a("s_mov_b32 s%d, 0x3db8aa3b" % sC1)
        a("s_lshl_b32 s%d, s%d, 1" % (sGRP, sB))
        a("s_add_u32 s%d, s%d, s%d" % (sGRP, sGRP, sRH))
        a("s_mul_i32 s%d, s%d, 57344" % (sT0, sGRP))
        a("s_lshl_b32 s%d, s%d, 3" % (sT1, sB))
        a("s_add_u32 s%d, s%d, s%d" % (sT1, sT1, sHKV))
        a("s_lshl_b32 s%d, s%d, 18" % (sT1, sT1))
        a("s_lshl_b32 s%d, s%d, 9" % (sT2, sHQ))
        a("s_mul_i32 s%d, s%d, 229376" % (sT3, sHQ))
        a("s_waitcnt lgkmcnt(0)")
        srd(a, S_X, 4, sT0, 57344)
        srd(a, S_K, 6, sT1, 262144)
        srd(a, S_V, 8, sT1, 262144)
        srd(a, S_WQ, 10, sT2, 448 * 8192 - 15 * 512)
        srd(a, S_WO, 12, sT3, 229376)
        a("s_lshl_b32 s%d, s%d, 4" % (sT0, sGRP))
        a("s_add_u32 s%d, s%d, s%d" % (sT0, sT0, sHQ))
        a("s_mul_i32 s%d, s%d, 57344" % (sT0, sT0))
        srd(a, S_WS, 18, sT0, 57344)
        a("s_cmp_ge_u32 s%d, 4" % sWAVE)
        a("s_cbranch_scc1 K1_LOADER")

    def loader(self):
        a = self.a
        o = self.o
        a.label("K1_LOADER")
        a("s_sub_u32 s%d, s%d, 4" % (sWAVE, sWAVE))
        vL = 0
        vX = 16
        vWO = 32
        vWQ, vK0, vK1, vV = 40, 41, 42, 43
        a("v_lshrrev_b32 v1, 3, v0")
        a("v_and_b32 v2, 7, v0")
        a("v_bfe_u32 v3, v0, 4, 1")
        a("v_lshlrev_b32 v3, 2, v3")
        a("v_xor_b32 v3, v2, v3")
        a("v_lshlrev_b32 v3, 4, v3")
        a("s_lshl_b32 s%d, s%d, 7" % (sT0, sWAVE))
        a("v_add_u32 v3, s%d, v3" % sT0)
        a("v_lshl_add_u32 v%d, v1, 13, v3" % vWQ)
        a("v_lshl_add_u32 v%d, v1, 9, v3" % vV)
        a("v_lshrrev_b32 v4, 4, v0")
        a("v_xor_b32 v5, v2, v4")
        a("v_lshlrev_b32 v5, 4, v5")
        a("s_lshl_b32 s%d, s%d, 16" % (sT0, sWAVE))
        a("v_add_u32 v5, s%d, v5" % sT0)
        a("v_lshl_add_u32 v%d, v1, 9, v5" % vK0)
        a("v_xor_b32 v%d, 64, v%d" % (vK1, vK0))
        a("s_mul_i32 s%d, s%d, 896" % (sT0, sWAVE))
        a("v_add_u32 v6, s%d, v0" % sT0)
        for j in range(14):
            a("v_add_u32 v7, %d, v6" % (64 * j))
            a("v_mul_u32_u24 v8, 4682, v7")
            a("v_lshrrev_b32 v8, 19, v8")
            a("v_and_b32 v8, 7, v8")
            a("v_xor_b32 v8, v7, v8")
            a("v_lshlrev_b32 v%d, 4, v8" % (vX + j))
        a("s_mul_i32 s%d, s%d, 448" % (sT0, sWAVE))
        a("v_add_u32 v6, s%d, v0" % sT0)
        for j in range(7):
            a("v_add_u32 v7, %d, v6" % (64 * j))
            a("v_mul_u32_u24 v8, 9363, v7")
            a("v_lshrrev_b32 v8, 19, v8")
            a("v_bfe_u32 v8, v8, 1, 1")
            a("v_lshlrev_b32 v8, 2, v8")
            a("v_xor_b32 v8, v7, v8")
            a("v_lshlrev_b32 v%d, 4, v8" % (vWO + j))
        sL8 = 62
        sL7 = 63
        sM = 64
        a("s_lshl_b32 s%d, s%d, 13" % (sL8, sWAVE))
        a("s_mul_i32 s%d, s%d, 7168" % (sL7, sWAVE))
        a("s_mul_i32 s%d, s%d, 14336" % (sT0, sWAVE))
        self.stamp_loader()

        def dma(srdreg, vreg, soff):
            fl = ""
            if srdreg in (S_K, S_V) and "kv" in o.nt: fl = " nt"
            if srdreg in (S_WQ, S_WO) and "w" in o.nt: fl = " nt"
            if srdreg == S_X and "x" in o.nt: fl = " nt"
            a("buffer_load_dwordx4 v%d, s[%d:%d], %s offen%s lds" % (vreg, srdreg, srdreg + 3, soff, fl))

        a("s_mov_b32 m0, s%d" % sT0)
        for j in range(14):
            if j: a("s_addk_i32 m0, 0x400")
            a("s_nop 0")
            dma(S_X, vX + j, "0")

        def issue(t):
            slot = RING + (t % 3) * SLOT
            if t <= 6:
                a("s_add_u32 m0, s%d, %d" % (sL8, slot))
                a("s_mov_b32 s%d, %d" % (sOFF, t * 524288))
                for i in range(8):
                    if i:
                        a("s_addk_i32 m0, 0x400")
                        a("s_add_u32 s%d, s%d, 0x10000" % (sOFF, sOFF))
                    dma(S_WQ, vWQ, "s%d" % sOFF)
                return 8
            if t <= 14:
                d, p = (t - 7) >> 1, (t - 7) & 1
                if o.pouter: p, d = (t - 7) >> 2, (t - 7) & 3
                a("s_add_u32 m0, s%d, %d" % (sL8, slot))
                a("s_mov_b32 s%d, %d" % (sOFF, p * 32768 + d * 128))
                for i in range(8):
                    if i:
                        a("s_addk_i32 m0, 0x400")
                        a("s_addk_i32 s%d, 0x1000" % sOFF)
                    dma(S_K, vK1 if i & 1 else vK0, "s%d" % sOFF)
                return 8
            if t <= 22:
                c, wp = (t - 15) >> 1, (t - 15) & 1
                a("s_add_u32 m0, s%d, %d" % (sL8, slot))
                for i in range(8):
                    key = 128 * (2 * wp + (i >> 2)) + 32 * c + 8 * (i & 3)
                    if i: a("s_addk_i32 m0, 0x400")
                    a("s_mov_b32 s%d, %d" % (sOFF, key * 512))
                    dma(S_V, vV, "s%d" % sOFF)
                return 8
            tt = t - 23
            a("s_add_u32 m0, s%d, %d" % (sL7, slot))
            a("s_mov_b32 s%d, %d" % (sOFF, tt * 28672))
            for j in range(7):
                if j: a("s_addk_i32 m0, 0x400")
                a("s_nop 0")
                dma(S_WO, vWO + j, "s%d" % sOFF)
            return 7

        cnt = {}
        cnt[0] = issue(0)
        cnt[1] = issue(1)
        a("s_waitcnt vmcnt(%d)" % cnt[1])
        a("s_barrier")
        self.stamp_loader()
        extra_after = {6: 1, 14: 2, 22: 1}
        for t in range(0, 30):
            n = 0
            if t + 2 <= 30:
                n = issue(t + 2)
            for _ in range(extra_after.get(t - 1, 0)):
                a("s_barrier")
            a("s_waitcnt vmcnt(%d)" % n)
            a("s_barrier")
            self.stamp_loader()
        if o.diag:
            a("s_memrealtime s[%d:%d]" % (sSTA, sSTA + 1))
            a("s_waitcnt lgkmcnt(0)")
            a("v_writelane_b32 v60, s%d, 62" % sSTB)
            a("v_writelane_b32 v60, s%d, 63" % sSTA)
            self.diag_store(60, 4)
        a("s_endpgm")

    def diag_store(self, vreg, waveadd):
        a = self.a
        a("s_lshl_b32 s%d, s2, 3" % sT0)
        a("s_add_u32 s%d, s%d, s%d" % (sT0, sT0, sWAVE))
        a("s_add_u32 s%d, s%d, %d" % (sT0, sT0, waveadd))
        a("s_lshl_b32 s%d, s%d, 8" % (sT0, sT0))
        a("s_add_u32 s%d, s%d, %d" % (sT0, sT0, WS_DIAG))
        a("s_add_u32 s64, s18, s%d" % sT0)
        a("s_addc_u32 s65, s19, 0")
        a("s_mov_b32 s66, 256")
        a("s_mov_b32 s67, 0x00020000")
        a("v_lshlrev_b32 v61, 2, v0")
        a("buffer_store_dword v%d, v61, s[64:67], 0 offen" % vreg)
        a("s_waitcnt vmcnt(0)")

    def compute(self):
        a = self.a
        o = self.o
        vLIN = 2
        vXA = [4, 5, 6, 7]
        vT0, vT1 = 8, 9
        vKA = [8, 9, 10, 11]
        vPAT0, vPAT1 = 12, 13
        vTMP = 3
        vTMP2 = 14
        X = dict(A=[16, 20], B=[24, 28])
        Y = dict(A=[32, 36], B=[40, 44])
        ACCQ = 64
        ACCS = 128
        vM = [48, 49]
        vSUM = [50, 51]
        vSC = list(range(52, 64))

        a("v_lshlrev_b32 v%d, 4, v0" % vLIN)
        a("v_and_b32 v3, 31, v0")
        a("v_lshrrev_b32 v14, 1, v3")
        a("v_mul_u32_u24 v4, 1792, v14")
        a("v_and_b32 v5, 1, v3")
        a("v_mul_u32_u24 v5, 896, v5")
        a("v_add_u32 v4, v4, v5")
        a("v_and_b32 v14, 7, v14")
        a("v_lshrrev_b32 v5, 5, v0")
        a("v_xor_b32 v14, v14, v5")
        a("v_lshl_add_u32 v%d, v14, 4, v4" % vXA[0])
        for j in (1, 2, 3):
            a("v_xor_b32 v%d, %d, v%d" % (vXA[j], j << 5, vXA[0]))
        def trpat(dst0, dst1, hshift):
            a("v_bfe_u32 v3, v0, 2, 2")
            a("v_lshlrev_b32 v3, 7, v3")
            a("v_lshrrev_b32 v14, 5, v0")
            a("v_lshlrev_b32 v14, %d, v14" % hshift)
            a("v_add_u32 v3, v3, v14")
            a("v_bfe_u32 v14, v0, 4, 1")
            a("v_lshlrev_b32 v14, 5, v14")
            a("v_add_u32 v3, v3, v14")
            a("v_and_b32 v14, 3, v0")
            a("v_lshlrev_b32 v14, 3, v14")
            a("v_add_u32 v3, v3, v14")
            a("v_bfe_u32 v14, v0, 3, 1")
            a("v_lshlrev_b32 v14, 6, v14")
            a("v_add_u32 v3, v3, v14")
            a("s_lshl_b32 s%d, s%d, 13" % (sT0, sWAVE))
            a("v_add_u32 v%d, s%d, v3" % (dst0, sT0))
            a("v_xor_b32 v%d, 64, v%d" % (dst1, dst0))
        trpat(vPAT0, vPAT1, 10)
        for r in range(ACCS, ACCS + 128): a("v_mov_b32 v%d, 0" % r)
        for r in range(ACCQ, ACCQ + 64): a("v_mov_b32 v%d, 0" % r)
        a("s_mov_b32 s%d, %d" % (sSLOT, RING))

        def next_slot():
            a("s_add_u32 s%d, s%d, %d" % (sSLOT, sSLOT, SLOT))
            a("s_cmp_eq_u32 s%d, %d" % (sSLOT, LDS_TOTAL))
            a("s_cselect_b32 s%d, %d, s%d" % (sSLOT, RING, sSLOT))

        def mfma(acc, A, B, c0=False):
            a("v_mfma_f32_32x32x16_bf16 v[%d:%d], v[%d:%d], v[%d:%d], %s" % (
                acc, acc + 15, A, A + 3, B, B + 3, "0" if c0 else "v[%d:%d]" % (acc, acc + 15)))

        def barrier():
            a("s_barrier")

        nocmp = o.nocompute
        vPFK, vPFV, vPFW, vPFO, vPFD = 55, 56, 57, 58, 59
        if o.pf:
            st = o.pfstride
            a("s_bfe_u32 s%d, s2, 0x20003" % sT0)
            a("s_lshl_b32 s%d, s%d, 16" % (sT1, sT0))
            a("v_lshlrev_b32 v%d, 9, v0" % vPFK)
            a("v_add_u32 v%d, s%d, v%d" % (vPFK, sT1, vPFK))
            a("v_lshrrev_b32 v3, 5, v0")
            a("v_and_b32 v14, 31, v0")
            a("v_lshl_add_u32 v3, v3, 7, v14")
            a("v_lshlrev_b32 v3, 9, v3")
            a("s_lshl_b32 s%d, s%d, 7" % (sT1, sT0))
            a("v_add_u32 v%d, s%d, v3" % (vPFV, sT1))
            a("v_lshlrev_b32 v3, 4, v0")
            a("v_add_u32 v3, s%d, v3" % sGRP)
            a("v_lshrrev_b32 v14, 2, v3")
            a("v_lshlrev_b32 v14, 13, v14")
            a("v_and_b32 v%d, 3, v3" % vPFW)
            a("v_lshl_add_u32 v%d, v%d, 7, v14" % (vPFW, vPFW))
            a("v_lshlrev_b32 v%d, 7, v3" % vPFO)
            if o.pfmode == 1:
                a("s_lshl_b32 s%d, s%d, 13" % (sT1, sT0))
                a("v_lshlrev_b32 v%d, 7, v0" % vPFK)
                a("v_add_u32 v%d, s%d, v%d" % (vPFK, sT1, vPFK))
                a("s_lshr_b32 s%d, s%d, 1" % (sT1, sT0))
                a("s_lshl_b32 s%d, s%d, 16" % (sT1, sT1))
                a("s_and_b32 s%d, s%d, 1" % (sT2, sT0))
                a("s_lshl_b32 s%d, s%d, 13" % (sT2, sT2))
                a("s_add_u32 s%d, s%d, s%d" % (sT1, sT1, sT2))
                a("v_lshlrev_b32 v%d, 7, v0" % vPFV)
                a("v_add_u32 v%d, s%d, v%d" % (vPFV, sT1, vPFV))
                a("s_mul_i32 s%d, s%d, 14336" % (sT1, sGRP))
                a("v_lshlrev_b32 v%d, 7, v0" % vPFO)
                a("v_add_u32 v%d, s%d, v%d" % (vPFO, sT1, vPFO))
        def pf(kind, idx):
            if not o.pf: return
            lab = a.newlabel("PF")
            a("s_cmp_lg_u32 s%d, %d" % (sWAVE, idx & 3))
            a("s_cbranch_scc1 %s" % lab)
            reps = [0] if o.pfstride == 128 else [0, 64]
            for extra in reps:
                if kind == "k":
                    d, p = idx >> 1, idx & 1
                    if o.pfmode == 1:
                        p, m = idx >> 2, idx & 3
                        a("s_mov_b32 s%d, %d" % (sOFF, p * 32768 + m * 65536 + extra))
                    else:
                        a("s_mov_b32 s%d, %d" % (sOFF, p * 32768 + d * 128 + extra))
                    a("buffer_load_dword v%d, v%d, s[%d:%d], s%d offen%s" % (vPFD, vPFK, S_K, S_K + 3, sOFF, o.pfflags))
                elif kind == "v":
                    c, wp = idx >> 1, idx & 1
                    a("s_mov_b32 s%d, %d" % (sOFF, (256 * wp + 32 * c) * 512 + extra))
                    a("buffer_load_dword v%d, v%d, s[%d:%d], s%d offen%s" % (vPFD, vPFV, S_V, S_V + 3, sOFF, o.pfflags))
                elif kind == "wq":
                    a("s_mov_b32 s%d, %d" % (sOFF, idx * 256 * 8192 + extra))
                    a("buffer_load_dword v%d, v%d, s[%d:%d], s%d offen%s" % (vPFD, vPFW, S_WQ, S_WQ + 3, sOFF, o.pfflags))
                elif kind == "wo":
                    if o.pfmode == 1:
                        a("s_mov_b32 s%d, %d" % (sOFF, idx * 8192 + extra))
                    else:
                        a("s_mov_b32 s%d, %d" % (sOFF, idx * 64 * 16 * 128 + extra))
                    a("buffer_load_dword v%d, v%d, s[%d:%d], s%d offen%s" % (vPFD, vPFO, S_WO, S_WO + 3, sOFF, o.pfflags))
            a.label(lab)
        sched = {}
        if o.pf:
            order = [("wq", 0), ("wq", 1)] + [("k", i) for i in range(8)] + [("v", i) for i in range(8)] + [("wo", 0), ("wo", 1)]
            order = order[:o.pfn]
            n0 = o.pf0
            sched[-2] = order[:n0]
            rest = order[n0:]
            t = -1
            k = 0
            while k < len(rest):
                sched.setdefault(t, []).extend(rest[k:k + o.pfper])
                k += o.pfper
                t += 1
        self.pf = pf
        self.sched = sched
        for kind, idx in sched.get(-2, []): pf(kind, idx)

        def q_reads(S, ks, xoff):
            for mb in range(2):
                v = vT0 if mb == 0 else vT1
                a("ds_read_b64_tr_b16 v[%d:%d], v%d offset:%d" % (S['A'][mb], S['A'][mb] + 1, v, ks * 2048))
                a("ds_read_b64_tr_b16 v[%d:%d], v%d offset:%d" % (S['A'][mb] + 2, S['A'][mb] + 3, v, ks * 2048 + 512))
            for nb in range(2):
                a("ds_read_b128 v[%d:%d], v%d offset:%d" % (S['B'][nb], S['B'][nb] + 3, vXA[ks], nb * 28672 + xoff))
        def q_mfmas(S):
            for mb in range(2):
                for nb in range(2):
                    mfma(ACCQ + (mb * 2 + nb) * 16, S['A'][mb], S['B'][nb])
        def set_tr_addr():
            a("v_add_u32 v%d, s%d, v%d" % (vT0, sSLOT, vPAT0))
            a("v_add_u32 v%d, s%d, v%d" % (vT1, sSLOT, vPAT1))

        self.stamp_compute()
        barrier()
        self.stamp_compute()
        if nocmp:
            for t in range(30):
                for kind, idx in sched.get(t - 1, []): pf(kind, idx)
                for _ in range({7: 1, 15: 2, 23: 1}.get(t, 0)): barrier()
                if o.fakemfma:
                    for i in range(16): mfma(ACCQ + (i & 3) * 16, 16, 24)
                barrier()
        else:
            set_tr_addr()
            q_reads(X, 0, 0)
            a("s_mov_b32 s%d, 0" % sLOOP)
            a.label("Q_LOOP")
            q_reads(Y, 1, 0); a("s_waitcnt lgkmcnt(6)"); q_mfmas(X)
            q_reads(X, 2, 0); a("s_waitcnt lgkmcnt(6)"); q_mfmas(Y)
            q_reads(Y, 3, 0); a("s_waitcnt lgkmcnt(6)"); q_mfmas(X)
            a("s_waitcnt lgkmcnt(0)")
            barrier()
            next_slot()
            a("s_add_u32 s%d, s%d, 1" % (sLOOP, sLOOP))
            a("s_cmp_eq_u32 s%d, 7" % sLOOP)
            a("s_cbranch_scc1 Q_LAST")
            set_tr_addr()
            for j in range(4): a("v_add_u32 v%d, 128, v%d" % (vXA[j], vXA[j]))
            q_reads(X, 0, 0)
            q_mfmas(Y)
            a("s_branch Q_LOOP")
            a.label("Q_LAST")
            q_mfmas(Y)
            a("s_nop 7"); a("s_nop 7")
            self.stamp_compute()
            a("s_lshl_b32 s%d, s%d, 13" % (sT0, sWAVE))
            a("v_add_u32 v%d, s%d, v%d" % (vTMP, sT0, vLIN))
            for mb in range(2):
                for nb in range(2):
                    acc = ACCQ + (mb * 2 + nb) * 16
                    for half in range(2):
                        b0 = acc + 8 * half
                        for j in range(4):
                            a("v_cvt_pk_bf16_f32 v%d, v%d, v%d" % (b0 + j, b0 + 2 * j, b0 + 2 * j + 1))
                        a("s_nop 1")
                        a("v_permlane32_swap_b32 v%d, v%d" % (b0, b0 + 2))
                        a("v_permlane32_swap_b32 v%d, v%d" % (b0 + 1, b0 + 3))
                        a("ds_write_b128 v%d, v[%d:%d] offset:%d" % (vTMP, b0, b0 + 3, LDS_Q + ((2 * mb + half) * 2 + nb) * 1024))
            a("s_waitcnt lgkmcnt(0)")
            for r in range(ACCQ, ACCQ + 64): a("v_mov_b32 v%d, 0" % r)
            barrier()
            self.stamp_compute()

            vQA = 12
            a("v_and_b32 v3, 31, v0")
            a("v_bfe_u32 v14, v0, 1, 3")
            a("v_lshrrev_b32 v13, 5, v0")
            a("v_xor_b32 v14, v14, v13")
            a("v_lshlrev_b32 v14, 4, v14")
            a("v_lshl_add_u32 v3, v3, 7, v14")
            a("s_lshl_b32 s%d, s%d, 13" % (sT0, sWAVE))
            a("v_add_u32 v13, s%d, v3" % sT0)
            a("v_mov_b32 v%d, v%d" % (vQA, vLIN))
            def set_k_addr():
                a("v_add_u32 v%d, s%d, v13" % (vKA[0], sSLOT))
                for j in (1, 2, 3):
                    a("v_xor_b32 v%d, %d, v%d" % (vKA[j], j << 5, vKA[0]))
            def s_reads(S, ks):
                for mb in range(2):
                    a("ds_read_b128 v[%d:%d], v%d offset:%d" % (S['A'][mb], S['A'][mb] + 3, vKA[ks], mb * 4096))
                for nb in range(2):
                    a("ds_read_b128 v[%d:%d], v%d offset:%d" % (S['B'][nb], S['B'][nb] + 3, vQA, LDS_Q + (ks * 2 + nb) * 1024))
            def s_mfmas(S, p):
                for mb in range(2):
                    for nb in range(2):
                        mfma(ACCS + ((2 * p + mb) * 2 + nb) * 16, S['A'][mb], S['B'][nb])
            set_k_addr()
            s_reads(X, 0)
            a("s_mov_b32 s%d, 0" % sLOOP)
            a.label("S_LOOP")
            for p in range(2):
                s_reads(Y, 1); a("s_waitcnt lgkmcnt(4)"); s_mfmas(X, p)
                s_reads(X, 2); a("s_waitcnt lgkmcnt(4)"); s_mfmas(Y, p)
                s_reads(Y, 3); a("s_waitcnt lgkmcnt(4)"); s_mfmas(X, p)
                a("s_waitcnt lgkmcnt(0)")
                barrier()
                next_slot()
                if p == 1:
                    a("s_add_u32 s%d, s%d, 1" % (sLOOP, sLOOP))
                    a("s_cmp_eq_u32 s%d, 4" % sLOOP)
                    a("s_cbranch_scc1 S_LAST")
                    a("v_add_u32 v%d, 0x2000, v%d" % (vQA, vQA))
                set_k_addr()
                s_reads(X, 0)
                s_mfmas(Y, p)
            a("s_branch S_LOOP")
            a.label("S_LAST")
            s_mfmas(Y, 1)
            a("s_nop 7"); a("s_nop 7")
            self.stamp_compute()
            for nb in range(2):
                regs = [ACCS + (mb * 2 + nb) * 16 + r for mb in range(4) for r in range(16)]
                d = vM[nb]
                a("v_max3_f32 v%d, v%d, v%d, v%d" % (d, regs[0], regs[1], regs[2]))
                i = 3
                while i + 1 < len(regs):
                    a("v_max3_f32 v%d, v%d, v%d, v%d" % (d, d, regs[i], regs[i + 1]))
                    i += 2
                if i < len(regs):
                    a("v_max_f32 v%d, v%d, v%d" % (d, d, regs[i]))
            vST = 3
            a("v_and_b32 v14, 31, v0")
            a("v_lshlrev_b32 v14, 5, v14")
            a("v_lshrrev_b32 v3, 5, v0")
            a("v_lshl_add_u32 v3, v3, 2, v14")
            a("s_lshl_b32 s%d, s%d, 3" % (sT0, sWAVE))
            a("v_add_u32 v%d, s%d, v3" % (vST, sT0))
            vSTR = 14
            for nb in range(2):
                a("ds_write_b32 v%d, v%d offset:%d" % (vST, vM[nb], LDS_MAX + nb * 1024))
            a("s_waitcnt lgkmcnt(0)")
            barrier()
            for nb in range(2):
                a("ds_read_b128 v[%d:%d], v%d offset:%d" % (16 + nb * 8, 19 + nb * 8, vSTR, LDS_MAX + nb * 1024))
                a("ds_read_b128 v[%d:%d], v%d offset:%d" % (20 + nb * 8, 23 + nb * 8, vSTR, LDS_MAX + nb * 1024 + 16))
            a("s_waitcnt lgkmcnt(0)")
            for nb in range(2):
                b = 16 + nb * 8
                a("v_max3_f32 v%d, v%d, v%d, v%d" % (vM[nb], b, b + 1, b + 2))
                a("v_max3_f32 v%d, v%d, v%d, v%d" % (vM[nb], vM[nb], b + 3, b + 4))
                a("v_max3_f32 v%d, v%d, v%d, v%d" % (vM[nb], vM[nb], b + 5, b + 6))
                a("v_max_f32 v%d, v%d, v%d" % (vM[nb], vM[nb], b + 7))
                a("v_mul_f32 v%d, s%d, v%d" % (vM[nb], sC1, vM[nb]))
                a("v_mov_b32 v%d, 0" % vSUM[nb])
            vPW = 12
            a("s_lshl_b32 s%d, s%d, 12" % (sT0, sWAVE))
            a("v_add_u32 v%d, s%d, v%d" % (vPW, sT0, vLIN))

            def softmax_chunk(c):
                for nb in range(2):
                    acc = ACCS + (c * 2 + nb) * 16
                    for r in range(16):
                        a("v_fma_f32 v%d, v%d, s%d, -v%d" % (acc + r, acc + r, sC1, vM[nb]))
                    for r in range(16):
                        a("v_exp_f32 v%d, v%d" % (acc + r, acc + r))
                    a("s_nop 0")
                    for r in range(16):
                        a("v_add_f32 v%d, v%d, v%d" % (vSUM[nb], vSUM[nb], acc + r))
                    for half in range(2):
                        b0 = acc + 8 * half
                        for j in range(4):
                            a("v_cvt_pk_bf16_f32 v%d, v%d, v%d" % (b0 + j, b0 + 2 * j, b0 + 2 * j + 1))
                        a("ds_write_b128 v%d, v[%d:%d] offset:%d" % (vPW, b0, b0 + 3, LDS_P[c & 1] + (half * 2 + nb) * 1024))
            softmax_chunk(0)
            a("s_waitcnt lgkmcnt(0)")
            barrier()
            self.stamp_compute()

            trpat(vPAT0, vPAT1, 9)
            a("s_lshl_b32 s%d, s%d, 12" % (sT0, sWAVE))
            a("v_add_u32 v52, s%d, v%d" % (sT0, vLIN))
            vPW = 52
            a("v_and_b32 v54, 31, v0")
            a("v_lshlrev_b32 v54, 5, v54")
            a("v_lshrrev_b32 v53, 5, v0")
            a("v_lshl_add_u32 v53, v53, 2, v54")
            a("s_lshl_b32 s%d, s%d, 3" % (sT0, sWAVE))
            a("v_add_u32 v53, s%d, v53" % sT0)
            vST, vSTR = 53, 54
            def pv_reads(S, c, wp, j):
                for mb in range(2):
                    v = vT0 if mb == 0 else vT1
                    a("ds_read_b64_tr_b16 v[%d:%d], v%d offset:%d" % (S['A'][mb], S['A'][mb] + 1, v, j * 2048))
                    a("ds_read_b64_tr_b16 v[%d:%d], v%d offset:%d" % (S['A'][mb] + 2, S['A'][mb] + 3, v, j * 2048 + 1024))
                for nb in range(2):
                    a("ds_read_b128 v[%d:%d], v%d offset:%d" % (S['B'][nb], S['B'][nb] + 3, vLIN, LDS_P[c & 1] + wp * 8192 + j * 2048 + nb * 1024))
            set_tr_addr()
            pv_reads(X, 0, 0, 0)
            for c in range(4):
                for wp in range(2):
                    pv_reads(Y, c, wp, 1); a("s_waitcnt lgkmcnt(6)"); q_mfmas(X)
                    pv_reads(X, c, wp, 2); a("s_waitcnt lgkmcnt(6)"); q_mfmas(Y)
                    pv_reads(Y, c, wp, 3); a("s_waitcnt lgkmcnt(6)"); q_mfmas(X)
                    if wp == 0 and c < 3:
                        softmax_chunk(c + 1)
                        if c == 2:
                            for nb in range(2):
                                a("ds_write_b32 v%d, v%d offset:%d" % (vST, vSUM[nb], LDS_SUM + nb * 1024))
                    a("s_waitcnt lgkmcnt(0)")
                    barrier()
                    next_slot()
                    if not (c == 3 and wp == 1):
                        set_tr_addr()
                        nc, nwp = (c, 1) if wp == 0 else (c + 1, 0)
                        pv_reads(X, nc, nwp, 0)
                    q_mfmas(Y)
            for nb in range(2):
                a("ds_read_b128 v[%d:%d], v%d offset:%d" % (16 + nb * 8, 19 + nb * 8, vSTR, LDS_SUM + nb * 1024))
                a("ds_read_b128 v[%d:%d], v%d offset:%d" % (20 + nb * 8, 23 + nb * 8, vSTR, LDS_SUM + nb * 1024 + 16))
            a("s_waitcnt lgkmcnt(0)")
            self.stamp_compute()
            for nb in range(2):
                b = 16 + nb * 8
                a("v_add_f32 v%d, v%d, v%d" % (b, b, b + 1))
                for k in range(2, 8):
                    a("v_add_f32 v%d, v%d, v%d" % (b, b, b + k))
                a("v_rcp_f32 v%d, v%d" % (vSUM[nb], b))
            a("s_nop 7"); a("s_nop 3")
            a("s_lshl_b32 s%d, s%d, 13" % (sT0, sWAVE))
            a("v_add_u32 v%d, s%d, v%d" % (vTMP, sT0, vLIN))
            for mb in range(2):
                for nb in range(2):
                    acc = ACCQ + (mb * 2 + nb) * 16
                    for r in range(16):
                        a("v_mul_f32 v%d, v%d, v%d" % (acc + r, acc + r, vSUM[nb]))
                    for half in range(2):
                        b0 = acc + 8 * half
                        for j in range(4):
                            a("v_cvt_pk_bf16_f32 v%d, v%d, v%d" % (b0 + j, b0 + 2 * j, b0 + 2 * j + 1))
                        a("ds_write_b128 v%d, v[%d:%d] offset:%d" % (vTMP, b0, b0 + 3, LDS_O + ((2 * mb + half) * 2 + nb) * 1024))
            ACCO = 128
            for r in range(ACCO, ACCO + 112): a("v_mov_b32 v%d, 0" % r)
            a("s_waitcnt lgkmcnt(0)")
            barrier()
            self.stamp_compute()

            XO = dict(A=[64 + 4 * i for i in range(7)], B=92)
            YO = dict(A=[96 + 4 * i for i in range(7)], B=124)
            vW = [12, 13]
            vWA = [8, 9]
            vOB = 10
            a("v_bfe_u32 v3, v0, 2, 2")
            a("v_lshrrev_b32 v14, 5, v0")
            a("v_lshl_add_u32 v3, v14, 2, v3")
            a("v_mul_u32_u24 v3, 896, v3")
            a("v_bfe_u32 v14, v0, 4, 1")
            a("v_lshl_add_u32 v3, v14, 5, v3")
            a("v_and_b32 v14, 3, v0")
            a("v_lshl_add_u32 v3, v14, 3, v3")
            a("s_lshr_b32 s%d, s%d, 1" % (sT0, sWAVE))
            a("s_mul_i32 s%d, s%d, 448" % (sT1, sT0))
            a("v_add_u32 v3, s%d, v3" % sT1)
            a("v_bfe_u32 v14, v0, 3, 1")
            a("v_lshlrev_b32 v14, 6, v14")
            a("v_add_u32 v%d, v3, v14" % vW[0])
            a("v_sub_u32 v%d, v3, v14" % vW[1])
            a("s_cmp_eq_u32 s%d, 0" % sT0)
            a("s_cbranch_scc1 O_NOSWAP")
            a("v_mov_b32 v3, v%d" % vW[0])
            a("v_mov_b32 v%d, v%d" % (vW[0], vW[1]))
            a("v_mov_b32 v%d, v3" % vW[1])
            a.label("O_NOSWAP")
            a("s_and_b32 s%d, s%d, 1" % (sT0, sWAVE))
            a("s_lshl_b32 s%d, s%d, 10" % (sT0, sT0))
            a("s_add_u32 s%d, s%d, %d" % (sT0, sT0, LDS_O))
            a("v_add_u32 v%d, s%d, v%d" % (vOB, sT0, vLIN))
            def set_w_addr():
                a("v_add_u32 v%d, s%d, v%d" % (vWA[0], sSLOT, vW[0]))
                a("v_add_u32 v%d, s%d, v%d" % (vWA[1], sSLOT, vW[1]))
            def o_reads(S, ks):
                for n in range(7):
                    v = vWA[n & 1]
                    off = 16 * ks * 896 + n * 64
                    a("ds_read_b64_tr_b16 v[%d:%d], v%d offset:%d" % (S['A'][n], S['A'][n] + 1, v, off))
                    a("ds_read_b64_tr_b16 v[%d:%d], v%d offset:%d" % (S['A'][n] + 2, S['A'][n] + 3, v, off + 8 * 896))
                a("ds_read_b128 v[%d:%d], v%d offset:%d" % (S['B'], S['B'] + 3, vOB, ks * 2048))
            def o_mfmas(S):
                for n in range(7):
                    mfma(ACCO + 16 * n, S['A'][n], S['B'])
            set_w_addr()
            o_reads(XO, 0)
            a("s_mov_b32 s%d, 0" % sLOOP)
            a.label("O_LOOP")
            o_reads(YO, 1); a("s_waitcnt lgkmcnt(15)"); o_mfmas(XO)
            a("s_add_u32 s%d, s%d, 1" % (sLOOP, sLOOP))
            a("s_cmp_eq_u32 s%d, 8" % sLOOP)
            a("s_cbranch_scc1 O_LAST")
            a("s_waitcnt lgkmcnt(0)")
            barrier()
            next_slot()
            set_w_addr()
            a("v_add_u32 v%d, 0x1000, v%d" % (vOB, vOB))
            o_reads(XO, 0)
            o_mfmas(YO)
            a("s_branch O_LOOP")
            a.label("O_LAST")
            a("s_waitcnt lgkmcnt(0)")
            o_mfmas(YO)
            a("s_nop 7"); a("s_nop 7")
            self.stamp_compute()
            a("s_mul_i32 s%d, s%d, 14336" % (sT0, sWAVE))
            a("v_add_u32 v3, s%d, v%d" % (sT0, vLIN))
            for n in range(7):
                for half in range(2):
                    b0 = ACCO + 16 * n + 8 * half
                    for j in range(4):
                        a("v_cvt_pk_bf16_f32 v%d, v%d, v%d" % (b0 + j, b0 + 2 * j, b0 + 2 * j + 1))
                    idx = n * 2 + half
                    a("s_mov_b32 s%d, %d" % (sOFF, idx * 1024))
                    a("buffer_store_dwordx4 v[%d:%d], v3, s[%d:%d], s%d offen%s" % (b0, b0 + 3, S_WS, S_WS + 3, sOFF, o.storeflags))
        if o.diag:
            a("s_waitcnt vmcnt(0)")
            a("s_memrealtime s[%d:%d]" % (sSTA, sSTA + 1))
            a("s_waitcnt lgkmcnt(0)")
            a("v_writelane_b32 v15, s%d, 62" % sSTB)
            a("v_writelane_b32 v15, s%d, 63" % sSTA)
            self.diag_store(15, 0)
        if o.dbgstamp:
            a("s_waitcnt vmcnt(0)")
            a("s_memrealtime s[%d:%d]" % (sSTA, sSTA + 1))
            a("s_memtime s[72:73]")
            a("s_waitcnt lgkmcnt(0)")
            a("s_not_b32 s%d, s%d" % (sSTB, sSTB))
            a("s_sub_u32 s72, s72, s70")
            a("s_lshl_b32 s%d, s2, 2" % sT0)
            a("s_add_u32 s%d, s%d, s%d" % (sT0, sT0, sWAVE))
            a("s_lshl_b32 s%d, s%d, 4" % (sT0, sT0))
            a("s_add_u32 s%d, s%d, %d" % (sT0, sT0, WS_DIAG))
            a("s_add_u32 s64, s18, s%d" % sT0)
            a("s_addc_u32 s65, s19, 0")
            a("s_mov_b32 s66, 16\ns_mov_b32 s67, 0x00020000")
            a("v_mov_b32 v4, s%d" % sSTB)
            a("v_mov_b32 v5, s%d" % sSTA)
            a("v_mov_b32 v6, s72")
            a("v_mov_b32 v7, 0")
            a("v_lshlrev_b32 v3, 4, v0")
            a("buffer_store_dwordx4 v[4:7], v3, s[64:67], 0 offen")
            a("s_waitcnt vmcnt(0)")
        a.label("K1_END")
        a("s_endpgm")

    def gen(self):
        self.prologue()
        self.compute()
        self.loader()
        return self.a.text()

def gen_k2(opt):
    a = Asm()
    kernel_begin(a, "k2_kernel")
    a("s_cmp_ge_u32 s2, 224")
    a("s_cbranch_scc1 K2_END")
    a("s_load_dwordx2 s[4:5], s[0:1], 40")
    a("s_load_dwordx2 s[6:7], s[0:1], 56")
    a("v_lshrrev_b32 v1, 6, v0")
    a("v_and_b32 v0, 63, v0")
    a("v_readfirstlane_b32 s3, v1")
    a("s_lshl_b32 s8, s2, 2")
    a("s_add_u32 s8, s8, s3")
    a("s_mul_i32 s9, s8, 9363")
    a("s_lshr_b32 s9, s9, 19")
    a("s_mul_i32 s10, s9, 56")
    a("s_sub_u32 s10, s8, s10")
    a("s_mul_i32 s11, s9, %d" % (16 * 57344))
    a("s_lshl_b32 s12, s10, 10")
    a("s_add_u32 s11, s11, s12")
    a("s_waitcnt lgkmcnt(0)")
    a("s_add_u32 s16, s6, s11")
    a("s_addc_u32 s17, s7, 0")
    a("s_mov_b32 s18, %d" % (16 * 57344))
    a("s_mov_b32 s19, 0x00020000")
    a("v_lshlrev_b32 v2, 4, v0")
    a("s_mov_b32 s20, 0")
    for h in range(16):
        a("buffer_load_dwordx4 v[%d:%d], v2, s[16:19], s20 offen" % (16 + 4 * h, 19 + 4 * h))
        if h < 15: a("s_add_u32 s20, s20, 57344")
    a("s_lshr_b32 s21, s10, 1")
    a("s_and_b32 s22, s10, 1")
    a("s_mul_i32 s23, s21, 9363")
    a("s_lshr_b32 s23, s23, 16")
    a("s_mul_i32 s24, s23, 7")
    a("s_sub_u32 s24, s21, s24")
    a("s_and_b32 s25, s23, 1")
    a("s_lshl_b32 s25, s25, 5")
    a("s_lshl_b32 s26, s9, 6")
    a("s_add_u32 s25, s25, s26")
    a("s_lshr_b32 s26, s23, 1")
    a("s_mul_i32 s26, s26, 224")
    a("s_lshl_b32 s27, s24, 5")
    a("s_add_u32 s26, s26, s27")
    a("s_lshl_b32 s27, s22, 4")
    a("s_add_u32 s26, s26, s27")
    a("s_mul_i32 s25, s25, 896")
    a("s_lshl_b32 s26, s26, 1")
    a("s_add_u32 s25, s25, s26")
    a("v_and_b32 v3, 31, v0")
    a("v_mul_u32_u24 v3, 896, v3")
    a("v_lshrrev_b32 v4, 5, v0")
    a("v_lshl_add_u32 v3, v4, 4, v3")
    a("v_add_u32 v3, s25, v3")
    a("s_mov_b32 s28, s4\ns_mov_b32 s29, s5\ns_mov_b32 s30, %d\ns_mov_b32 s31, 0x00020000" % (1024 * 896))
    for j in range(8): a("v_mov_b32 v%d, 0" % (4 + j))
    for h in range(16):
        a("s_waitcnt vmcnt(%d)" % (15 - h))
        for j in range(4):
            r = 16 + 4 * h + j
            a("v_lshlrev_b32 v12, 16, v%d" % r)
            a("v_and_b32 v13, 0xffff0000, v%d" % r)
            a("v_add_f32 v%d, v%d, v12" % (4 + 2 * j, 4 + 2 * j))
            a("v_add_f32 v%d, v%d, v13" % (5 + 2 * j, 5 + 2 * j))
    for j in range(4):
        a("v_cvt_pk_bf16_f32 v%d, v%d, v%d" % (12 + j, 4 + 2 * j, 5 + 2 * j))
    a("s_nop 1")
    a("v_permlane32_swap_b32 v12, v14")
    a("v_permlane32_swap_b32 v13, v15")
    a("buffer_store_dwordx4 v[12:15], v3, s[28:31], 0 offen")
    if opt.dbgstamp and not opt.spin:
        a("s_cmp_lg_u32 s2, 0")
        a("s_cbranch_scc1 K2_END")
        a("s_load_dwordx2 s[32:33], s[0:1], 48")
        a("s_add_u32 s36, s6, %d" % WS_DIAG)
        a("s_addc_u32 s37, s7, 0")
        a("s_mov_b32 s38, 16384\ns_mov_b32 s39, 0x00020000")
        a("v_lshl_add_u32 v2, s3, 6, v0")
        for k in range(4):
            a("v_lshlrev_b32 v3, 4, v2")
            a("buffer_load_dwordx4 v[4:7], v3, s[36:39], 0 offen offset:0")
            a("s_waitcnt vmcnt(0) lgkmcnt(0)")
            a("s_mov_b32 s34, 256\ns_mov_b32 s35, 0x00020000")
            a("v_mov_b32 v8, 0")
            a("buffer_atomic_umax v4, v8, s[32:35], 0 offen")
            a("buffer_atomic_umax v5, v8, s[32:35], 0 offen offset:4")
            a("buffer_atomic_umax v6, v8, s[32:35], 0 offen offset:8")
            a("s_waitcnt vmcnt(0)")
            a("v_add_u32 v2, 256, v2")
    if opt.spin2:
        i, j, f = [int(x) for x in opt.spin2.split(",")]
        a("s_cmp_lg_u32 s2, 0")
        a("s_cbranch_scc1 K2_END")
        a("s_add_u32 s36, s6, %d" % (WS_DIAG + (opt.spinwg * 8 + 4) * 256))
        a("s_addc_u32 s37, s7, 0")
        a("s_load_dword s32, s[36:37], %d" % (i * 4))
        a("s_load_dword s33, s[36:37], %d" % (j * 4))
        a("s_memrealtime s[34:35]")
        a("s_waitcnt lgkmcnt(0)")
        a("s_sub_u32 s33, s33, s32")
        a("s_mul_i32 s33, s33, %d" % f)
        a("s_min_u32 s33, s33, 100000")
        a.label("K2_SPIN")
        a("s_memrealtime s[38:39]")
        a("s_waitcnt lgkmcnt(0)")
        a("s_sub_u32 s38, s38, s34")
        a("s_cmp_lt_u32 s38, s33")
        a("s_cbranch_scc1 K2_SPIN")
    if opt.spin:
        a("s_cmp_lg_u32 s2, 0")
        a("s_cbranch_scc1 K2_END")
        a("s_add_u32 s36, s6, %d" % (WS_DIAG + opt.spinwg * 64))
        a("s_addc_u32 s37, s7, 0")
        a("s_load_dwordx2 s[32:33], s[36:37], 0")
        a("s_memrealtime s[34:35]")
        a("s_waitcnt lgkmcnt(0)")
        a("s_not_b32 s32, s32")
        a("s_sub_u32 s33, s33, s32")
        a("s_mul_i32 s33, s33, %d" % opt.spin)
        a("s_min_u32 s33, s33, 100000")
        a.label("K2_SPIN")
        a("s_memrealtime s[38:39]")
        a("s_waitcnt lgkmcnt(0)")
        a("s_sub_u32 s38, s38, s34")
        a("s_cmp_lt_u32 s38, s33")
        a("s_cbranch_scc1 K2_SPIN")
    a.label("K2_END")
    a("s_endpgm")
    return a.text()

def build(opt):
    k1 = K1(opt).gen()
    k2 = gen_k2(opt)
    s = HEADER
    s += "; @launch kernel=k1_kernel grid=(256,1,1) block=(512,1,1) lds=%d\n" % LDS_TOTAL
    if not opt.nok2:
        s += "; @launch kernel=k2_kernel grid=(224,1,1) block=(256,1,1) lds=0\n"
    s += '.amdgcn_target "amdgcn-amd-amdhsa--gfx950"\n.text\n'
    s += k1
    if not opt.nok2: s += k2
    s += '.section .rodata,"a"\n.p2align 6\n' + kernel_desc("k1_kernel", 256, 96)
    if not opt.nok2:
        s += '.p2align 6\n' + kernel_desc("k2_kernel", 80, 48)
    return s

if __name__ == "__main__":
    ap = argparse.ArgumentParser()
    ap.add_argument("-o", default="k1.s")
    ap.add_argument("--diag", action="store_true")
    ap.add_argument("--nocompute", action="store_true")
    ap.add_argument("--fakemfma", action="store_true")
    ap.add_argument("--nok2", action="store_true")
    ap.add_argument("--dbgstamp", action="store_true")
    ap.add_argument("--storeflags", default="")
    ap.add_argument("--pf", action="store_true")
    ap.add_argument("--pfstride", type=int, default=128)
    ap.add_argument("--pfflags", default="")
    ap.add_argument("--pf0", type=int, default=2)
    ap.add_argument("--spin2", default="")
    ap.add_argument("--rt", action="store_true")
    ap.add_argument("--spin", type=int, default=0)
    ap.add_argument("--spinwg", type=int, default=0)
    ap.add_argument("--nt", default="")
    ap.add_argument("--pfn", type=int, default=20)
    ap.add_argument("--pfmode", type=int, default=0)
    ap.add_argument("--pouter", action="store_true")
    ap.add_argument("--pfper", type=int, default=1)
    opt = ap.parse_args()
    open(opt.o, "w").write(build(opt))
```

```python
import sys, argparse
from asmlib import *

LDS_X = 0
LDS_Q = 0
LDS_P = [16384, 0]
LDS_O = 24576
LDS_MAX = 57344
LDS_SUM = 59392
RING = 65536
SLOT = 32768
LDS_TOTAL = 163840
WS_PART = 0
WS_DIAG = 16 << 20

S_X, S_K, S_V, S_WQ, S_WO, S_WS = 20, 24, 28, 32, 36, 40
sWAVE = 3
sHQ, sB, sRH, sHKV = 44, 45, 46, 47
sC1 = 48
sSLOT = 49
sT0, sT1, sT2, sT3 = 50, 51, 52, 53
sOFF = 54
sLOOP = 55
sGRP = 56
sSTA, sSTB = 58, 60

def srd(a, s, ptr, off_sgpr, nbytes):
    if off_sgpr is None:
        a("s_mov_b32 s%d, s%d" % (s, ptr))
        a("s_mov_b32 s%d, s%d" % (s + 1, ptr + 1))
    else:
        a("s_add_u32 s%d, s%d, s%d" % (s, ptr, off_sgpr))
        a("s_addc_u32 s%d, s%d, 0" % (s + 1, ptr + 1))
    a("s_mov_b32 s%d, 0x%x" % (s + 2, nbytes))
    a("s_mov_b32 s%d, 0x00020000" % (s + 3))

class K1:
    def __init__(self, opt):
        self.o = opt
        self.a = Asm()
        self.nstamp_l = 0
        self.nstamp_c = 0

    def stamp_loader(self):
        if not self.o.diag: return
        a = self.a
        a("%s s[%d:%d]" % ("s_memrealtime" if self.o.rt else "s_memtime", sSTA, sSTA + 1))
        a("s_waitcnt lgkmcnt(0)")
        a("v_writelane_b32 v60, s%d, %d" % (sSTA, self.nstamp_l))
        self.nstamp_l += 1

    def stamp_compute(self):
        if not self.o.diag: return
        a = self.a
        a("s_memtime s[%d:%d]" % (sSTA, sSTA + 1))
        a("s_waitcnt lgkmcnt(0)")
        a("v_writelane_b32 v15, s%d, %d" % (sSTA, self.nstamp_c))
        self.nstamp_c += 1

    def prologue(self):
        a = self.a
        kernel_begin(a, "k1_kernel")
        a("s_cmp_ge_u32 s2, 256")
        a("s_cbranch_scc1 K1_END")
        a("s_load_dwordx16 s[4:19], s[0:1], 0")
        if self.o.diag or self.o.dbgstamp:
            a("s_memrealtime s[%d:%d]" % (sSTB, sSTB + 1))
            a("s_memtime s[70:71]")
        a("v_lshrrev_b32 v1, 6, v0")
        a("v_and_b32 v0, 63, v0")
        a("v_readfirstlane_b32 s%d, v1" % sWAVE)
        a("s_and_b32 s%d, s2, 7" % sHKV)
        a("s_lshr_b32 s%d, s2, 5" % sB)
        a("s_bfe_u32 s%d, s2, 0x10004" % sT0)
        a("s_bfe_u32 s%d, s2, 0x10003" % sRH)
        a("s_lshl_b32 s%d, s%d, 1" % (sHQ, sHKV))
        a("s_add_u32 s%d, s%d, s%d" % (sHQ, sHQ, sT0))
        a("s_mov_b32 s%d, 0x3db8aa3b" % sC1)
        a("s_lshl_b32 s%d, s%d, 1" % (sGRP, sB))
        a("s_add_u32 s%d, s%d, s%d" % (sGRP, sGRP, sRH))
        a("s_mul_i32 s%d, s%d, 57344" % (sT0, sGRP))
        a("s_lshl_b32 s%d, s%d, 3" % (sT1, sB))
        a("s_add_u32 s%d, s%d, s%d" % (sT1, sT1, sHKV))
        a("s_lshl_b32 s%d, s%d, 18" % (sT1, sT1))
        a("s_lshl_b32 s%d, s%d, 9" % (sT2, sHQ))
        a("s_mul_i32 s%d, s%d, 229376" % (sT3, sHQ))
        a("s_waitcnt lgkmcnt(0)")
        srd(a, S_X, 4, sT0, 57344)
        srd(a, S_K, 6, sT1, 262144)
        srd(a, S_V, 8, sT1, 262144)
        srd(a, S_WQ, 10, sT2, 448 * 8192 - 15 * 512)
        srd(a, S_WO, 12, sT3, 229376)
        a("s_lshl_b32 s%d, s%d, 4" % (sT0, sGRP))
        a("s_add_u32 s%d, s%d, s%d" % (sT0, sT0, sHQ))
        a("s_mul_i32 s%d, s%d, 57344" % (sT0, sT0))
        srd(a, S_WS, 18, sT0, 57344)
        a("s_cmp_ge_u32 s%d, 4" % sWAVE)
        a("s_cbranch_scc1 K1_LOADER")

    def loader(self):
        a = self.a
        o = self.o
        a.label("K1_LOADER")
        a("s_sub_u32 s%d, s%d, 4" % (sWAVE, sWAVE))
        vL = 0
        vX = 16
        vWO = 32
        vWQ, vK0, vK1, vV = 40, 41, 42, 43
        a("v_lshrrev_b32 v1, 3, v0")
        a("v_and_b32 v2, 7, v0")
        a("v_bfe_u32 v3, v0, 4, 1")
        a("v_lshlrev_b32 v3, 2, v3")
        a("v_xor_b32 v3, v2, v3")
        a("v_lshlrev_b32 v3, 4, v3")
        a("s_lshl_b32 s%d, s%d, 7" % (sT0, sWAVE))
        a("v_add_u32 v3, s%d, v3" % sT0)
        a("v_lshl_add_u32 v%d, v1, 13, v3" % vWQ)
        a("v_lshl_add_u32 v%d, v1, 9, v3" % vV)
        a("v_lshrrev_b32 v4, 4, v0")
        a("v_xor_b32 v5, v2, v4")
        a("v_lshlrev_b32 v5, 4, v5")
        a("s_lshl_b32 s%d, s%d, 16" % (sT0, sWAVE))
        a("v_add_u32 v5, s%d, v5" % sT0)
        a("v_lshl_add_u32 v%d, v1, 9, v5" % vK0)
        a("v_xor_b32 v%d, 64, v%d" % (vK1, vK0))
        a("s_mul_i32 s%d, s%d, 896" % (sT0, sWAVE))
        a("v_add_u32 v6, s%d, v0" % sT0)
        for j in range(14):
            a("v_add_u32 v7, %d, v6" % (64 * j))
            a("v_mul_u32_u24 v8, 4682, v7")
            a("v_lshrrev_b32 v8, 19, v8")
            a("v_and_b32 v8, 7, v8")
            a("v_xor_b32 v8, v7, v8")
            a("v_lshlrev_b32 v%d, 4, v8" % (vX + j))
        a("s_mul_i32 s%d, s%d, 448" % (sT0, sWAVE))
        a("v_add_u32 v6, s%d, v0" % sT0)
        for j in range(7):
            a("v_add_u32 v7, %d, v6" % (64 * j))
            a("v_mul_u32_u24 v8, 9363, v7")
            a("v_lshrrev_b32 v8, 19, v8")
            a("v_bfe_u32 v8, v8, 1, 1")
            a("v_lshlrev_b32 v8, 2, v8")
            a("v_xor_b32 v8, v7, v8")
            a("v_lshlrev_b32 v%d, 4, v8" % (vWO + j))
        sL8 = 62
        sL7 = 63
        sM = 64
        a("s_lshl_b32 s%d, s%d, 13" % (sL8, sWAVE))
        a("s_mul_i32 s%d, s%d, 7168" % (sL7, sWAVE))
        a("s_mul_i32 s%d, s%d, 14336" % (sT0, sWAVE))
        self.stamp_loader()

        def dma(srdreg, vreg, soff):
            fl = ""
            if srdreg in (S_K, S_V) and "kv" in o.nt: fl = " nt"
            if srdreg in (S_WQ, S_WO) and "w" in o.nt: fl = " nt"
            if srdreg == S_X and "x" in o.nt: fl = " nt"
            a("buffer_load_dwordx4 v%d, s[%d:%d], %s offen%s lds" % (vreg, srdreg, srdreg + 3, soff, fl))

        a("s_mov_b32 m0, s%d" % sT0)
        for j in range(14):
            if j: a("s_addk_i32 m0, 0x400")
            a("s_nop 0")
            dma(S_X, vX + j, "0")

        def issue(t):
            slot = RING + (t % 3) * SLOT
            if t <= 6:
                a("s_add_u32 m0, s%d, %d" % (sL8, slot))
                a("s_mov_b32 s%d, %d" % (sOFF, t * 524288))
                for i in range(8):
                    if i:
                        a("s_addk_i32 m0, 0x400")
                        a("s_add_u32 s%d, s%d, 0x10000" % (sOFF, sOFF))
                    dma(S_WQ, vWQ, "s%d" % sOFF)
                return 8
            if t <= 14:
                d, p = (t - 7) >> 1, (t - 7) & 1
                if o.pouter: p, d = (t - 7) >> 2, (t - 7) & 3
                a("s_add_u32 m0, s%d, %d" % (sL8, slot))
                a("s_mov_b32 s%d, %d" % (sOFF, p * 32768 + d * 128))
                for i in range(8):
                    if i:
                        a("s_addk_i32 m0, 0x400")
                        a("s_addk_i32 s%d, 0x1000" % sOFF)
                    dma(S_K, vK1 if i & 1 else vK0, "s%d" % sOFF)
                return 8
            if t <= 22:
                c, wp = (t - 15) >> 1, (t - 15) & 1
                a("s_add_u32 m0, s%d, %d" % (sL8, slot))
                for i in range(8):
                    key = 128 * (2 * wp + (i >> 2)) + 32 * c + 8 * (i & 3)
                    if i: a("s_addk_i32 m0, 0x400")
                    a("s_mov_b32 s%d, %d" % (sOFF, key * 512))
                    dma(S_V, vV, "s%d" % sOFF)
                return 8
            tt = t - 23
            a("s_add_u32 m0, s%d, %d" % (sL7, slot))
            a("s_mov_b32 s%d, %d" % (sOFF, tt * 28672))
            for j in range(7):
                if j: a("s_addk_i32 m0, 0x400")
                a("s_nop 0")
                dma(S_WO, vWO + j, "s%d" % sOFF)
            return 7

        cnt = {}
        cnt[0] = issue(0)
        cnt[1] = issue(1)
        a("s_waitcnt vmcnt(%d)" % cnt[1])
        a("s_barrier")
        self.stamp_loader()
        extra_after = {6: 1, 14: 2, 22: 1}
        for t in range(0, 30):
            n = 0
            if t + 2 <= 30:
                n = issue(t + 2)
            for _ in range(extra_after.get(t - 1, 0)):
                a("s_barrier")
            a("s_waitcnt vmcnt(%d)" % n)
            a("s_barrier")
            self.stamp_loader()
        if o.diag:
            a("s_memrealtime s[%d:%d]" % (sSTA, sSTA + 1))
            a("s_waitcnt lgkmcnt(0)")
            a("v_writelane_b32 v60, s%d, 62" % sSTB)
            a("v_writelane_b32 v60, s%d, 63" % sSTA)
            self.diag_store(60, 4)
        a("s_endpgm")

    def diag_store(self, vreg, waveadd):
        a = self.a
        a("s_lshl_b32 s%d, s2, 3" % sT0)
        a("s_add_u32 s%d, s%d, s%d" % (sT0, sT0, sWAVE))
        a("s_add_u32 s%d, s%d, %d" % (sT0, sT0, waveadd))
        a("s_lshl_b32 s%d, s%d, 8" % (sT0, sT0))
        a("s_add_u32 s%d, s%d, %d" % (sT0, sT0, WS_DIAG))
        a("s_add_u32 s64, s18, s%d" % sT0)
        a("s_addc_u32 s65, s19, 0")
        a("s_mov_b32 s66, 256")
        a("s_mov_b32 s67, 0x00020000")
        a("v_lshlrev_b32 v61, 2, v0")
        a("buffer_store_dword v%d, v61, s[64:67], 0 offen" % vreg)
        a("s_waitcnt vmcnt(0)")

    def compute(self):
        a = self.a
        o = self.o
        vLIN = 2
        vXA = [4, 5, 6, 7]
        vT0, vT1 = 8, 9
        vKA = [8, 9, 10, 11]
        vPAT0, vPAT1 = 12, 13
        vTMP = 3
        vTMP2 = 14
        X = dict(A=[16, 20], B=[24, 28])
        Y = dict(A=[32, 36], B=[40, 44])
        ACCQ = 64
        ACCS = 128
        vM = [48, 49]
        vSUM = [50, 51]
        vSC = list(range(52, 64))

        a("v_lshlrev_b32 v%d, 4, v0" % vLIN)
        a("v_and_b32 v3, 31, v0")
        a("v_lshrrev_b32 v14, 1, v3")
        a("v_mul_u32_u24 v4, 1792, v14")
        a("v_and_b32 v5, 1, v3")
        a("v_mul_u32_u24 v5, 896, v5")
        a("v_add_u32 v4, v4, v5")
        a("v_and_b32 v14, 7, v14")
        a("v_lshrrev_b32 v5, 5, v0")
        a("v_xor_b32 v14, v14, v5")
        a("v_lshl_add_u32 v%d, v14, 4, v4" % vXA[0])
        for j in (1, 2, 3):
            a("v_xor_b32 v%d, %d, v%d" % (vXA[j], j << 5, vXA[0]))
        def trpat(dst0, dst1, hshift):
            a("v_bfe_u32 v3, v0, 2, 2")
            a("v_lshlrev_b32 v3, 7, v3")
            a("v_lshrrev_b32 v14, 5, v0")
            a("v_lshlrev_b32 v14, %d, v14" % hshift)
            a("v_add_u32 v3, v3, v14")
            a("v_bfe_u32 v14, v0, 4, 1")
            a("v_lshlrev_b32 v14, 5, v14")
            a("v_add_u32 v3, v3, v14")
            a("v_and_b32 v14, 3, v0")
            a("v_lshlrev_b32 v14, 3, v14")
            a("v_add_u32 v3, v3, v14")
            a("v_bfe_u32 v14, v0, 3, 1")
            a("v_lshlrev_b32 v14, 6, v14")
            a("v_add_u32 v3, v3, v14")
            a("s_lshl_b32 s%d, s%d, 13" % (sT0, sWAVE))
            a("v_add_u32 v%d, s%d, v3" % (dst0, sT0))
            a("v_xor_b32 v%d, 64, v%d" % (dst1, dst0))
        trpat(vPAT0, vPAT1, 10)
        for r in range(ACCS, ACCS + 128): a("v_mov_b32 v%d, 0" % r)
        for r in range(ACCQ, ACCQ + 64): a("v_mov_b32 v%d, 0" % r)
        a("s_mov_b32 s%d, %d" % (sSLOT, RING))

        def next_slot():
            a("s_add_u32 s%d, s%d, %d" % (sSLOT, sSLOT, SLOT))
            a("s_cmp_eq_u32 s%d, %d" % (sSLOT, LDS_TOTAL))
            a("s_cselect_b32 s%d, %d, s%d" % (sSLOT, RING, sSLOT))

        def mfma(acc, A, B, c0=False):
            a("v_mfma_f32_32x32x16_bf16 v[%d:%d], v[%d:%d], v[%d:%d], %s" % (
                acc, acc + 15, A, A + 3, B, B + 3, "0" if c0 else "v[%d:%d]" % (acc, acc + 15)))

        def barrier():
            a("s_barrier")

        nocmp = o.nocompute
        vPFK, vPFV, vPFW, vPFO, vPFD = 55, 56, 57, 58, 59
        if o.pf:
            st = o.pfstride
            a("s_bfe_u32 s%d, s2, 0x20003" % sT0)
            a("s_lshl_b32 s%d, s%d, 16" % (sT1, sT0))
            a("v_lshlrev_b32 v%d, 9, v0" % vPFK)
            a("v_add_u32 v%d, s%d, v%d" % (vPFK, sT1, vPFK))
            a("v_lshrrev_b32 v3, 5, v0")
            a("v_and_b32 v14, 31, v0")
            a("v_lshl_add_u32 v3, v3, 7, v14")
            a("v_lshlrev_b32 v3, 9, v3")
            a("s_lshl_b32 s%d, s%d, 7" % (sT1, sT0))
            a("v_add_u32 v%d, s%d, v3" % (vPFV, sT1))
            a("v_lshlrev_b32 v3, 4, v0")
            a("v_add_u32 v3, s%d, v3" % sGRP)
            a("v_lshrrev_b32 v14, 2, v3")
            a("v_lshlrev_b32 v14, 13, v14")
            a("v_and_b32 v%d, 3, v3" % vPFW)
            a("v_lshl_add_u32 v%d, v%d, 7, v14" % (vPFW, vPFW))
            a("v_lshlrev_b32 v%d, 7, v3" % vPFO)
            if o.pfmode == 1:
                a("s_lshl_b32 s%d, s%d, 13" % (sT1, sT0))
                a("v_lshlrev_b32 v%d, 7, v0" % vPFK)
                a("v_add_u32 v%d, s%d, v%d" % (vPFK, sT1, vPFK))
                a("s_lshr_b32 s%d, s%d, 1" % (sT1, sT0))
                a("s_lshl_b32 s%d, s%d, 16" % (sT1, sT1))
                a("s_and_b32 s%d, s%d, 1" % (sT2, sT0))
                a("s_lshl_b32 s%d, s%d, 13" % (sT2, sT2))
                a("s_add_u32 s%d, s%d, s%d" % (sT1, sT1, sT2))
                a("v_lshlrev_b32 v%d, 7, v0" % vPFV)
                a("v_add_u32 v%d, s%d, v%d" % (vPFV, sT1, vPFV))
                a("s_mul_i32 s%d, s%d, 14336" % (sT1, sGRP))
                a("v_lshlrev_b32 v%d, 7, v0" % vPFO)
                a("v_add_u32 v%d, s%d, v%d" % (vPFO, sT1, vPFO))
        def pf(kind, idx):
            if not o.pf: return
            lab = a.newlabel("PF")
            a("s_cmp_lg_u32 s%d, %d" % (sWAVE, idx & 3))
            a("s_cbranch_scc1 %s" % lab)
            reps = [0] if o.pfstride == 128 else [0, 64]
            for extra in reps:
                if kind == "k":
                    d, p = idx >> 1, idx & 1
                    if o.pfmode == 1:
                        p, m = idx >> 2, idx & 3
                        a("s_mov_b32 s%d, %d" % (sOFF, p * 32768 + m * 65536 + extra))
                    else:
                        a("s_mov_b32 s%d, %d" % (sOFF, p * 32768 + d * 128 + extra))
                    a("buffer_load_dword v%d, v%d, s[%d:%d], s%d offen%s" % (vPFD, vPFK, S_K, S_K + 3, sOFF, o.pfflags))
                elif kind == "v":
                    c, wp = idx >> 1, idx & 1
                    a("s_mov_b32 s%d, %d" % (sOFF, (256 * wp + 32 * c) * 512 + extra))
                    a("buffer_load_dword v%d, v%d, s[%d:%d], s%d offen%s" % (vPFD, vPFV, S_V, S_V + 3, sOFF, o.pfflags))
                elif kind == "wq":
                    a("s_mov_b32 s%d, %d" % (sOFF, idx * 256 * 8192 + extra))
                    a("buffer_load_dword v%d, v%d, s[%d:%d], s%d offen%s" % (vPFD, vPFW, S_WQ, S_WQ + 3, sOFF, o.pfflags))
                elif kind == "wo":
                    if o.pfmode == 1:
                        a("s_mov_b32 s%d, %d" % (sOFF, idx * 8192 + extra))
                    else:
                        a("s_mov_b32 s%d, %d" % (sOFF, idx * 64 * 16 * 128 + extra))
                    a("buffer_load_dword v%d, v%d, s[%d:%d], s%d offen%s" % (vPFD, vPFO, S_WO, S_WO + 3, sOFF, o.pfflags))
            a.label(lab)
        sched = {}
        if o.pf:
            order = [("wq", 0), ("wq", 1)] + [("k", i) for i in range(8)] + [("v", i) for i in range(8)] + [("wo", 0), ("wo", 1)]
            order = order[:o.pfn]
            n0 = o.pf0
            sched[-2] = order[:n0]
            rest = order[n0:]
            t = -1
            k = 0
            while k < len(rest):
                sched.setdefault(t, []).extend(rest[k:k + o.pfper])
                k += o.pfper
                t += 1
        self.pf = pf
        self.sched = sched
        for kind, idx in sched.get(-2, []): pf(kind, idx)

        def q_reads(S, ks, xoff):
            for mb in range(2):
                v = vT0 if mb == 0 else vT1
                a("ds_read_b64_tr_b16 v[%d:%d], v%d offset:%d" % (S['A'][mb], S['A'][mb] + 1, v, ks * 2048))
                a("ds_read_b64_tr_b16 v[%d:%d], v%d offset:%d" % (S['A'][mb] + 2, S['A'][mb] + 3, v, ks * 2048 + 512))
            for nb in range(2):
                a("ds_read_b128 v[%d:%d], v%d offset:%d" % (S['B'][nb], S['B'][nb] + 3, vXA[ks], nb * 28672 + xoff))
        def q_mfmas(S):
            for mb in range(2):
                for nb in range(2):
                    mfma(ACCQ + (mb * 2 + nb) * 16, S['A'][mb], S['B'][nb])
        def set_tr_addr():
            a("v_add_u32 v%d, s%d, v%d" % (vT0, sSLOT, vPAT0))
            a("v_add_u32 v%d, s%d, v%d" % (vT1, sSLOT, vPAT1))

        self.stamp_compute()
        barrier()
        self.stamp_compute()
        if nocmp:
            for t in range(30):
                for kind, idx in sched.get(t - 1, []): pf(kind, idx)
                for _ in range({7: 1, 15: 2, 23: 1}.get(t, 0)): barrier()
                if o.fakemfma:
                    for i in range(16): mfma(ACCQ + (i & 3) * 16, 16, 24)
                barrier()
        else:
            set_tr_addr()
            q_reads(X, 0, 0)
            a("s_mov_b32 s%d, 0" % sLOOP)
            a.label("Q_LOOP")
            q_reads(Y, 1, 0); a("s_waitcnt lgkmcnt(6)"); q_mfmas(X)
            q_reads(X, 2, 0); a("s_waitcnt lgkmcnt(6)"); q_mfmas(Y)
            q_reads(Y, 3, 0); a("s_waitcnt lgkmcnt(6)"); q_mfmas(X)
            a("s_waitcnt lgkmcnt(0)")
            barrier()
            next_slot()
            a("s_add_u32 s%d, s%d, 1" % (sLOOP, sLOOP))
            a("s_cmp_eq_u32 s%d, 7" % sLOOP)
            a("s_cbranch_scc1 Q_LAST")
            set_tr_addr()
            for j in range(4): a("v_add_u32 v%d, 128, v%d" % (vXA[j], vXA[j]))
            q_reads(X, 0, 0)
            q_mfmas(Y)
            a("s_branch Q_LOOP")
            a.label("Q_LAST")
            q_mfmas(Y)
            a("s_nop 7"); a("s_nop 7")
            self.stamp_compute()
            a("s_lshl_b32 s%d, s%d, 13" % (sT0, sWAVE))
            a("v_add_u32 v%d, s%d, v%d" % (vTMP, sT0, vLIN))
            for mb in range(2):
                for nb in range(2):
                    acc = ACCQ + (mb * 2 + nb) * 16
                    for half in range(2):
                        b0 = acc + 8 * half
                        for j in range(4):
                            a("v_cvt_pk_bf16_f32 v%d, v%d, v%d" % (b0 + j, b0 + 2 * j, b0 + 2 * j + 1))
                        a("s_nop 1")
                        a("v_permlane32_swap_b32 v%d, v%d" % (b0, b0 + 2))
                        a("v_permlane32_swap_b32 v%d, v%d" % (b0 + 1, b0 + 3))
                        a("ds_write_b128 v%d, v[%d:%d] offset:%d" % (vTMP, b0, b0 + 3, LDS_Q + ((2 * mb + half) * 2 + nb) * 1024))
            a("s_waitcnt lgkmcnt(0)")
            for r in range(ACCQ, ACCQ + 64): a("v_mov_b32 v%d, 0" % r)
            barrier()
            self.stamp_compute()

            vQA = 12
            a("v_and_b32 v3, 31, v0")
            a("v_bfe_u32 v14, v0, 1, 3")
            a("v_lshrrev_b32 v13, 5, v0")
            a("v_xor_b32 v14, v14, v13")
            a("v_lshlrev_b32 v14, 4, v14")
            a("v_lshl_add_u32 v3, v3, 7, v14")
            a("s_lshl_b32 s%d, s%d, 13" % (sT0, sWAVE))
            a("v_add_u32 v13, s%d, v3" % sT0)
            a("v_mov_b32 v%d, v%d" % (vQA, vLIN))
            def set_k_addr():
                a("v_add_u32 v%d, s%d, v13" % (vKA[0], sSLOT))
                for j in (1, 2, 3):
                    a("v_xor_b32 v%d, %d, v%d" % (vKA[j], j << 5, vKA[0]))
            def s_reads(S, ks):
                for mb in range(2):
                    a("ds_read_b128 v[%d:%d], v%d offset:%d" % (S['A'][mb], S['A'][mb] + 3, vKA[ks], mb * 4096))
                for nb in range(2):
                    a("ds_read_b128 v[%d:%d], v%d offset:%d" % (S['B'][nb], S['B'][nb] + 3, vQA, LDS_Q + (ks * 2 + nb) * 1024))
            def s_mfmas(S, p):
                for mb in range(2):
                    for nb in range(2):
                        mfma(ACCS + ((2 * p + mb) * 2 + nb) * 16, S['A'][mb], S['B'][nb])
            set_k_addr()
            s_reads(X, 0)
            if not o.pouter:
                a("s_mov_b32 s%d, 0" % sLOOP)
                a.label("S_LOOP")
                for p in range(2):
                    s_reads(Y, 1); a("s_waitcnt lgkmcnt(4)"); s_mfmas(X, p)
                    s_reads(X, 2); a("s_waitcnt lgkmcnt(4)"); s_mfmas(Y, p)
                    s_reads(Y, 3); a("s_waitcnt lgkmcnt(4)"); s_mfmas(X, p)
                    a("s_waitcnt lgkmcnt(0)")
                    barrier()
                    next_slot()
                    if p == 1:
                        a("s_add_u32 s%d, s%d, 1" % (sLOOP, sLOOP))
                        a("s_cmp_eq_u32 s%d, 4" % sLOOP)
                        a("s_cbranch_scc1 S_LAST")
                        a("v_add_u32 v%d, 0x2000, v%d" % (vQA, vQA))
                    set_k_addr()
                    s_reads(X, 0)
                    s_mfmas(Y, p)
                a("s_branch S_LOOP")
            else:
                for p in range(2):
                    a("s_mov_b32 s%d, 0" % sLOOP)
                    a.label("S_LOOP%d" % p)
                    s_reads(Y, 1); a("s_waitcnt lgkmcnt(4)"); s_mfmas(X, p)
                    s_reads(X, 2); a("s_waitcnt lgkmcnt(4)"); s_mfmas(Y, p)
                    s_reads(Y, 3); a("s_waitcnt lgkmcnt(4)"); s_mfmas(X, p)
                    a("s_waitcnt lgkmcnt(0)")
                    barrier()
                    next_slot()
                    a("s_add_u32 s%d, s%d, 1" % (sLOOP, sLOOP))
                    a("s_cmp_eq_u32 s%d, 4" % sLOOP)
                    a("s_cbranch_scc1 S_END%d" % p)
                    a("v_add_u32 v%d, 0x2000, v%d" % (vQA, vQA))
                    set_k_addr()
                    s_reads(X, 0)
                    s_mfmas(Y, p)
                    a("s_branch S_LOOP%d" % p)
                    a.label("S_END%d" % p)
                    if p == 0:
                        a("v_mov_b32 v%d, v%d" % (vQA, vLIN))
                        set_k_addr()
                        s_reads(X, 0)
                        s_mfmas(Y, 0)
            a.label("S_LAST")
            s_mfmas(Y, 1)
            a("s_nop 7"); a("s_nop 7")
            self.stamp_compute()
            for nb in range(2):
                regs = [ACCS + (mb * 2 + nb) * 16 + r for mb in range(4) for r in range(16)]
                d = vM[nb]
                a("v_max3_f32 v%d, v%d, v%d, v%d" % (d, regs[0], regs[1], regs[2]))
                i = 3
                while i + 1 < len(regs):
                    a("v_max3_f32 v%d, v%d, v%d, v%d" % (d, d, regs[i], regs[i + 1]))
                    i += 2
                if i < len(regs):
                    a("v_max_f32 v%d, v%d, v%d" % (d, d, regs[i]))
            vST = 3
            a("v_and_b32 v14, 31, v0")
            a("v_lshlrev_b32 v14, 5, v14")
            a("v_lshrrev_b32 v3, 5, v0")
            a("v_lshl_add_u32 v3, v3, 2, v14")
            a("s_lshl_b32 s%d, s%d, 3" % (sT0, sWAVE))
            a("v_add_u32 v%d, s%d, v3" % (vST, sT0))
            vSTR = 14
            for nb in range(2):
                a("ds_write_b32 v%d, v%d offset:%d" % (vST, vM[nb], LDS_MAX + nb * 1024))
            a("s_waitcnt lgkmcnt(0)")
            barrier()
            for nb in range(2):
                a("ds_read_b128 v[%d:%d], v%d offset:%d" % (16 + nb * 8, 19 + nb * 8, vSTR, LDS_MAX + nb * 1024))
                a("ds_read_b128 v[%d:%d], v%d offset:%d" % (20 + nb * 8, 23 + nb * 8, vSTR, LDS_MAX + nb * 1024 + 16))
            a("s_waitcnt lgkmcnt(0)")
            for nb in range(2):
                b = 16 + nb * 8
                a("v_max3_f32 v%d, v%d, v%d, v%d" % (vM[nb], b, b + 1, b + 2))
                a("v_max3_f32 v%d, v%d, v%d, v%d" % (vM[nb], vM[nb], b + 3, b + 4))
                a("v_max3_f32 v%d, v%d, v%d, v%d" % (vM[nb], vM[nb], b + 5, b + 6))
                a("v_max_f32 v%d, v%d, v%d" % (vM[nb], vM[nb], b + 7))
                a("v_mul_f32 v%d, s%d, v%d" % (vM[nb], sC1, vM[nb]))
                a("v_mov_b32 v%d, 0" % vSUM[nb])
            vPW = 12
            a("s_lshl_b32 s%d, s%d, 12" % (sT0, sWAVE))
            a("v_add_u32 v%d, s%d, v%d" % (vPW, sT0, vLIN))

            def softmax_chunk(c):
                for nb in range(2):
                    acc = ACCS + (c * 2 + nb) * 16
                    for r in range(16):
                        a("v_fma_f32 v%d, v%d, s%d, -v%d" % (acc + r, acc + r, sC1, vM[nb]))
                    for r in range(16):
                        a("v_exp_f32 v%d, v%d" % (acc + r, acc + r))
                    a("s_nop 0")
                    for r in range(16):
                        a("v_add_f32 v%d, v%d, v%d" % (vSUM[nb], vSUM[nb], acc + r))
                    for half in range(2):
                        b0 = acc + 8 * half
                        for j in range(4):
                            a("v_cvt_pk_bf16_f32 v%d, v%d, v%d" % (b0 + j, b0 + 2 * j, b0 + 2 * j + 1))
                        a("ds_write_b128 v%d, v[%d:%d] offset:%d" % (vPW, b0, b0 + 3, LDS_P[c & 1] + (half * 2 + nb) * 1024))
            softmax_chunk(0)
            a("s_waitcnt lgkmcnt(0)")
            barrier()
            self.stamp_compute()

            trpat(vPAT0, vPAT1, 9)
            a("s_lshl_b32 s%d, s%d, 12" % (sT0, sWAVE))
            a("v_add_u32 v52, s%d, v%d" % (sT0, vLIN))
            vPW = 52
            a("v_and_b32 v54, 31, v0")
            a("v_lshlrev_b32 v54, 5, v54")
            a("v_lshrrev_b32 v53, 5, v0")
            a("v_lshl_add_u32 v53, v53, 2, v54")
            a("s_lshl_b32 s%d, s%d, 3" % (sT0, sWAVE))
            a("v_add_u32 v53, s%d, v53" % sT0)
            vST, vSTR = 53, 54
            def pv_reads(S, c, wp, j):
                for mb in range(2):
                    v = vT0 if mb == 0 else vT1
                    a("ds_read_b64_tr_b16 v[%d:%d], v%d offset:%d" % (S['A'][mb], S['A'][mb] + 1, v, j * 2048))
                    a("ds_read_b64_tr_b16 v[%d:%d], v%d offset:%d" % (S['A'][mb] + 2, S['A'][mb] + 3, v, j * 2048 + 1024))
                for nb in range(2):
                    a("ds_read_b128 v[%d:%d], v%d offset:%d" % (S['B'][nb], S['B'][nb] + 3, vLIN, LDS_P[c & 1] + wp * 8192 + j * 2048 + nb * 1024))
            set_tr_addr()
            pv_reads(X, 0, 0, 0)
            for c in range(4):
                for wp in range(2):
                    pv_reads(Y, c, wp, 1); a("s_waitcnt lgkmcnt(6)"); q_mfmas(X)
                    pv_reads(X, c, wp, 2); a("s_waitcnt lgkmcnt(6)"); q_mfmas(Y)
                    pv_reads(Y, c, wp, 3); a("s_waitcnt lgkmcnt(6)"); q_mfmas(X)
                    if wp == 0 and c < 3:
                        softmax_chunk(c + 1)
                        if c == 2:
                            for nb in range(2):
                                a("ds_write_b32 v%d, v%d offset:%d" % (vST, vSUM[nb], LDS_SUM + nb * 1024))
                    a("s_waitcnt lgkmcnt(0)")
                    barrier()
                    next_slot()
                    if not (c == 3 and wp == 1):
                        set_tr_addr()
                        nc, nwp = (c, 1) if wp == 0 else (c + 1, 0)
                        pv_reads(X, nc, nwp, 0)
                    q_mfmas(Y)
            for nb in range(2):
                a("ds_read_b128 v[%d:%d], v%d offset:%d" % (16 + nb * 8, 19 + nb * 8, vSTR, LDS_SUM + nb * 1024))
                a("ds_read_b128 v[%d:%d], v%d offset:%d" % (20 + nb * 8, 23 + nb * 8, vSTR, LDS_SUM + nb * 1024 + 16))
            a("s_waitcnt lgkmcnt(0)")
            self.stamp_compute()
            for nb in range(2):
                b = 16 + nb * 8
                a("v_add_f32 v%d, v%d, v%d" % (b, b, b + 1))
                for k in range(2, 8):
                    a("v_add_f32 v%d, v%d, v%d" % (b, b, b + k))
                a("v_rcp_f32 v%d, v%d" % (vSUM[nb], b))
            a("s_nop 7"); a("s_nop 3")
            a("s_lshl_b32 s%d, s%d, 13" % (sT0, sWAVE))
            a("v_add_u32 v%d, s%d, v%d" % (vTMP, sT0, vLIN))
            for mb in range(2):
                for nb in range(2):
                    acc = ACCQ + (mb * 2 + nb) * 16
                    for r in range(16):
                        a("v_mul_f32 v%d, v%d, v%d" % (acc + r, acc + r, vSUM[nb]))
                    for half in range(2):
                        b0 = acc + 8 * half
                        for j in range(4):
                            a("v_cvt_pk_bf16_f32 v%d, v%d, v%d" % (b0 + j, b0 + 2 * j, b0 + 2 * j + 1))
                        a("ds_write_b128 v%d, v[%d:%d] offset:%d" % (vTMP, b0, b0 + 3, LDS_O + ((2 * mb + half) * 2 + nb) * 1024))
            ACCO = 128
            for r in range(ACCO, ACCO + 112): a("v_mov_b32 v%d, 0" % r)
            a("s_waitcnt lgkmcnt(0)")
            barrier()
            self.stamp_compute()

            XO = dict(A=[64 + 4 * i for i in range(7)], B=92)
            YO = dict(A=[96 + 4 * i for i in range(7)], B=124)
            vW = [12, 13]
            vWA = [8, 9]
            vOB = 10
            a("v_bfe_u32 v3, v0, 2, 2")
            a("v_lshrrev_b32 v14, 5, v0")
            a("v_lshl_add_u32 v3, v14, 2, v3")
            a("v_mul_u32_u24 v3, 896, v3")
            a("v_bfe_u32 v14, v0, 4, 1")
            a("v_lshl_add_u32 v3, v14, 5, v3")
            a("v_and_b32 v14, 3, v0")
            a("v_lshl_add_u32 v3, v14, 3, v3")
            a("s_lshr_b32 s%d, s%d, 1" % (sT0, sWAVE))
            a("s_mul_i32 s%d, s%d, 448" % (sT1, sT0))
            a("v_add_u32 v3, s%d, v3" % sT1)
            a("v_bfe_u32 v14, v0, 3, 1")
            a("v_lshlrev_b32 v14, 6, v14")
            a("v_add_u32 v%d, v3, v14" % vW[0])
            a("v_sub_u32 v%d, v3, v14" % vW[1])
            a("s_cmp_eq_u32 s%d, 0" % sT0)
            a("s_cbranch_scc1 O_NOSWAP")
            a("v_mov_b32 v3, v%d" % vW[0])
            a("v_mov_b32 v%d, v%d" % (vW[0], vW[1]))
            a("v_mov_b32 v%d, v3" % vW[1])
            a.label("O_NOSWAP")
            a("s_and_b32 s%d, s%d, 1" % (sT0, sWAVE))
            a("s_lshl_b32 s%d, s%d, 10" % (sT0, sT0))
            a("s_add_u32 s%d, s%d, %d" % (sT0, sT0, LDS_O))
            a("v_add_u32 v%d, s%d, v%d" % (vOB, sT0, vLIN))
            def set_w_addr():
                a("v_add_u32 v%d, s%d, v%d" % (vWA[0], sSLOT, vW[0]))
                a("v_add_u32 v%d, s%d, v%d" % (vWA[1], sSLOT, vW[1]))
            def o_reads(S, ks):
                for n in range(7):
                    v = vWA[n & 1]
                    off = 16 * ks * 896 + n * 64
                    a("ds_read_b64_tr_b16 v[%d:%d], v%d offset:%d" % (S['A'][n], S['A'][n] + 1, v, off))
                    a("ds_read_b64_tr_b16 v[%d:%d], v%d offset:%d" % (S['A'][n] + 2, S['A'][n] + 3, v, off + 8 * 896))
                a("ds_read_b128 v[%d:%d], v%d offset:%d" % (S['B'], S['B'] + 3, vOB, ks * 2048))
            def o_mfmas(S):
                for n in range(7):
                    mfma(ACCO + 16 * n, S['A'][n], S['B'])
            set_w_addr()
            o_reads(XO, 0)
            a("s_mov_b32 s%d, 0" % sLOOP)
            a.label("O_LOOP")
            o_reads(YO, 1); a("s_waitcnt lgkmcnt(15)"); o_mfmas(XO)
            a("s_add_u32 s%d, s%d, 1" % (sLOOP, sLOOP))
            a("s_cmp_eq_u32 s%d, 8" % sLOOP)
            a("s_cbranch_scc1 O_LAST")
            a("s_waitcnt lgkmcnt(0)")
            barrier()
            next_slot()
            set_w_addr()
            a("v_add_u32 v%d, 0x1000, v%d" % (vOB, vOB))
            o_reads(XO, 0)
            o_mfmas(YO)
            a("s_branch O_LOOP")
            a.label("O_LAST")
            a("s_waitcnt lgkmcnt(0)")
            o_mfmas(YO)
            a("s_nop 7"); a("s_nop 7")
            self.stamp_compute()
            a("s_mul_i32 s%d, s%d, 14336" % (sT0, sWAVE))
            a("v_add_u32 v3, s%d, v%d" % (sT0, vLIN))
            for n in range(7):
                for half in range(2):
                    b0 = ACCO + 16 * n + 8 * half
                    for j in range(4):
                        a("v_cvt_pk_bf16_f32 v%d, v%d, v%d" % (b0 + j, b0 + 2 * j, b0 + 2 * j + 1))
                    idx = n * 2 + half
                    a("s_mov_b32 s%d, %d" % (sOFF, idx * 1024))
                    a("buffer_store_dwordx4 v[%d:%d], v3, s[%d:%d], s%d offen%s" % (b0, b0 + 3, S_WS, S_WS + 3, sOFF, o.storeflags))
        if o.diag:
            a("s_waitcnt vmcnt(0)")
            a("s_memrealtime s[%d:%d]" % (sSTA, sSTA + 1))
            a("s_waitcnt lgkmcnt(0)")
            a("v_writelane_b32 v15, s%d, 62" % sSTB)
            a("v_writelane_b32 v15, s%d, 63" % sSTA)
            self.diag_store(15, 0)
        if o.dbgstamp:
            a("s_waitcnt vmcnt(0)")
            a("s_memrealtime s[%d:%d]" % (sSTA, sSTA + 1))
            a("s_memtime s[72:73]")
            a("s_waitcnt lgkmcnt(0)")
            a("s_not_b32 s%d, s%d" % (sSTB, sSTB))
            a("s_sub_u32 s72, s72, s70")
            a("s_lshl_b32 s%d, s2, 2" % sT0)
            a("s_add_u32 s%d, s%d, s%d" % (sT0, sT0, sWAVE))
            a("s_lshl_b32 s%d, s%d, 4" % (sT0, sT0))
            a("s_add_u32 s%d, s%d, %d" % (sT0, sT0, WS_DIAG))
            a("s_add_u32 s64, s18, s%d" % sT0)
            a("s_addc_u32 s65, s19, 0")
            a("s_mov_b32 s66, 16\ns_mov_b32 s67, 0x00020000")
            a("v_mov_b32 v4, s%d" % sSTB)
            a("v_mov_b32 v5, s%d" % sSTA)
            a("v_mov_b32 v6, s72")
            a("v_mov_b32 v7, 0")
            a("v_lshlrev_b32 v3, 4, v0")
            a("buffer_store_dwordx4 v[4:7], v3, s[64:67], 0 offen")
            a("s_waitcnt vmcnt(0)")
        a.label("K1_END")
        a("s_endpgm")

    def gen(self):
        self.prologue()
        self.compute()
        self.loader()
        return self.a.text()

def gen_k2(opt):
    a = Asm()
    kernel_begin(a, "k2_kernel")
    a("s_cmp_ge_u32 s2, 224")
    a("s_cbranch_scc1 K2_END")
    a("s_load_dwordx2 s[4:5], s[0:1], 40")
    a("s_load_dwordx2 s[6:7], s[0:1], 56")
    a("v_lshrrev_b32 v1, 6, v0")
    a("v_and_b32 v0, 63, v0")
    a("v_readfirstlane_b32 s3, v1")
    a("s_lshl_b32 s8, s2, 2")
    a("s_add_u32 s8, s8, s3")
    a("s_mul_i32 s9, s8, 9363")
    a("s_lshr_b32 s9, s9, 19")
    a("s_mul_i32 s10, s9, 56")
    a("s_sub_u32 s10, s8, s10")
    a("s_mul_i32 s11, s9, %d" % (16 * 57344))
    a("s_lshl_b32 s12, s10, 10")
    a("s_add_u32 s11, s11, s12")
    a("s_waitcnt lgkmcnt(0)")
    a("s_add_u32 s16, s6, s11")
    a("s_addc_u32 s17, s7, 0")
    a("s_mov_b32 s18, %d" % (16 * 57344))
    a("s_mov_b32 s19, 0x00020000")
    a("v_lshlrev_b32 v2, 4, v0")
    a("s_mov_b32 s20, 0")
    for h in range(16):
        a("buffer_load_dwordx4 v[%d:%d], v2, s[16:19], s20 offen" % (16 + 4 * h, 19 + 4 * h))
        if h < 15: a("s_add_u32 s20, s20, 57344")
    a("s_lshr_b32 s21, s10, 1")
    a("s_and_b32 s22, s10, 1")
    a("s_mul_i32 s23, s21, 9363")
    a("s_lshr_b32 s23, s23, 16")
    a("s_mul_i32 s24, s23, 7")
    a("s_sub_u32 s24, s21, s24")
    a("s_and_b32 s25, s23, 1")
    a("s_lshl_b32 s25, s25, 5")
    a("s_lshl_b32 s26, s9, 6")
    a("s_add_u32 s25, s25, s26")
    a("s_lshr_b32 s26, s23, 1")
    a("s_mul_i32 s26, s26, 224")
    a("s_lshl_b32 s27, s24, 5")
    a("s_add_u32 s26, s26, s27")
    a("s_lshl_b32 s27, s22, 4")
    a("s_add_u32 s26, s26, s27")
    a("s_mul_i32 s25, s25, 896")
    a("s_lshl_b32 s26, s26, 1")
    a("s_add_u32 s25, s25, s26")
    a("v_and_b32 v3, 31, v0")
    a("v_mul_u32_u24 v3, 896, v3")
    a("v_lshrrev_b32 v4, 5, v0")
    a("v_lshl_add_u32 v3, v4, 4, v3")
    a("v_add_u32 v3, s25, v3")
    a("s_mov_b32 s28, s4\ns_mov_b32 s29, s5\ns_mov_b32 s30, %d\ns_mov_b32 s31, 0x00020000" % (1024 * 896))
    for j in range(8): a("v_mov_b32 v%d, 0" % (4 + j))
    for h in range(16):
        a("s_waitcnt vmcnt(%d)" % (15 - h))
        for j in range(4):
            r = 16 + 4 * h + j
            a("v_lshlrev_b32 v12, 16, v%d" % r)
            a("v_and_b32 v13, 0xffff0000, v%d" % r)
            a("v_add_f32 v%d, v%d, v12" % (4 + 2 * j, 4 + 2 * j))
            a("v_add_f32 v%d, v%d, v13" % (5 + 2 * j, 5 + 2 * j))
    for j in range(4):
        a("v_cvt_pk_bf16_f32 v%d, v%d, v%d" % (12 + j, 4 + 2 * j, 5 + 2 * j))
    a("s_nop 1")
    a("v_permlane32_swap_b32 v12, v14")
    a("v_permlane32_swap_b32 v13, v15")
    a("buffer_store_dwordx4 v[12:15], v3, s[28:31], 0 offen")
    if opt.dbgstamp and not opt.spin:
        a("s_cmp_lg_u32 s2, 0")
        a("s_cbranch_scc1 K2_END")
        a("s_load_dwordx2 s[32:33], s[0:1], 48")
        a("s_add_u32 s36, s6, %d" % WS_DIAG)
        a("s_addc_u32 s37, s7, 0")
        a("s_mov_b32 s38, 16384\ns_mov_b32 s39, 0x00020000")
        a("v_lshl_add_u32 v2, s3, 6, v0")
        for k in range(4):
            a("v_lshlrev_b32 v3, 4, v2")
            a("buffer_load_dwordx4 v[4:7], v3, s[36:39], 0 offen offset:0")
            a("s_waitcnt vmcnt(0) lgkmcnt(0)")
            a("s_mov_b32 s34, 256\ns_mov_b32 s35, 0x00020000")
            a("v_mov_b32 v8, 0")
            a("buffer_atomic_umax v4, v8, s[32:35], 0 offen")
            a("buffer_atomic_umax v5, v8, s[32:35], 0 offen offset:4")
            a("buffer_atomic_umax v6, v8, s[32:35], 0 offen offset:8")
            a("s_waitcnt vmcnt(0)")
            a("v_add_u32 v2, 256, v2")
    if opt.spin2:
        i, j, f = [int(x) for x in opt.spin2.split(",")]
        a("s_cmp_lg_u32 s2, 0")
        a("s_cbranch_scc1 K2_END")
        a("s_add_u32 s36, s6, %d" % (WS_DIAG + (opt.spinwg * 8 + 4) * 256))
        a("s_addc_u32 s37, s7, 0")
        a("s_load_dword s32, s[36:37], %d" % (i * 4))
        a("s_load_dword s33, s[36:37], %d" % (j * 4))
        a("s_memrealtime s[34:35]")
        a("s_waitcnt lgkmcnt(0)")
        a("s_sub_u32 s33, s33, s32")
        a("s_mul_i32 s33, s33, %d" % f)
        a("s_min_u32 s33, s33, 100000")
        a.label("K2_SPIN")
        a("s_memrealtime s[38:39]")
        a("s_waitcnt lgkmcnt(0)")
        a("s_sub_u32 s38, s38, s34")
        a("s_cmp_lt_u32 s38, s33")
        a("s_cbranch_scc1 K2_SPIN")
    if opt.spin:
        a("s_cmp_lg_u32 s2, 0")
        a("s_cbranch_scc1 K2_END")
        a("s_add_u32 s36, s6, %d" % (WS_DIAG + opt.spinwg * 64))
        a("s_addc_u32 s37, s7, 0")
        a("s_load_dwordx2 s[32:33], s[36:37], 0")
        a("s_memrealtime s[34:35]")
        a("s_waitcnt lgkmcnt(0)")
        a("s_not_b32 s32, s32")
        a("s_sub_u32 s33, s33, s32")
        a("s_mul_i32 s33, s33, %d" % opt.spin)
        a("s_min_u32 s33, s33, 100000")
        a.label("K2_SPIN")
        a("s_memrealtime s[38:39]")
        a("s_waitcnt lgkmcnt(0)")
        a("s_sub_u32 s38, s38, s34")
        a("s_cmp_lt_u32 s38, s33")
        a("s_cbranch_scc1 K2_SPIN")
    a.label("K2_END")
    a("s_endpgm")
    return a.text()

def build(opt):
    k1 = K1(opt).gen()
    k2 = gen_k2(opt)
    s = HEADER
    s += "; @launch kernel=k1_kernel grid=(256,1,1) block=(512,1,1) lds=%d\n" % LDS_TOTAL
    if not opt.nok2:
        s += "; @launch kernel=k2_kernel grid=(224,1,1) block=(256,1,1) lds=0\n"
    s += '.amdgcn_target "amdgcn-amd-amdhsa--gfx950"\n.text\n'
    s += k1
    if not opt.nok2: s += k2
    s += '.section .rodata,"a"\n.p2align 6\n' + kernel_desc("k1_kernel", 256, 96)
    if not opt.nok2:
        s += '.p2align 6\n' + kernel_desc("k2_kernel", 80, 48)
    return s

if __name__ == "__main__":
    ap = argparse.ArgumentParser()
    ap.add_argument("-o", default="k1.s")
    ap.add_argument("--diag", action="store_true")
    ap.add_argument("--nocompute", action="store_true")
    ap.add_argument("--fakemfma", action="store_true")
    ap.add_argument("--nok2", action="store_true")
    ap.add_argument("--dbgstamp", action="store_true")
    ap.add_argument("--storeflags", default="")
    ap.add_argument("--pf", action="store_true")
    ap.add_argument("--pfstride", type=int, default=128)
    ap.add_argument("--pfflags", default="")
    ap.add_argument("--pf0", type=int, default=2)
    ap.add_argument("--spin2", default="")
    ap.add_argument("--rt", action="store_true")
    ap.add_argument("--spin", type=int, default=0)
    ap.add_argument("--spinwg", type=int, default=0)
    ap.add_argument("--nt", default="")
    ap.add_argument("--pfn", type=int, default=20)
    ap.add_argument("--pfmode", type=int, default=0)
    ap.add_argument("--pouter", action="store_true")
    ap.add_argument("--pfper", type=int, default=1)
    opt = ap.parse_args()
    open(opt.o, "w").write(build(opt))
```

```python
import sys, argparse
from asmlib import *

LDS_X = 0
LDS_Q = 0
LDS_P = [16384, 0]
LDS_O = 24576
LDS_MAX = 57344
LDS_SUM = 59392
RING = 65536
SLOT = 32768
LDS_TOTAL = 163840
WS_DIAG = 16 << 20

S_X, S_K, S_V, S_WQ, S_WO, S_WS = 20, 24, 28, 32, 36, 40
sWAVE = 3
sHQ, sB, sRH, sHKV = 44, 45, 46, 47
sC1 = 48
sT0, sT1, sT2, sT3 = 50, 51, 52, 53
sOFF = 54
sGRP = 56
sSTA, sSTB = 58, 60
sL8, sL7 = 62, 63

NT = 31

def srd(a, s, ptr, off_sgpr, nbytes):
    a("s_add_u32 s%d, s%d, s%d" % (s, ptr, off_sgpr))
    a("s_addc_u32 s%d, s%d, 0" % (s + 1, ptr + 1))
    a("s_mov_b32 s%d, 0x%x" % (s + 2, nbytes))
    a("s_mov_b32 s%d, 0x00020000" % (s + 3))

def slot_base(t):
    return RING + (t % 3) * SLOT

class Sched:
    def __init__(self, a):
        self.a = a
        self.nds = 0
        self.done = 0
        self.frag_last = {}
    def ds(self, text, frag=None):
        self.a(text)
        self.nds += 1
        if frag is not None: self.frag_last[frag] = self.nds
    def wait_upto(self, n):
        if n > self.done:
            cnt = min(self.nds - n, 15)
            self.a("s_waitcnt lgkmcnt(%d)" % cnt)
            self.done = self.nds - cnt
    def wait_frags(self, frags):
        self.wait_upto(max(self.frag_last[f] for f in frags))
    def wait_all(self):
        self.wait_upto(self.nds)

def run_phase(sc, mf, loads, events, groups, maxreads=2):
    a = sc.a
    pend = list(loads)
    evdone = set()
    n = len(mf)
    groups = [dict(items=list(g["items"]), start=g["start"], end=min(g["end"], n - 1)) for g in groups]
    def ok(l, i):
        return l["after_mf"] <= i and (l.get("after_ev") is None or l["after_ev"] in evdone)
    def pop():
        l = pend.pop(0)
        for t in l["instrs"]: sc.ds(t, l["id"])
        return len(l["instrs"])
    while pend and pend[0]["after_mf"] < 0 and pend[0].get("after_ev") is None and pend[0].get("pre", False):
        pop()
    for i, m in enumerate(mf):
        ids = set(p["id"] for p in pend)
        while any(f in ids for f in m["needs"]):
            assert ok(pend[0], i - 1), (i, pend[0])
            pop()
            ids = set(p["id"] for p in pend)
        sc.wait_frags(m["needs"])
        a(m["text"])
        for ev in events.get(i, []):
            key = ev()
            if key is not None: evdone.add(key)
        k = 0
        while pend and k < maxreads and ok(pend[0], i):
            k += pop()
        for g in groups:
            if g["items"] and i >= g["start"]:
                left = max(1, g["end"] - i + 1)
                quota = -(-len(g["items"]) // left)
                for _ in range(quota):
                    f = g["items"].pop(0)
                    f() if callable(f) else a(f)
    assert all(not g["items"] for g in groups), "fillers left"
    assert not pend, "loads left"

class K1:
    def __init__(self, opt):
        self.o = opt
        self.a = Asm()
        self.nstamp_l = 0
        self.nstamp_c = 0
        self.bars = []

    def stamp(self, which):
        if not self.o.diag: return
        a = self.a
        a("%s s[%d:%d]" % ("s_memrealtime" if self.o.rt else "s_memtime", sSTA, sSTA + 1))
        a("s_waitcnt lgkmcnt(0)")
        if which == "l":
            a("v_writelane_b32 v60, s%d, %d" % (sSTA, self.nstamp_l)); self.nstamp_l += 1
        else:
            a("v_writelane_b32 v15, s%d, %d" % (sSTA, self.nstamp_c)); self.nstamp_c += 1

    def prologue(self):
        a = self.a
        kernel_begin(a, "k1_kernel")
        a("s_cmp_ge_u32 s2, 256")
        a("s_cbranch_scc1 K1_END")
        a("s_load_dwordx16 s[4:19], s[0:1], 0")
        if self.o.diag:
            a("s_memrealtime s[%d:%d]" % (sSTB, sSTB + 1))
        a("v_lshrrev_b32 v1, 6, v0")
        a("v_and_b32 v0, 63, v0")
        a("v_readfirstlane_b32 s%d, v1" % sWAVE)
        a("s_and_b32 s%d, s2, 7" % sHKV)
        a("s_lshr_b32 s%d, s2, 5" % sB)
        a("s_bfe_u32 s%d, s2, 0x10004" % sT0)
        a("s_bfe_u32 s%d, s2, 0x10003" % sRH)
        a("s_lshl_b32 s%d, s%d, 1" % (sHQ, sHKV))
        a("s_add_u32 s%d, s%d, s%d" % (sHQ, sHQ, sT0))
        a("s_mov_b32 s%d, 0x3db8aa3b" % sC1)
        a("s_lshl_b32 s%d, s%d, 1" % (sGRP, sB))
        a("s_add_u32 s%d, s%d, s%d" % (sGRP, sGRP, sRH))
        a("s_mul_i32 s%d, s%d, 57344" % (sT0, sGRP))
        a("s_lshl_b32 s%d, s%d, 3" % (sT1, sB))
        a("s_add_u32 s%d, s%d, s%d" % (sT1, sT1, sHKV))
        a("s_lshl_b32 s%d, s%d, 18" % (sT1, sT1))
        a("s_lshl_b32 s%d, s%d, 9" % (sT2, sHQ))
        a("s_mul_i32 s%d, s%d, 229376" % (sT3, sHQ))
        a("s_waitcnt lgkmcnt(0)")
        srd(a, S_X, 4, sT0, 57344)
        srd(a, S_WQ, 10, sT2, 448 * 8192 - 15 * 512)
        srd(a, S_K, 6, sT1, 262144)
        srd(a, S_V, 8, sT1, 262144)
        srd(a, S_WO, 12, sT3, 229376)
        a("s_lshl_b32 s%d, s%d, 4" % (sT0, sGRP))
        a("s_add_u32 s%d, s%d, s%d" % (sT0, sT0, sHQ))
        a("s_mul_i32 s%d, s%d, 57344" % (sT0, sT0))
        srd(a, S_WS, 18, sT0, 57344)
        a("s_cmp_ge_u32 s%d, 4" % sWAVE)
        a("s_cbranch_scc1 K1_LOADER")

    def pieces(self):
        vX, vWO, vWQ, vK0, vK1, vV = 16, 32, 40, 41, 42, 43
        P = []
        for j in range(14):
            P.append((-1, S_X, vX + j, 0, ("x", j * 1024)))
        for t in range(NT):
            sl = slot_base(t)
            if t <= 6:
                for i in range(8): P.append((t, S_WQ, vWQ, t * 524288 + i * 65536, (sL8, sl + i * 1024)))
            elif t <= 14:
                p, d = (t - 7) >> 2, (t - 7) & 3
                for i in range(8): P.append((t, S_K, vK1 if i & 1 else vK0, p * 32768 + d * 128 + i * 4096, (sL8, sl + i * 1024)))
            elif t <= 22:
                c, wp = (t - 15) >> 1, (t - 15) & 1
                for i in range(8):
                    key = 128 * (2 * wp + (i >> 2)) + 32 * c + 8 * (i & 3)
                    P.append((t, S_V, vV, key * 512, (sL8, sl + i * 1024)))
            else:
                for j in range(7): P.append((t, S_WO, vWO + j, (t - 23) * 28672, (sL7, sl + j * 1024)))
        return P

    def loader(self):
        a = self.a; o = self.o
        a.label("K1_LOADER")
        a("s_sub_u32 s%d, s%d, 4" % (sWAVE, sWAVE))
        vX, vWO, vWQ, vK0, vK1, vV = 16, 32, 40, 41, 42, 43
        sX14 = 64
        a("s_mul_i32 s%d, s%d, 896" % (sT0, sWAVE))
        a("v_add_u32 v6, s%d, v0" % sT0)
        a("s_mul_i32 s%d, s%d, 14336" % (sX14, sWAVE))
        a("s_lshl_b32 s%d, s%d, 13" % (sL8, sWAVE))
        a("s_mul_i32 s%d, s%d, 7168" % (sL7, sWAVE))
        for j in range(14):
            a("v_add_u32 v7, %d, v6" % (64 * j))
            a("v_mul_u32_u24 v8, 4682, v7")
            a("v_lshrrev_b32 v8, 19, v8")
            a("v_and_b32 v8, 7, v8")
            a("v_xor_b32 v8, v7, v8")
            a("v_lshlrev_b32 v%d, 4, v8" % (vX + j))
        a("v_lshrrev_b32 v1, 3, v0")
        a("v_and_b32 v2, 7, v0")
        a("v_bfe_u32 v3, v0, 4, 1")
        a("v_lshlrev_b32 v3, 2, v3")
        a("v_xor_b32 v3, v2, v3")
        a("v_lshlrev_b32 v3, 4, v3")
        a("s_lshl_b32 s%d, s%d, 7" % (sT0, sWAVE))
        a("v_add_u32 v3, s%d, v3" % sT0)
        a("v_lshl_add_u32 v%d, v1, 13, v3" % vWQ)
        a("v_lshl_add_u32 v%d, v1, 9, v3" % vV)
        a("v_lshrrev_b32 v4, 4, v0")
        a("v_xor_b32 v5, v2, v4")
        a("v_lshlrev_b32 v5, 4, v5")
        a("s_lshl_b32 s%d, s%d, 16" % (sT0, sWAVE))
        a("v_add_u32 v5, s%d, v5" % sT0)
        a("v_lshl_add_u32 v%d, v1, 9, v5" % vK0)
        a("v_xor_b32 v%d, 64, v%d" % (vK1, vK0))
        def wo_addr():
            a("s_mul_i32 s%d, s%d, 448" % (sT0, sWAVE))
            a("v_add_u32 v6, s%d, v0" % sT0)
            for j in range(7):
                a("v_add_u32 v7, %d, v6" % (64 * j))
                a("v_mul_u32_u24 v8, 9363, v7")
                a("v_lshrrev_b32 v8, 19, v8")
                a("v_bfe_u32 v8, v8, 1, 1")
                a("v_lshlrev_b32 v8, 2, v8")
                a("v_xor_b32 v8, v7, v8")
                a("v_lshlrev_b32 v%d, 4, v8" % (vWO + j))
        self.stamp("l")
        P = self.pieces()
        bars = self.bars
        freed_at = {}
        for k, (nm, pub, fr) in enumerate(bars):
            if fr is not None and fr + 3 < NT: freed_at[fr + 3] = k
        pub_at = {pub: k for k, (nm, pub, fr) in enumerate(bars) if pub is not None}
        pub_at[-1] = pub_at[0]
        def flags(s):
            if s in (S_K, S_V) and "kv" in o.nt: return " nt"
            if s in (S_WQ, S_WO) and "w" in o.nt: return " nt"
            if s == S_X and "x" in o.nt: return " nt"
            return ""
        def set_soff(soff):
            if soff == 0: return "0"
            a("s_mov_b32 s%d, 0x%x" % (sOFF, soff)); return "s%d" % sOFF

        if o.loader == "dma":
            issued = 0
            def issue_tile(t):
                nonlocal issued
                for (tt, s, v, soff, (lb, lo)) in [p for p in P if p[0] == t]:
                    if lb == "x": a("s_add_u32 m0, s%d, %d" % (sX14, lo))
                    else: a("s_add_u32 m0, s%d, %d" % (lb, lo))
                    so = set_soff(soff)
                    if so == "0": a("s_nop 0")
                    a("buffer_load_dwordx4 v%d, s[%d:%d], %s offen%s lds" % (v, s, s + 3, so, flags(s)))
                    issued += 1
            last_piece = {}
            c = 0
            for p in P:
                c += 1; last_piece[p[0]] = c
            issue_tile(-1); issue_tile(0); issue_tile(1)
            wo_addr()
            issue_tile(2)
            nxt = 3
            for k, (nm, pub, fr) in enumerate(bars):
                if pub is not None:
                    a("s_waitcnt vmcnt(%d)" % (issued - last_piece[pub]))
                a("s_barrier")
                if nm.startswith("B") or nm == "INIT": self.stamp("l")
                while nxt < NT and freed_at[nxt] <= k:
                    issue_tile(nxt); nxt += 1
                if nxt >= NT and not any(b[1] is not None for b in bars[k + 1:]):
                    pass
        else:
            R = o.depth
            vS = 256 - 4 * R
            vW8, vW7, vWX = 44, 45, 46
            a("v_lshlrev_b32 v9, 4, v0")
            a("v_add_u32 v%d, s%d, v9" % (vW8, sL8))
            a("v_add_u32 v%d, s%d, v9" % (vW7, sL7))
            a("v_add_u32 v%d, s%d, v9" % (vWX, sX14))
            a("v_add_u32 v47, 0x10000, v%d" % vW8)
            a("v_add_u32 v48, 0x10000, v%d" % vW7)
            a("v_add_u32 v49, 0x20000, v%d" % vW8)
            a("v_add_u32 v50, 0x20000, v%d" % vW7)
            nissued = 0
            def gload(i):
                nonlocal nissued
                (tt, s, v, soff, _) = P[i]
                r = vS + 4 * (i % R)
                so = set_soff(soff)
                a("buffer_load_dwordx4 v[%d:%d], v%d, s[%d:%d], %s offen%s" % (r, r + 3, v, s, s + 3, so, flags(s)))
                nissued += 1
            first = min(R, len(P))
            wo_done = False
            for i in range(first):
                if P[i][1] == S_WO and not wo_done: wo_addr(); wo_done = True
                gload(i)
            if not wo_done: wo_addr(); wo_done = True
            wi = 0
            nds = 0
            def lwrite(i):
                nonlocal nds
                (tt, s, v, soff, (lb, lo)) = P[i]
                r = vS + 4 * (i % R)
                a("s_waitcnt vmcnt(%d)" % (nissued - (i + 1)))
                if lb == "x": base, off = vWX, lo
                else:
                    off = lo
                    if off >= 0x20000:
                        base = 49 if lb == sL8 else 50
                        off -= 0x20000
                    else:
                        base = 47 if lb == sL8 else 48
                        off -= 0x10000
                    assert 0 <= off < 65536
                a("ds_write_b128 v%d, v[%d:%d] offset:%d" % (base, r, r + 3, off))
                nds += 1
                lag = o.lag
                if i >= lag and i - lag + R < len(P):
                    a("s_waitcnt lgkmcnt(%d)" % lag)
                    gload(i - lag + R)
            for k, (nm, pub, fr) in enumerate(bars):
                lim = None
                while wi < len(P):
                    t = P[wi][0]
                    if t >= 3 and freed_at[t] >= k: break
                    if pub is not None and t > pub + (o.wahead if pub != 0 else 0): break
                    if pub is None:
                        nxtpub = [b[1] for b in bars[k:] if b[1] is not None]
                        if not nxtpub or t > nxtpub[0] + o.wahead - 1 + 1: break
                    lwrite(wi); wi += 1
                if pub is not None:
                    assert all(p[0] > pub for p in P[wi:]), (k, pub, wi)
                    a("s_waitcnt lgkmcnt(0)")
                a("s_barrier")
                if nm.startswith("B") or nm == "INIT": self.stamp("l")
            assert wi == len(P)
        if o.diag:
            a("s_memrealtime s[%d:%d]" % (sSTA, sSTA + 1))
            a("s_waitcnt lgkmcnt(0)")
            a("v_writelane_b32 v60, s%d, 62" % sSTB)
            a("v_writelane_b32 v60, s%d, 63" % sSTA)
            self.diag_store(60, 4)
        a("s_endpgm")

    def diag_store(self, vreg, waveadd):
        a = self.a
        a("s_lshl_b32 s%d, s2, 3" % sT0)
        a("s_add_u32 s%d, s%d, s%d" % (sT0, sT0, sWAVE))
        a("s_add_u32 s%d, s%d, %d" % (sT0, sT0, waveadd))
        a("s_lshl_b32 s%d, s%d, 8" % (sT0, sT0))
        a("s_add_u32 s%d, s%d, %d" % (sT0, sT0, WS_DIAG))
        a("s_add_u32 s68, s18, s%d" % sT0)
        a("s_addc_u32 s69, s19, 0")
        a("s_mov_b32 s70, 256")
        a("s_mov_b32 s71, 0x00020000")
        a("v_lshlrev_b32 v61, 2, v0")
        a("buffer_store_dword v%d, v61, s[68:71], 0 offen" % vreg)
        a("s_waitcnt vmcnt(0)")

    def barrier(self, name, pub=None, free=None):
        self.a("s_barrier")
        self.bars.append((name, pub, free))

    def compute(self):
        a = self.a; o = self.o
        sc = Sched(a)
        vLIN = 2
        vXA = [4, 5, 6, 7]
        vA = [8, 9, 10, 11]
        vB = [12, 13, 14, 48]
        SETS = [dict(A=[16, 20], B=[24, 28]), dict(A=[32, 36], B=[40, 44])]
        ACCQ, ACCS, ACCO = 64, 128, 128
        vM = [49, 50]; vSUM = [51, 52]
        vST, vSTR, vPW, vTMP = 53, 54, 55, 62

        def mfma(acc, A, B, first):
            return "v_mfma_f32_32x32x16_bf16 v[%d:%d], v[%d:%d], v[%d:%d], %s" % (
                acc, acc + 15, A, A + 3, B, B + 3, "0" if first else "v[%d:%d]" % (acc, acc + 15))

        def tr_pattern(dst, hshift):
            a("v_bfe_u32 v3, v0, 2, 2")
            a("v_lshlrev_b32 v3, 7, v3")
            a("v_lshrrev_b32 v1, 5, v0")
            a("v_lshl_add_u32 v3, v1, %d, v3" % hshift)
            a("v_bfe_u32 v1, v0, 4, 1")
            a("v_lshl_add_u32 v3, v1, 5, v3")
            a("v_and_b32 v1, 3, v0")
            a("v_lshl_add_u32 v3, v1, 3, v3")
            a("v_bfe_u32 v1, v0, 3, 1")
            a("v_lshl_add_u32 v3, v1, 6, v3")
            a("s_lshl_b32 s%d, s%d, 13" % (sT0, sWAVE))
            a("s_add_u32 s%d, s%d, %d" % (sT0, sT0, RING))
            a("v_add_u32 v%d, s%d, v3" % (dst[0], sT0))
            a("v_xor_b32 v%d, 64, v%d" % (dst[1], dst[0]))
            a("v_add_u32 v%d, 0x10000, v%d" % (dst[2], dst[0]))
            a("v_add_u32 v%d, 0x10000, v%d" % (dst[3], dst[1]))
        def slot_addr(regs_lo, regs_hi, t, off):
            s = t % 3
            return (regs_lo, off + s * SLOT) if s < 2 else (regs_hi, off)

        vPFW, vPFK, vPFD = 56, 57, 61
        if o.pfw:
            a("v_lshlrev_b32 v3, 4, v0")
            a("v_add_u32 v3, s%d, v3" % sGRP)
            a("v_lshrrev_b32 v1, 2, v3")
            a("v_lshlrev_b32 v1, 13, v1")
            a("v_and_b32 v%d, 3, v3" % vPFW)
            a("v_lshl_add_u32 v%d, v%d, 7, v1" % (vPFW, vPFW))
            lab = a.newlabel("PF")
            a("s_cmp_ge_u32 s%d, 2" % sWAVE)
            a("s_cbranch_scc1 %s" % lab)
            a("s_mul_i32 s%d, s%d, %d" % (sOFF, sWAVE, 256 * 8192))
            a("buffer_load_dword v%d, v%d, s[%d:%d], s%d offen" % (vPFD, vPFW, S_WQ, S_WQ + 3, sOFF))
            a.label(lab)
        if o.pfk:
            a("s_bfe_u32 s%d, s2, 0x20003" % sT0)
            a("s_lshl_b32 s%d, s%d, 13" % (sT0, sT0))
            a("s_lshl_b32 s%d, s%d, 16" % (sT1, sWAVE))
            a("s_add_u32 s%d, s%d, s%d" % (sT0, sT0, sT1))
            a("v_lshlrev_b32 v%d, 7, v0" % vPFK)
            a("v_add_u32 v%d, s%d, v%d" % (vPFK, sT0, vPFK))
            lab = a.newlabel("PF")
            if o.pfk == 2:
                a("s_cmp_ge_u32 s%d, 2" % sWAVE)
                a("s_cbranch_scc1 %s" % lab)
            a("buffer_load_dword v%d, v%d, s[%d:%d], 0 offen" % (vPFD, vPFK, S_K, S_K + 3))
            if o.pfk == 8:
                a("s_mov_b32 s%d, 32768" % sOFF)
                a("buffer_load_dword v%d, v%d, s[%d:%d], s%d offen" % (vPFD, vPFK, S_K, S_K + 3, sOFF))
            a.label(lab)

        a("v_lshlrev_b32 v%d, 4, v0" % vLIN)
        a("v_and_b32 v3, 31, v0")
        a("v_lshrrev_b32 v1, 1, v3")
        a("v_mul_u32_u24 v4, 1792, v1")
        a("v_and_b32 v5, 1, v3")
        a("v_mul_u32_u24 v5, 896, v5")
        a("v_add_u32 v4, v4, v5")
        a("v_and_b32 v1, 7, v1")
        a("v_lshrrev_b32 v5, 5, v0")
        a("v_xor_b32 v1, v1, v5")
        a("v_lshl_add_u32 v%d, v1, 4, v4" % vXA[0])
        for j in (1, 2, 3): a("v_xor_b32 v%d, %d, v%d" % (vXA[j], j << 5, vXA[0]))
        TR = [vA[0], vA[1], vA[2], vA[3]]
        tr_pattern(TR, 10)

        def std_phase(name, t0, nsteps, loadA, loadB, accf, groups):
            mf, loads, events = [], [], {}
            seen = set()
            nk = nsteps * 4
            def fid(tp, g, idx): return (name, tp, g, idx)
            for g in range(nk):
                S = SETS[g & 1]
                t, ks = t0 + g // 4, g % 4
                for (mb, nb) in ((0, 0), (0, 1), (1, 0), (1, 1)):
                    acc = accf(t, mb, nb)
                    mf.append(dict(text=mfma(acc, S['A'][mb], S['B'][nb], acc not in seen),
                                   needs=[fid('A', g, mb), fid('B', g, nb)]))
                    seen.add(acc)
            for g in range(nk):
                S = SETS[g & 1]
                t, ks = t0 + g // 4, g % 4
                for (tp, idx) in (('A', 0), ('B', 0), ('B', 1), ('A', 1)):
                    last = {('A', 0): 1, ('B', 0): 2, ('A', 1): 3, ('B', 1): 3}[(tp, idx)]
                    after = (g - 2) * 4 + last if g >= 2 else -1
                    ins = loadA(t, ks, idx, S['A'][idx]) if tp == 'A' else loadB(t, ks, idx, S['B'][idx])
                    loads.append(dict(id=fid(tp, g, idx), instrs=ins, after_mf=after,
                                      after_ev=(("pub", t) if t > t0 else None), pre=(g < 2)))
            for s_ in range(nsteps):
                t = t0 + s_
                def ev(t=t):
                    sc.wait_all()
                    self.barrier("B%d" % t, pub=(t + 1 if t + 1 < NT else None), free=t)
                    return ("pub", t + 1)
                events[s_ * 16 + o.barpos] = [ev]
            run_phase(sc, mf, loads, events, groups, maxreads=o.maxreads)

        nop16 = lambda: (a("s_nop 7"), a("s_nop 7"))

        self.stamp("c")
        self.barrier("INIT", pub=0)
        self.stamp("c")

        def q_loadA(t, ks, mb, r):
            v, off = slot_addr(TR[mb], TR[2 + mb], t, ks * 2048)
            return ["ds_read_b64_tr_b16 v[%d:%d], v%d offset:%d" % (r, r + 1, v, off),
                    "ds_read_b64_tr_b16 v[%d:%d], v%d offset:%d" % (r + 2, r + 3, v, off + 512)]
        def q_loadB(t, ks, nb, r):
            return ["ds_read_b128 v[%d:%d], v%d offset:%d" % (r, r + 3, vXA[ks], nb * 28672 + t * 128)]
        KA = [vB[0], vB[1], vB[2], vB[3]]
        KH = [56, 57, 58, 59]
        fl = ["v_and_b32 v3, 31, v0", "v_bfe_u32 v1, v0, 1, 3", "v_lshrrev_b32 v60, 5, v0", "v_xor_b32 v1, v1, v60",
              "v_lshlrev_b32 v1, 4, v1", "v_lshl_add_u32 v3, v3, 7, v1",
              "s_lshl_b32 s%d, s%d, 13" % (sT0, sWAVE), "s_add_u32 s%d, s%d, %d" % (sT0, sT0, RING),
              "v_add_u32 v%d, s%d, v3" % (KA[0], sT0)]
        fl += ["v_xor_b32 v%d, %d, v%d" % (KA[j], j << 5, KA[0]) for j in (1, 2, 3)]
        fl += ["v_add_u32 v%d, 0x10000, v%d" % (KH[j], KA[j]) for j in range(4)]
        fl += ["v_and_b32 v%d, 31, v0" % vSTR, "v_lshlrev_b32 v%d, 5, v%d" % (vSTR, vSTR),
               "v_lshrrev_b32 v3, 5, v0", "v_lshl_add_u32 v3, v3, 2, v%d" % vSTR,
               "s_lshl_b32 s%d, s%d, 3" % (sT0, sWAVE), "v_add_u32 v%d, s%d, v3" % (vST, sT0),
               "s_lshl_b32 s%d, s%d, 12" % (sT0, sWAVE), "v_add_u32 v%d, s%d, v%d" % (vPW, sT0, vLIN),
               "s_lshl_b32 s%d, s%d, 13" % (sT0, sWAVE), "v_add_u32 v%d, s%d, v%d" % (vTMP, sT0, vLIN)]
        std_phase("Q", 0, 7, q_loadA, q_loadB, lambda t, mb, nb: ACCQ + (mb * 2 + nb) * 16, [dict(items=fl, start=32, end=100)])
        nop16()
        self.stamp("c")
        for mb in range(2):
            for nb in range(2):
                acc = ACCQ + (mb * 2 + nb) * 16
                for half in range(2):
                    b0 = acc + 8 * half
                    for j in range(4):
                        a("v_cvt_pk_bf16_f32 v%d, v%d, v%d" % (b0 + j, b0 + 2 * j, b0 + 2 * j + 1))
                    a("s_nop 1")
                    a("v_permlane32_swap_b32 v%d, v%d" % (b0, b0 + 2))
                    a("v_permlane32_swap_b32 v%d, v%d" % (b0 + 1, b0 + 3))
                    sc.ds("ds_write_b128 v%d, v[%d:%d] offset:%d" % (vTMP, b0, b0 + 3, LDS_Q + ((2 * mb + half) * 2 + nb) * 1024))
        sc.wait_all()
        self.barrier("X1")
        self.stamp("c")

        def s_loadA(t, ks, mb, r):
            v, off = slot_addr(KA[ks], KH[ks], t, mb * 4096)
            return ["ds_read_b128 v[%d:%d], v%d offset:%d" % (r, r + 3, v, off)]
        def s_loadB(t, ks, nb, r):
            d = (t - 7) & 3
            return ["ds_read_b128 v[%d:%d], v%d offset:%d" % (r, r + 3, vLIN, LDS_Q + ((d * 4 + ks) * 2 + nb) * 1024)]
        def maxchain(nb, mbs, first):
            regs = [ACCS + (mb * 2 + nb) * 16 + r for mb in mbs for r in range(16)]
            d = vM[nb]; out = []
            i = 0
            if first:
                out.append("v_max3_f32 v%d, v%d, v%d, v%d" % (d, regs[0], regs[1], regs[2])); i = 3
            while i + 1 < len(regs):
                out.append("v_max3_f32 v%d, v%d, v%d, v%d" % (d, d, regs[i], regs[i + 1])); i += 2
            if i < len(regs): out.append("v_max_f32 v%d, v%d, v%d" % (d, d, regs[i]))
            return out
        f1 = []
        for x, y in zip(maxchain(0, (0, 1), True), maxchain(1, (0, 1), True)): f1 += [x, y]
        std_phase("S", 7, 8, s_loadA, s_loadB, lambda t, mb, nb: ACCS + ((2 * ((t - 7) >> 2) + mb) * 2 + nb) * 16,
                  [dict(items=f1, start=70, end=120)])
        tr_pattern(TR, 9)
        self.stamp("c")
        for x, y in zip(maxchain(0, (2, 3), False), maxchain(1, (2, 3), False)): a(x); a(y)
        for nb in range(2):
            sc.ds("ds_write_b32 v%d, v%d offset:%d" % (vST, vM[nb], LDS_MAX + nb * 1024))
        sc.wait_all()
        self.barrier("X2")
        for nb in range(2):
            sc.ds("ds_read_b128 v[%d:%d], v%d offset:%d" % (16 + nb * 8, 19 + nb * 8, vSTR, LDS_MAX + nb * 1024))
            sc.ds("ds_read_b128 v[%d:%d], v%d offset:%d" % (20 + nb * 8, 23 + nb * 8, vSTR, LDS_MAX + nb * 1024 + 16))
        sc.wait_all()
        for nb in range(2):
            b = 16 + nb * 8
            a("v_max3_f32 v%d, v%d, v%d, v%d" % (vM[nb], b, b + 1, b + 2))
            a("v_max3_f32 v%d, v%d, v%d, v%d" % (vM[nb], vM[nb], b + 3, b + 4))
            a("v_max3_f32 v%d, v%d, v%d, v%d" % (vM[nb], vM[nb], b + 5, b + 6))
            a("v_max_f32 v%d, v%d, v%d" % (vM[nb], vM[nb], b + 7))
            a("v_mul_f32 v%d, s%d, v%d" % (vM[nb], sC1, vM[nb]))

        def softmax_list(c):
            L = []
            for nb in range(2):
                acc = ACCS + (c * 2 + nb) * 16
                for r in range(16): L.append("v_fma_f32 v%d, v%d, s%d, -v%d" % (acc + r, acc + r, sC1, vM[nb]))
                for r in range(16): L.append("v_exp_f32 v%d, v%d" % (acc + r, acc + r))
                for r in range(16):
                    if c == 0 and r == 0: continue
                    if c == 0 and r == 1: L.append("v_add_f32 v%d, v%d, v%d" % (vSUM[nb], acc, acc + 1))
                    else: L.append("v_add_f32 v%d, v%d, v%d" % (vSUM[nb], vSUM[nb], acc + r))
                for half in range(2):
                    b0 = acc + 8 * half
                    for j in range(4):
                        L.append("v_cvt_pk_bf16_f32 v%d, v%d, v%d" % (b0 + j, b0 + 2 * j, b0 + 2 * j + 1))
                    L.append(lambda b0=b0, half=half, nb=nb, c=c: sc.ds("ds_write_b128 v%d, v[%d:%d] offset:%d" % (
                        vPW, b0, b0 + 3, LDS_P[c & 1] + (half * 2 + nb) * 1024)))
            return L
        for f in softmax_list(0):
            f() if callable(f) else a(f)
        sc.wait_all()
        self.barrier("X3")
        self.stamp("c")

        def v_loadA(t, ks, mb, r):
            v, off = slot_addr(TR[mb], TR[2 + mb], t, ks * 2048)
            return ["ds_read_b64_tr_b16 v[%d:%d], v%d offset:%d" % (r, r + 1, v, off),
                    "ds_read_b64_tr_b16 v[%d:%d], v%d offset:%d" % (r + 2, r + 3, v, off + 1024)]
        def v_loadB(t, ks, nb, r):
            c, wp = (t - 15) >> 1, (t - 15) & 1
            return ["ds_read_b128 v[%d:%d], v%d offset:%d" % (r, r + 3, vLIN, LDS_P[c & 1] + wp * 8192 + ks * 2048 + nb * 1024)]
        groups = []
        for c in range(3):
            items = softmax_list(c + 1)
            if c == 2:
                for nb in range(2):
                    items.append(lambda nb=nb: sc.ds("ds_write_b32 v%d, v%d offset:%d" % (vST, vSUM[nb], LDS_SUM + nb * 1024)))
            end = 32 * c + 16 + o.barpos - 1
            start = 0 if c == 0 else end - 31 + 1
            groups.append(dict(items=items, start=start, end=end))
        vW = [4, 5]; vWH = [6, 7]; vOB = vB[0]
        fl = ["v_bfe_u32 v1, v0, 2, 2", "v_lshrrev_b32 v60, 5, v0", "v_lshl_add_u32 v1, v60, 2, v1", "v_mul_u32_u24 v1, 896, v1",
              "v_bfe_u32 v60, v0, 4, 1", "v_lshl_add_u32 v1, v60, 5, v1", "v_and_b32 v60, 3, v0", "v_lshl_add_u32 v1, v60, 3, v1",
              "s_lshr_b32 s%d, s%d, 1" % (sT0, sWAVE), "s_mul_i32 s%d, s%d, 448" % (sT1, sT0), "s_add_u32 s%d, s%d, %d" % (sT1, sT1, RING),
              "v_add_u32 v1, s%d, v1" % sT1, "v_bfe_u32 v60, v0, 3, 1", "v_lshlrev_b32 v60, 6, v60",
              "s_cmp_eq_u32 s%d, 0" % sT0 + "\n" + "s_cselect_b32 s%d, 1, -1" % sT1, "v_mul_lo_u32 v60, v60, s%d" % sT1,
              "v_add_u32 v%d, v1, v60" % vW[0], "v_sub_u32 v%d, v1, v60" % vW[1],
              "v_add_u32 v%d, 0x10000, v%d" % (vWH[0], vW[0]), "v_add_u32 v%d, 0x10000, v%d" % (vWH[1], vW[1]),
              "s_and_b32 s%d, s%d, 1" % (sT0, sWAVE), "s_lshl_b32 s%d, s%d, 10" % (sT0, sT0),
              "s_add_u32 s%d, s%d, %d" % (sT0, sT0, LDS_O), "v_add_u32 v%d, s%d, v%d" % (vOB, sT0, vLIN)]
        groups.append(dict(items=fl, start=96, end=124))
        std_phase("V", 15, 8, v_loadA, v_loadB, lambda t, mb, nb: ACCQ + (mb * 2 + nb) * 16, groups)
        for nb in range(2):
            sc.ds("ds_read_b128 v[%d:%d], v%d offset:%d" % (16 + nb * 8, 19 + nb * 8, vSTR, LDS_SUM + nb * 1024))
            sc.ds("ds_read_b128 v[%d:%d], v%d offset:%d" % (20 + nb * 8, 23 + nb * 8, vSTR, LDS_SUM + nb * 1024 + 16))
        sc.wait_all()
        self.stamp("c")
        for nb in range(2):
            b = 16 + nb * 8
            a("v_add_f32 v%d, v%d, v%d" % (b, b, b + 1))
            for k in range(2, 8): a("v_add_f32 v%d, v%d, v%d" % (b, b, b + k))
            a("v_rcp_f32 v%d, v%d" % (vSUM[nb], b))
        a("s_nop 3")
        for mb in range(2):
            for nb in range(2):
                acc = ACCQ + (mb * 2 + nb) * 16
                for r in range(16): a("v_mul_f32 v%d, v%d, v%d" % (acc + r, acc + r, vSUM[nb]))
                for half in range(2):
                    b0 = acc + 8 * half
                    for j in range(4):
                        a("v_cvt_pk_bf16_f32 v%d, v%d, v%d" % (b0 + j, b0 + 2 * j, b0 + 2 * j + 1))
                    sc.ds("ds_write_b128 v%d, v[%d:%d] offset:%d" % (vTMP, b0, b0 + 3, LDS_O + ((2 * mb + half) * 2 + nb) * 1024))
        sc.wait_all()
        self.barrier("X4")
        self.stamp("c")

        OA = [64 + 4 * i for i in range(7)]
        OB = [92, 96]
        mf, loads, events = [], [], {}
        nk = 16
        for g in range(nk):
            for n in range(7):
                mf.append(dict(text=mfma(ACCO + 16 * n, OA[n], OB[g & 1], g == 0), needs=[("O", "A", g, n), ("O", "B", g)]))
        for g in range(nk):
            t, ks = 23 + g // 2, g % 2
            ev = ("pub", t) if t > 23 else None
            loads.append(dict(id=("O", "B", g), instrs=["ds_read_b128 v[%d:%d], v%d offset:%d" % (OB[g & 1], OB[g & 1] + 3, vOB, g * 2048)],
                              after_mf=((g - 2) * 7 + 6 if g >= 2 else -1), after_ev=None, pre=(g == 0)))
            for n in range(7):
                v, off = slot_addr(vW[n & 1], vWH[n & 1], t, 16 * ks * 896 + n * 64)
                loads.append(dict(id=("O", "A", g, n),
                                  instrs=["ds_read_b64_tr_b16 v[%d:%d], v%d offset:%d" % (OA[n], OA[n] + 1, v, off),
                                          "ds_read_b64_tr_b16 v[%d:%d], v%d offset:%d" % (OA[n] + 2, OA[n] + 3, v, off + 8 * 896)],
                                  after_mf=((g - 1) * 7 + n if g >= 1 else -1), after_ev=ev, pre=(g == 0)))
        for s_ in range(7):
            t = 23 + s_
            def ev(t=t):
                sc.wait_all()
                self.barrier("B%d" % t, pub=t + 1, free=t)
                return ("pub", t + 1)
            events[(2 * s_ + 1) * 7 + o.obar] = [ev]
        run_phase(sc, mf, loads, events, [], maxreads=o.maxreads + 1)
        nop16()
        self.stamp("c")
        a("s_mul_i32 s%d, s%d, 14336" % (sT0, sWAVE))
        a("v_add_u32 v3, s%d, v%d" % (sT0, vLIN))
        for n in range(7):
            for half in range(2):
                b0 = ACCO + 16 * n + 8 * half
                for j in range(4):
                    a("v_cvt_pk_bf16_f32 v%d, v%d, v%d" % (b0 + j, b0 + 2 * j, b0 + 2 * j + 1))
                idx = n * 2 + half
                a("s_mov_b32 s%d, %d" % (sOFF, idx * 1024))
                a("buffer_store_dwordx4 v[%d:%d], v3, s[%d:%d], s%d offen%s" % (b0, b0 + 3, S_WS, S_WS + 3, sOFF, o.storeflags))
        if o.diag:
            a("s_waitcnt vmcnt(0)")
            a("s_memrealtime s[%d:%d]" % (sSTA, sSTA + 1))
            a("s_waitcnt lgkmcnt(0)")
            a("v_writelane_b32 v15, s%d, 62" % sSTB)
            a("v_writelane_b32 v15, s%d, 63" % sSTA)
            self.diag_store(15, 0)
        a.label("K1_END")
        a("s_endpgm")

    def gen(self):
        self.prologue()
        self.compute()
        self.loader()
        return self.a.text()

import gen1

def build(opt):
    k1 = K1(opt).gen()
    k2 = gen1.gen_k2(opt)
    s = HEADER
    s += "; @launch kernel=k1_kernel grid=(256,1,1) block=(512,1,1) lds=%d\n" % LDS_TOTAL
    if not opt.nok2:
        s += "; @launch kernel=k2_kernel grid=(224,1,1) block=(256,1,1) lds=0\n"
    s += '.amdgcn_target "amdgcn-amd-amdhsa--gfx950"\n.text\n'
    s += k1
    if not opt.nok2: s += k2
    s += '.section .rodata,"a"\n.p2align 6\n' + kernel_desc("k1_kernel", 256, 96)
    if not opt.nok2:
        s += '.p2align 6\n' + kernel_desc("k2_kernel", 80, 48)
    return s

def parse(argv=None):
    ap = argparse.ArgumentParser()
    ap.add_argument("-o", default="k2.s")
    ap.add_argument("--diag", action="store_true")
    ap.add_argument("--rt", action="store_true")
    ap.add_argument("--nok2", action="store_true")
    ap.add_argument("--storeflags", default="")
    ap.add_argument("--nt", default="")
    ap.add_argument("--loader", default="dma")
    ap.add_argument("--depth", type=int, default=48)
    ap.add_argument("--wahead", type=int, default=1)
    ap.add_argument("--lag", type=int, default=4)
    ap.add_argument("--barpos", type=int, default=10)
    ap.add_argument("--obar", type=int, default=1)
    ap.add_argument("--maxreads", type=int, default=2)
    ap.add_argument("--pfw", type=int, default=0)
    ap.add_argument("--pfk", type=int, default=0)
    ap.add_argument("--dbgstamp", action="store_true")
    ap.add_argument("--spin", type=int, default=0)
    ap.add_argument("--spin2", default="")
    ap.add_argument("--spinwg", type=int, default=0)
    return ap.parse_args(argv)

if __name__ == "__main__":
    opt = parse()
    open(opt.o, "w").write(build(opt))
```

```python
import sys, argparse
from asmlib import *
from gen2 import Sched, run_phase, srd
import gen1

LDS_TOTAL = 163840
LDS_Q = 0
LDS_P = [0, 8192, 16384, 24576]
LDS_MAX = 32768 + 16384 * (37 % 8)
LDS_SUM = LDS_MAX
LDS_O = 0
WS_DIAG = 16 << 20

S_X, S_K, S_V, S_WQ, S_WO, S_WS = 20, 24, 28, 32, 36, 40
sWAVE = 3
sHQ, sB, sRH, sHKV = 44, 45, 46, 47
sC1 = 48
sT0, sT1, sT2, sT3 = 50, 51, 52, 53
sOFF = 54
sGRP = 56
sSTA, sSTB = 58, 60

NQ, NK, NV, NO = 14, 16, 16, 8
UQ0, UK0, UV0, UO0 = 0, NQ, NQ + NK, NQ + NK + NV
NU = NQ + NK + NV + NO
def ring16(j): return 32768 + 16384 * j
def unit_addr(u):
    if u < UO0: return ring16(u % 8), 16384
    t = u - UO0
    j0 = UO0 % 8
    assert j0 % 2 == 0
    return ring16((j0 + 2 * t) % 8), 28672
def x_addr(j): return (j % 4) * 8192
def v_unit(v):
    return v >> 2, (v >> 1) & 1, v & 1

class K1:
    def __init__(self, opt):
        self.o = opt
        self.a = Asm()
        self.nstamp_l = 0
        self.nstamp_c = 0
        self.bars = []
        self.stamp_names = []

    def stamp(self, which):
        if not self.o.diag: return
        a = self.a
        a("%s s[%d:%d]" % ("s_memrealtime" if self.o.rt else "s_memtime", sSTA, sSTA + 1))
        a("s_waitcnt lgkmcnt(0)")
        if which == "l":
            a("v_writelane_b32 v60, s%d, %d" % (sSTA, self.nstamp_l)); self.nstamp_l += 1
            assert self.nstamp_l <= 62
        else:
            a("v_writelane_b32 v15, s%d, %d" % (sSTA, self.nstamp_c)); self.nstamp_c += 1

    def prologue(self):
        a = self.a
        kernel_begin(a, "k1_kernel")
        a("s_cmp_ge_u32 s2, 256")
        a("s_cbranch_scc1 K1_END")
        a("s_load_dwordx16 s[4:19], s[0:1], 0")
        if self.o.diag:
            a("s_memrealtime s[%d:%d]" % (sSTB, sSTB + 1))
            a("s_memtime s[72:73]")
        a("v_lshrrev_b32 v1, 6, v0")
        a("v_and_b32 v0, 63, v0")
        a("v_readfirstlane_b32 s%d, v1" % sWAVE)
        a("s_and_b32 s%d, s2, 7" % sHKV)
        a("s_lshr_b32 s%d, s2, 5" % sB)
        a("s_bfe_u32 s%d, s2, 0x10004" % sT0)
        a("s_bfe_u32 s%d, s2, 0x10003" % sRH)
        a("s_lshl_b32 s%d, s%d, 1" % (sHQ, sHKV))
        a("s_add_u32 s%d, s%d, s%d" % (sHQ, sHQ, sT0))
        a("s_mov_b32 s%d, 0x3db8aa3b" % sC1)
        a("s_lshl_b32 s%d, s%d, 1" % (sGRP, sB))
        a("s_add_u32 s%d, s%d, s%d" % (sGRP, sGRP, sRH))
        a("s_mul_i32 s%d, s%d, 57344" % (sT0, sGRP))
        a("s_lshl_b32 s%d, s%d, 3" % (sT1, sB))
        a("s_add_u32 s%d, s%d, s%d" % (sT1, sT1, sHKV))
        a("s_lshl_b32 s%d, s%d, 18" % (sT1, sT1))
        a("s_lshl_b32 s%d, s%d, 9" % (sT2, sHQ))
        a("s_mul_i32 s%d, s%d, 229376" % (sT3, sHQ))
        a("s_waitcnt lgkmcnt(0)")
        srd(a, S_WQ, 10, sT2, 448 * 8192 - 15 * 512)
        srd(a, S_X, 4, sT0, 57344)
        a("s_cmp_ge_u32 s%d, 4" % sWAVE)
        a("s_cbranch_scc1 K1_LOADER")

    def rest_srds(self, loader):
        a = self.a
        if loader:
            srd(a, S_K, 6, sT1, 262144)
            srd(a, S_V, 8, sT1, 262144)
            srd(a, S_WO, 12, sT3, 229376)
        else:
            a("s_lshl_b32 s%d, s%d, 4" % (sT0, sGRP))
            a("s_add_u32 s%d, s%d, s%d" % (sT0, sT0, sHQ))
            a("s_mul_i32 s%d, s%d, 57344" % (sT0, sT0))
            srd(a, S_WS, 18, sT0, 57344)

    def loader(self):
        a = self.a; o = self.o
        a.label("K1_LOADER")
        a("s_sub_u32 s%d, s%d, 4" % (sWAVE, sWAVE))
        vWQ, vXX, vK0, vK1, vV, vXX2 = 16, 17, 18, 19, 20, 21
        vWO = 24
        vPW, vPK, vPV, vPO, vPO2, vPD, vPWA = 32, 33, 34, 35, 37, 36, 38
        vPX = 40
        sSLOT = 65
        sL4, sL1, sL7 = 62, 63, 64
        a("v_lshrrev_b32 v1, 3, v0")
        a("v_and_b32 v2, 7, v0")
        a("v_bfe_u32 v3, v0, 4, 1")
        a("v_lshlrev_b32 v3, 2, v3")
        a("v_xor_b32 v3, v2, v3")
        a("s_lshl_b32 s%d, s%d, 7" % (sT0, sWAVE))
        a("v_lshl_add_u32 v3, v3, 4, s%d" % sT0)
        a("v_lshl_add_u32 v%d, v1, 13, v3" % vWQ)
        a("s_lshl_b32 s%d, s%d, 12" % (sL4, sWAVE))
        a("v_lshrrev_b32 v4, 4, v0")
        a("v_xor_b32 v5, v2, v4")
        a("s_lshl_b32 s%d, s%d, 4" % (sT0, sWAVE))
        a("v_add_u32 v4, s%d, v1" % sT0)
        a("v_mul_u32_u24 v4, 896, v4")
        a("v_lshl_add_u32 v%d, v5, 4, v4" % vXX)
        a("v_xor_b32 v%d, 64, v%d" % (vXX2, vXX))
        a("v_add_u32 v%d, %d, v%d" % (vXX2, 8 * 896, vXX2))
        a("s_lshl_b32 s%d, s%d, 11" % (sL1, sWAVE))

        def flags(s):
            if s in (S_K, S_V) and "kv" in o.nt: return " nt"
            if s in (S_WQ, S_WO) and "w" in o.nt: return " nt"
            return ""
        def pieces(u):
            ad, sz = unit_addr(u)
            P = []
            if u < UK0:
                if u == 0:
                    P.append((S_X, vXX, 0, sL1, x_addr(0)))
                    P.append((S_X, vXX2, 0, sL1, x_addr(0) + 1024))
                elif u % 2 == 1 and u < 13:
                    j = (u + 1) // 2
                    P.append((S_X, vXX, j * 128, sL1, x_addr(j)))
                elif u % 2 == 0:
                    j = u // 2
                    P.append((S_X, vXX2, j * 128, sL1, x_addr(j) + 1024))
                for i in range(4): P.append((S_WQ, vWQ, u * 32 * 8192 + i * 65536, sL4, ad + i * 1024))
            elif u < UV0:
                k = u - UK0
                p, d, mb = k >> 3, (k >> 1) & 3, k & 1
                for i in range(4): P.append((S_K, vK1 if i & 1 else vK0, (64 * p + 32 * mb + 8 * i) * 512 + d * 128, sL4, ad + i * 1024))
            elif u < UO0:
                c, h, wp = v_unit(u - UV0)
                for i in range(4):
                    key = 128 * (2 * wp + (i >> 1)) + 32 * c + 16 * h + 8 * (i & 1)
                    P.append((S_V, vV, key * 512, sL4, ad + i * 1024))
            else:
                for j in range(7): P.append((S_WO, vWO + j, (u - UO0) * 28672, sL7, ad + j * 1024))
            return P
        issued = 0
        last_piece = {}
        partial = {}
        def issue(u, maxp=99):
            nonlocal issued
            P = pieces(u)
            k0 = partial.get(u, 0)
            n = 0
            for (s, v, soff, lb, lo) in P[k0:k0 + maxp]:
                a("s_add_u32 m0, s%d, %d" % (lb, lo))
                if soff == 0: a("s_nop 0"); so = "0"
                else: a("s_mov_b32 s%d, 0x%x" % (sOFF, soff)); so = "s%d" % sOFF
                a("buffer_load_dwordx4 v%d, s[%d:%d], %s offen%s lds" % (v, s, s + 3, so, flags(s)))
                issued += 1; n += 1
            partial[u] = k0 + n
            if partial[u] == len(P): last_piece[u] = issued
            return n
        def prefetch(kind, idx, count=True):
            nonlocal issued
            if kind == "wqa": s, v, so = S_WQ, vPWA, 0
            elif kind == "wq": s, v, so = S_WQ, vPW, 0
            elif kind == "x": s, v, so = S_X, vPX + idx, 0
            elif kind == "k": s, v, so = S_K, vPK, (128 * (idx >> 1) + 16 * (idx & 1)) * 512
            elif kind == "v": s, v, so = S_V, vPV, (128 * (idx >> 1) + 16 * (idx & 1)) * 512
            elif kind == "wo": s, v, so = S_WO, (vPO if idx == 0 else vPO2), 0
            if so: a("s_mov_b32 s%d, 0x%x" % (sOFF, so))
            a("buffer_load_dword v%d, v%d, s[%d:%d], %s offen%s" % (vPD, v, s, s + 3, ("s%d" % sOFF) if so else "0", o.pfflags))
            if count: issued += 1
        def pf_list(L, count=True):
            if not L: return
            a("s_mov_b64 exec, 0xffff")
            for kind, idx in L: prefetch(kind, idx, count)
            a("s_mov_b64 exec, -1")
        def burst(kind, slot):
            lab = a.newlabel("BURST")
            a("s_cmp_lg_u32 s%d, %d" % (sSLOT, slot))
            a("s_cbranch_scc1 %s" % lab)
            pf_list([(kind, r) for r in range(8)], count=False)
            a.label(lab)
        sched = self.pf_schedule()
        if o.diag2: self.stamp("l")
        issue(0)
        if o.diag2: self.stamp("l")
        a("s_lshl_b32 s%d, s%d, 4" % (sT0, sWAVE))
        a("v_add_u32 v9, s%d, v0" % sT0)
        a("v_lshlrev_b32 v7, 4, v9")
        a("v_add_u32 v7, s%d, v7" % sGRP)
        a("v_lshrrev_b32 v4, 2, v7")
        a("v_lshlrev_b32 v4, 13, v4")
        a("v_and_b32 v%d, 3, v7" % vPWA)
        a("v_lshl_add_u32 v%d, v%d, 7, v4" % (vPWA, vPWA))
        a("v_add_u32 v%d, 0x200000, v%d" % (vPW, vPWA))
        a("v_lshlrev_b32 v8, 7, v9")
        a("s_and_b32 s%d, s%d, 1" % (sT0, sHQ))
        a("s_mul_i32 s%d, s%d, %d" % (sT0, sT0, 224 * 128))
        a("v_add_u32 v%d, s%d, v8" % (vPX, sT0))
        for i in range(1, 4): a("v_add_u32 v%d, %d, v%d" % (vPX + i, 8192 * i, vPX))
        st = sched.get("START", [])
        if o.diag2: self.stamp("l")
        pf_list([p for p in st if p[0] in ("wqa", "wq", "x")])
        if o.diag2: self.stamp("l")
        self.rest_srds(True)
        first = list(range(o.nfirst))
        for u in first[1:]: issue(u)
        if o.diag2: self.stamp("l")
        a("s_bfe_u32 s%d, s2, 0x20003" % sT0)
        a("s_lshl_b32 s%d, s%d, 1" % (sSLOT, sT0))
        a("s_and_b32 s%d, s%d, 1" % (sT2, sB))
        a("s_add_u32 s%d, s%d, s%d" % (sSLOT, sSLOT, sT2))
        a("s_lshl_b32 s%d, s%d, 14" % (sT1, sT0))
        a("v_add_u32 v%d, s%d, v8" % (vPK, sT1))
        a("v_mov_b32 v%d, v%d" % (vPV, vPK))
        a("s_mul_i32 s%d, s%d, 14336" % (sT1, sGRP))
        a("v_add_u32 v%d, s%d, v8" % (vPO, sT1))
        a("v_add_u32 v%d, 0x2000, v%d" % (vPO2, vPO))
        a("v_lshrrev_b32 v4, 4, v0")
        a("v_xor_b32 v5, v2, v4")
        a("v_lshlrev_b32 v5, 4, v5")
        a("s_lshl_b32 s%d, s%d, 16" % (sT0, sWAVE))
        a("v_add_u32 v5, s%d, v5" % sT0)
        a("v_lshl_add_u32 v%d, v1, 9, v5" % vK0)
        a("v_xor_b32 v%d, 64, v%d" % (vK1, vK0))
        a("v_lshl_add_u32 v%d, v1, 9, v3" % vV)
        def after_point(nm):
            L = sched.get(nm, [])
            pf_list([p for p in L if p[0] in ("wqa", "wq", "x", "k", "v", "wo")])
            for kind, idx in L:
                if kind in ("kb", "vb"): burst(kind[0], idx)
        sched["START2"] = [p for p in st if p[0] not in ("wqa", "wq", "x")]
        after_point("START2")
        a("s_mul_i32 s%d, s%d, 7168" % (sL7, sWAVE))
        a("s_mul_i32 s%d, s%d, 448" % (sT0, sWAVE))
        a("v_add_u32 v6, s%d, v0" % sT0)
        for j in range(7):
            a("v_add_u32 v7, %d, v6" % (64 * j))
            a("v_mul_u32_u24 v8, 9363, v7")
            a("v_lshrrev_b32 v8, 19, v8")
            a("v_bfe_u32 v8, v8, 1, 1")
            a("v_lshlrev_b32 v8, 2, v8")
            a("v_xor_b32 v8, v7, v8")
            a("v_lshlrev_b32 v%d, 4, v8" % (vWO + j))
        self.stamp("l")
        bars = self.bars
        freed = {fr: k for k, (nm, pub, fr) in enumerate(bars) if fr is not None}
        avail = {}
        for u in range(NU):
            ad, sz = unit_addr(u)
            k = -1
            for w in range(u):
                a2, s2 = unit_addr(w)
                if ad < a2 + s2 and a2 < ad + sz: k = max(k, freed[w])
            if u < UK0 and (u + 1) // 2 >= 4 and u < 13:
                k = max(k, freed[2 * ((u + 1) // 2 - 4) + 1])
            if u == 37: k = max(k, [i for i, b in enumerate(bars) if b[0] == "X3"][0])
            if u == 45: k = max(k, [i for i, b in enumerate(bars) if b[0] == "B38"][0])
            avail[u] = k
        nxt = len(first)
        assert all(avail[u] < 0 for u in first)
        skip = set("B%d" % int(x) for x in o.skip.split(",") if x)
        drain = set("B%d" % int(x) for x in o.drain.split(",") if x)
        cur_pub = 0
        tgt = {}
        for item in o.tgt.split(","):
            if item:
                w_, v_ = item.split(":")
                tgt[w_ if w_[0] in "XI" else "B" + w_] = int(v_)
        bud = {}
        for item in o.bud.split(","):
            if item:
                w_, v_ = item.split(":")
                bud[w_ if w_[0] in "XI" else "B" + w_] = int(v_)
        for k, (nm, pub, fr) in enumerate(bars):
            if nm in drain:
                a("s_waitcnt vmcnt(0)")
            elif pub is not None:
                assert pub in last_piece, (nm, pub)
                a("s_waitcnt vmcnt(%d)" % min(63, issued - last_piece[pub]))
            if pub is not None: cur_pub = pub
            rng = [int(x) for x in o.srange.split(",")] if o.srange else None
            if rng and rng[0] <= k < rng[1]: self.stamp("l")
            a("s_barrier")
            if rng:
                if rng[0] <= k < rng[1]: self.stamp("l"); self.stamp_names.append(nm)
            elif o.diag and (nm == "INIT" or nm[0] == "X" or (nm[0] == "B" and int(nm[1:]) % 2 == 1 and int(nm[1:]) < 100)):
                self.stamp("l")
            after_point(nm)
            la = o.lao if cur_pub >= UO0 - 1 else o.la
            target = tgt.get(nm, cur_pub + la)
            budget = bud.get(nm, o.budget if cur_pub < UO0 - 1 else o.budo)
            nextpub = [b[1] for b in bars[k + 1:] if b[1] is not None]
            must = nextpub[0] if nextpub else -1
            while nxt < NU and avail[nxt] <= k and (nxt <= must or (budget > 0 and nxt <= target)):
                n = issue(nxt, 99 if nxt <= must else budget)
                budget -= n
                if nxt in last_piece: nxt += 1
        assert nxt == NU
        if o.diag:
            a("s_memrealtime s[%d:%d]" % (sSTA, sSTA + 1))
            a("s_waitcnt lgkmcnt(0)")
            a("v_writelane_b32 v60, s72, 60")
            a("v_writelane_b32 v60, s%d, 62" % sSTB)
            a("v_writelane_b32 v60, s%d, 63" % sSTA)
            self.diag_store(60, 4)
        a("s_endpgm")

    def pf_schedule(self):
        o = self.o
        sched = {}
        if not o.pf: return sched
        for item in o.pf.split(","):
            where, what = item.split(":")
            L = sched.setdefault(where if where in ("START", "INIT") or where[0] == "X" else "B" + where, [])
            for w in what.split("+"):
                L.append((w.rstrip("0123456789"), int(w[len(w.rstrip("0123456789")):] or 0)))
        return sched

    def diag_store(self, vreg, waveadd):
        a = self.a
        a("s_lshl_b32 s%d, s2, 3" % sT0)
        a("s_add_u32 s%d, s%d, s%d" % (sT0, sT0, sWAVE))
        a("s_add_u32 s%d, s%d, %d" % (sT0, sT0, waveadd))
        a("s_lshl_b32 s%d, s%d, 8" % (sT0, sT0))
        a("s_add_u32 s%d, s%d, %d" % (sT0, sT0, WS_DIAG))
        a("s_add_u32 s68, s18, s%d" % sT0)
        a("s_addc_u32 s69, s19, 0")
        a("s_mov_b32 s70, 256")
        a("s_mov_b32 s71, 0x00020000")
        a("v_lshlrev_b32 v61, 2, v0")
        a("buffer_store_dword v%d, v61, s[68:71], 0 offen" % vreg)
        a("s_waitcnt vmcnt(0)")

    def barrier(self, name, pub=None, free=None):
        self.a("s_barrier")
        self.bars.append((name, pub, free))

    def compute(self):
        a = self.a; o = self.o
        sc = Sched(a)
        self.rest_srds(False)
        vLIN = 2
        pTR = [4, 5]
        pX = [6, 7, 60, 61]
        pK = [4, 5, 6, 7]
        aA = [8, 9, 10, 11]
        aX = [12, 13]
        SETS = [dict(A=[16, 20], B=[24, 28]), dict(A=[32, 36], B=[40, 44])]
        ACCQ, ACCS, ACCO = 64, 128, 128
        vM = [48, 49]; vSUM = [50, 51]
        vST, vSTR, vPW, vTMP = 52, 53, 54, 55
        vSTA, vSTB = 52, 53

        def mfma(acc, A, B, first):
            return "v_mfma_f32_32x32x16_bf16 v[%d:%d], v[%d:%d], v[%d:%d], %s" % (
                acc, acc + 15, A, A + 3, B, B + 3, "0" if first else "v[%d:%d]" % (acc, acc + 15))
        def tr_pattern(dst, hshift):
            L = ["v_bfe_u32 v3, v0, 2, 2", "v_lshlrev_b32 v3, 7, v3", "v_lshrrev_b32 v1, 5, v0",
                 "v_lshl_add_u32 v3, v1, %d, v3" % hshift, "v_bfe_u32 v1, v0, 4, 1", "v_lshl_add_u32 v3, v1, 5, v3",
                 "v_and_b32 v1, 3, v0", "v_lshl_add_u32 v3, v1, 3, v3", "v_bfe_u32 v1, v0, 3, 1", "v_lshl_add_u32 v3, v1, 6, v3",
                 "s_lshl_b32 s%d, s%d, 12" % (sT0, sWAVE), "v_add_u32 v%d, s%d, v3" % (dst[0], sT0),
                 "v_xor_b32 v%d, 64, v%d" % (dst[1], dst[0])]
            return L
        def setaddr(dst, pat, base):
            return ["v_add_u32 v%d, 0x%x, v%d" % (d, base, p) if base else "v_mov_b32 v%d, v%d" % (d, p) for d, p in zip(dst, pat)]

        a("v_lshlrev_b32 v%d, 4, v0" % vLIN)
        for l in tr_pattern(pTR, 10): a(l)
        a("v_and_b32 v3, 31, v0")
        a("v_bfe_u32 v1, v0, 1, 3")
        a("v_lshrrev_b32 v14, 5, v0")
        a("v_xor_b32 v1, v1, v14")
        a("v_lshlrev_b32 v1, 4, v1")
        a("v_lshl_add_u32 v%d, v3, 7, v1" % pX[0])
        for j in (1, 2, 3): a("v_xor_b32 v%d, %d, v%d" % (pX[j], j << 5, pX[0]))

        def two_k_phase(name, u0, nunits, loadA, loadB, setup, accf, groups, extra_events=None, pos=None, gate=None):
            pos = o.pos if pos is None else pos
            mf, loads, events = [], [], {}
            seen = set()
            def fid(tp, g, idx): return (name, tp, g, idx)
            nk = nunits * 2
            for g in range(nk):
                S = SETS[g & 1]
                for (mb, nb) in ((0, 0), (0, 1), (1, 0), (1, 1)):
                    acc = accf(mb, nb)
                    mf.append(dict(text=mfma(acc, S['A'][mb], S['B'][nb], acc not in seen), needs=[fid('A', g, mb), fid('B', g, nb)]))
                    seen.add(acc)
            for g in range(nk):
                S = SETS[g & 1]
                u, ks = u0 + g // 2, g % 2
                for n_, (tp, idx) in enumerate((('A', 0), ('B', 0), ('B', 1), ('A', 1))):
                    last = {('A', 0): 1, ('B', 0): 2, ('A', 1): 3, ('B', 1): 3}[(tp, idx)]
                    after = (g - 2) * 4 + last if g >= 2 else -1
                    ins = loadA(u, ks, idx, S['A'][idx]) if tp == 'A' else loadB(u, ks, idx, S['B'][idx])
                    pre_ins = setup(u) if (ks == 0 and n_ == 0) else []
                    evk = ("pub", u) if u > u0 else None
                    if gate and u in gate and tp == 'B': evk = gate[u]
                    loads.append(dict(id=fid(tp, g, idx), instrs=ins, valu=pre_ins, after_mf=after, after_ev=evk, pre=(g < 2)))
            for s_ in range(nunits):
                u = u0 + s_
                def ev(u=u):
                    sc.wait_all()
                    self.barrier("B%d" % u, pub=(u + 1 if u + 1 < NU else None), free=u)
                    return ("pub", u + 1)
                events.setdefault(s_ * 8 + pos, []).append(ev)
            for k_, v_ in (extra_events or {}).items(): events.setdefault(k_, []).extend(v_)
            run_phase3(sc, mf, loads, events, groups, o.maxreads)

        nop16 = lambda: (a("s_nop 7"), a("s_nop 7"))

        self.stamp("c")
        self.barrier("INIT", pub=0)
        self.stamp("c")

        def q_setup(u):
            ad = unit_addr(u)[0]
            return setaddr(aA[:2], pTR, ad)
        def q_loadA(u, ks, mb, r):
            return ["ds_read_b64_tr_b16 v[%d:%d], v%d offset:%d" % (r, r + 1, aA[mb], ks * 2048),
                    "ds_read_b64_tr_b16 v[%d:%d], v%d offset:%d" % (r + 2, r + 3, aA[mb], ks * 2048 + 512)]
        def q_loadB(u, ks, nb, r):
            return ["ds_read_b128 v[%d:%d], v%d offset:%d" % (r, r + 3, pX[2 * (u & 1) + ks], x_addr(u // 2) + nb * 4096)]
        fl = ["v_and_b32 v%d, 31, v0" % vSTR, "v_lshlrev_b32 v%d, 5, v%d" % (vSTR, vSTR),
              "v_lshrrev_b32 v3, 5, v0", "v_lshl_add_u32 v3, v3, 2, v%d" % vSTR,
              "s_lshl_b32 s%d, s%d, 3" % (sT0, sWAVE), "v_add_u32 v%d, s%d, v3" % (vST, sT0),
              "v_add_u32 v%d, 0x%x, v%d" % (vST, LDS_MAX, vST), "v_add_u32 v%d, 0x%x, v%d" % (vSTR, LDS_MAX, vSTR),
              "s_lshl_b32 s%d, s%d, 11" % (sT0, sWAVE), "v_add_u32 v%d, s%d, v%d" % (vPW, sT0, vLIN),
              "s_lshl_b32 s%d, s%d, 13" % (sT0, sWAVE), "v_add_u32 v%d, s%d, v%d" % (vTMP, sT0, vLIN),
              "v_and_b32 v3, 31, v0", "v_bfe_u32 v1, v0, 1, 3", "v_lshrrev_b32 v14, 5, v0", "v_xor_b32 v1, v1, v14",
              "v_lshlrev_b32 v1, 4, v1", "v_lshl_add_u32 v3, v3, 7, v1",
              "s_lshl_b32 s%d, s%d, 12" % (sT0, sWAVE), "v_add_u32 v56, s%d, v3" % sT0,
              "v_xor_b32 v57, 32, v56", "v_xor_b32 v58, 64, v56", "v_xor_b32 v59, 0x60, v56"]
        two_k_phase("Q", 0, NQ, q_loadA, q_loadB, q_setup, lambda mb, nb: ACCQ + (mb * 2 + nb) * 16, [dict(items=fl, start=16, end=90)])
        pK = [56, 57, 58, 59]
        nop16()
        self.stamp("c")
        for mb in range(2):
            for nb in range(2):
                acc = ACCQ + (mb * 2 + nb) * 16
                for half in range(2):
                    b0 = acc + 8 * half
                    for j in range(4):
                        a("v_cvt_pk_bf16_f32 v%d, v%d, v%d" % (b0 + j, b0 + 2 * j, b0 + 2 * j + 1))
                    a("s_nop 1")
                    a("v_permlane32_swap_b32 v%d, v%d" % (b0, b0 + 2))
                    a("v_permlane32_swap_b32 v%d, v%d" % (b0 + 1, b0 + 3))
                    sc.ds("ds_write_b128 v%d, v[%d:%d] offset:%d" % (vTMP, b0, b0 + 3, LDS_Q + ((2 * mb + half) * 2 + nb) * 1024))
        sc.wait_all()
        self.barrier("X1")
        self.stamp("c")

        SA = [16, 20, 24, 28]
        SB = [[64 + (ks * 2 + nb) * 4 for nb in range(2)] for ks in range(4)]
        mf, loads, events = [], [], {}
        seen = set()
        for k in range(NK):
            p, d, mb = k >> 3, (k >> 1) & 3, k & 1
            for ks in range(4):
                for nb in range(2):
                    acc = ACCS + ((2 * p + mb) * 2 + nb) * 16
                    mf.append(dict(text=mfma(acc, SA[ks], SB[ks][nb], acc not in seen),
                                   needs=[("S", "A", k, ks), ("S", "B", k >> 1, ks, nb)]))
                    seen.add(acc)
        for k in range(NK):
            p, d, mb = k >> 3, (k >> 1) & 3, k & 1
            u = UK0 + k
            for ks in range(4):
                if mb == 0:
                    for nb in range(2):
                        dd = k >> 1
                        after = (2 * dd - 1) * 8 + 2 * ks + nb if dd >= 1 else -1
                        loads.append(dict(id=("S", "B", dd, ks, nb), valu=[], after_mf=after, after_ev=None, pre=(k == 0),
                                          instrs=["ds_read_b128 v[%d:%d], v%d offset:%d" % (SB[ks][nb], SB[ks][nb] + 3, vLIN,
                                                                                           LDS_Q + ((d * 4 + ks) * 2 + nb) * 1024)]))
                after = (k - 1) * 8 + 2 * ks + 1 if k >= 1 else -1
                pre_ins = setaddr(aA, pK, unit_addr(u)[0]) if ks == 0 else []
                loads.append(dict(id=("S", "A", k, ks), valu=pre_ins, after_mf=after, after_ev=(("pub", u) if k > 0 else None), pre=(k == 0),
                                  instrs=["ds_read_b128 v[%d:%d], v%d offset:0" % (SA[ks], SA[ks] + 3, aA[ks])]))
        order = []
        byid = {l["id"]: l for l in loads}
        for k in range(NK):
            for ks in range(4):
                ids = []
                if (k & 1) == 0: ids += [("S", "B", k >> 1, ks, 0)]
                ids += [("S", "A", k, ks)]
                if (k & 1) == 0: ids += [("S", "B", k >> 1, ks, 1)]
                order += [byid[i] for i in ids]
        for k in range(NK):
            u = UK0 + k
            def ev(u=u):
                sc.wait_all()
                self.barrier("B%d" % u, pub=u + 1, free=u)
                return ("pub", u + 1)
            events.setdefault(k * 8 + o.spos, []).append(ev)
        def maxchain(nb, mbs, first):
            regs = [ACCS + (mb * 2 + nb) * 16 + r for mb in mbs for r in range(16)]
            d = vM[nb]; out = []
            i = 0
            if first:
                out.append("v_max3_f32 v%d, v%d, v%d, v%d" % (d, regs[0], regs[1], regs[2])); i = 3
            while i + 1 < len(regs):
                out.append("v_max3_f32 v%d, v%d, v%d, v%d" % (d, d, regs[i], regs[i + 1])); i += 2
            if i < len(regs): out.append("v_max_f32 v%d, v%d, v%d" % (d, d, regs[i]))
            return out
        f1 = []
        for x, y in zip(maxchain(0, (0, 1), True), maxchain(1, (0, 1), True)): f1 += [x, y]
        f2 = []
        for x, y in zip(maxchain(0, (2,), False), maxchain(1, (2,), False)): f2 += [x, y]
        groups = [dict(items=f1, start=70, end=110), dict(items=tr_pattern(pTR, 9), start=20, end=60),
                  dict(items=["s_nop 6"] + f2, start=124, end=127)]
        run_phase3(sc, mf, order, events, groups, o.maxreads)
        a("s_nop 7"); a("s_nop 3")
        self.stamp("c")
        for x, y in zip(maxchain(0, (3,), False), maxchain(1, (3,), False)): a(x); a(y)
        for nb in range(2):
            sc.ds("ds_write_b32 v%d, v%d offset:%d" % (vST, vM[nb], nb * 1024))
        sc.wait_all()
        self.barrier("X2")
        for nb in range(2):
            sc.ds("ds_read_b128 v[%d:%d], v%d offset:%d" % (16 + nb * 8, 19 + nb * 8, vSTR, nb * 1024))
            sc.ds("ds_read_b128 v[%d:%d], v%d offset:%d" % (20 + nb * 8, 23 + nb * 8, vSTR, nb * 1024 + 16))
        sc.wait_all()
        for nb in range(2):
            b = 16 + nb * 8
            a("v_max3_f32 v%d, v%d, v%d, v%d" % (vM[nb], b, b + 1, b + 2))
            a("v_max3_f32 v%d, v%d, v%d, v%d" % (vM[nb], vM[nb], b + 3, b + 4))
            a("v_max3_f32 v%d, v%d, v%d, v%d" % (vM[nb], vM[nb], b + 5, b + 6))
            a("v_max_f32 v%d, v%d, v%d" % (vM[nb], vM[nb], b + 7))
            a("v_mul_f32 v%d, s%d, v%d" % (vM[nb], sC1, vM[nb]))

        def softmax_list(sub):
            c, h = sub >> 1, sub & 1
            regs = [(nb, ACCS + (c * 2 + nb) * 16 + 8 * h + r) for nb in range(2) for r in range(8)]
            L = []
            def fin(nb):
                b0 = ACCS + (c * 2 + nb) * 16 + 8 * h
                for j in range(4):
                    L.append("v_cvt_pk_bf16_f32 v%d, v%d, v%d" % (b0 + j, b0 + 2 * j, b0 + 2 * j + 1))
            for i in range(16 + 4):
                if i < 16:
                    nb, r = regs[i]; L.append("v_fma_f32 v%d, v%d, s%d, -v%d" % (r, r, sC1, vM[nb]))
                if 0 <= i - 2 < 16:
                    nb, r = regs[i - 2]; L.append("v_exp_f32 v%d, v%d" % (r, r))
                if 0 <= i - 4 < 16:
                    nb, r = regs[i - 4]
                    if sub == 0 and (i - 4) % 8 == 0: L.append("v_mov_b32 v%d, v%d" % (vSUM[nb], r))
                    else: L.append("v_add_f32 v%d, v%d, v%d" % (vSUM[nb], vSUM[nb], r))
                    if i - 4 == 7: fin(0)
            fin(1)
            return L
        def p_write1(sub, nb):
            c, h = sub >> 1, sub & 1
            b0 = ACCS + (c * 2 + nb) * 16 + 8 * h
            sc.ds("ds_write_b128 v%d, v[%d:%d] offset:%d" % (vPW, b0, b0 + 3, LDS_P[sub % 4] + nb * 1024))
        def p_write(sub):
            for nb in range(2): p_write1(sub, nb)
        for sub in range(o.t0subs):
            for f in softmax_list(sub): a(f)
            p_write(sub)
        sc.wait_all()
        self.barrier("X3")
        self.stamp("c")

        def v_setup(u): return setaddr(aA[:2], pTR, unit_addr(u)[0])
        def v_loadA(u, ks, mb, r):
            return ["ds_read_b64_tr_b16 v[%d:%d], v%d offset:%d" % (r, r + 1, aA[mb], ks * 2048),
                    "ds_read_b64_tr_b16 v[%d:%d], v%d offset:%d" % (r + 2, r + 3, aA[mb], ks * 2048 + 1024)]
        def v_loadB(u, ks, nb, r):
            c, h, wp = v_unit(u - UV0)
            return ["ds_read_b128 v[%d:%d], v%d offset:%d" % (r, r + 3, vLIN, LDS_P[(2 * c + h) % 4] + (2 * wp + ks) * 2048 + nb * 1024)]
        groups = []
        items = []
        for sub in range(4, 8): items += softmax_list(sub)
        if "nosoft" in o.exp: items = []
        groups.append(dict(items=items, start=0, end=7 * 8 + o.pos - 1))
        def window():
            if "nowrite" not in o.exp:
                for sub in range(4, 8): p_write(sub)
                for nb in range(2):
                    sc.ds("ds_write_b32 v%d, v%d offset:%d" % (vSTA, vSUM[nb], nb * 1024))
            return None
        wev = {7 * 8 + o.pos: [window]}
        def window_close():
            sc.wait_all()
            self.barrier("X5")
            return "X5"
        wev.setdefault(7 * 8 + o.wclose, []).append(window_close)
        def rd_sums():
            for nb in range(2):
                sc.ds("ds_read_b128 v[%d:%d], v%d offset:%d" % (128 + nb * 8, 131 + nb * 8, vSTB, nb * 1024))
                sc.ds("ds_read_b128 v[%d:%d], v%d offset:%d" % (132 + nb * 8, 135 + nb * 8, vSTB, nb * 1024 + 16), "sums")
        groups.append(dict(items=[rd_sums], start=8 * 8 + 1, end=8 * 8 + 1))
        fl = [lambda: sc.wait_frags(["sums"])]
        for nb in range(2):
            b = 128 + nb * 8
            fl.append("v_add_f32 v%d, v%d, v%d" % (b, b, b + 1))
            for k in range(2, 8): fl.append("v_add_f32 v%d, v%d, v%d" % (b, b, b + k))
        fl += ["v_rcp_f32 v%d, v128" % vSUM[0], "v_rcp_f32 v%d, v136" % vSUM[1]]
        groups.append(dict(items=fl, start=9 * 8 + 4, end=10 * 8 + 4))
        pW = [56, 57]; vOB = 58
        fl = ["v_bfe_u32 v1, v0, 2, 2", "v_lshrrev_b32 v14, 5, v0", "v_lshl_add_u32 v1, v14, 2, v1", "v_mul_u32_u24 v1, 896, v1",
              "v_bfe_u32 v14, v0, 4, 1", "v_lshl_add_u32 v1, v14, 5, v1", "v_and_b32 v14, 3, v0", "v_lshl_add_u32 v1, v14, 3, v1",
              "s_lshr_b32 s%d, s%d, 1" % (sT0, sWAVE), "s_mul_i32 s%d, s%d, 448" % (sT1, sT0),
              "v_add_u32 v1, s%d, v1" % sT1, "v_bfe_u32 v14, v0, 3, 1", "v_lshlrev_b32 v14, 6, v14",
              "s_cmp_eq_u32 s%d, 0" % sT0 + "\n" + "s_cselect_b32 s%d, 1, -1" % sT1, "v_mul_lo_u32 v14, v14, s%d" % sT1,
              "v_add_u32 v%d, v1, v14" % pW[0], "v_sub_u32 v%d, v1, v14" % pW[1],
              "s_and_b32 s%d, s%d, 1" % (sT0, sWAVE), "s_lshl_b32 s%d, s%d, 10" % (sT0, sT0),
              "s_add_u32 s%d, s%d, %d" % (sT0, sT0, LDS_O), "v_add_u32 v%d, s%d, v%d" % (vOB, sT0, vLIN)]
        groups.append(dict(items=fl, start=15 * 8 - 6, end=15 * 8 + 6))
        two_k_phase("V", UV0, NV, v_loadA, v_loadB, v_setup, lambda mb, nb: ACCQ + (mb * 2 + nb) * 16, groups, extra_events=wev,
                    gate={UV0 + 8: "X5"})
        nop16()
        self.stamp("c")
        for mb in range(2):
            for nb in range(2):
                acc = ACCQ + (mb * 2 + nb) * 16
                for r in range(16): a("v_mul_f32 v%d, v%d, v%d" % (acc + r, acc + r, vSUM[nb]))
                for half in range(2):
                    b0 = acc + 8 * half
                    for j in range(4):
                        a("v_cvt_pk_bf16_f32 v%d, v%d, v%d" % (b0 + j, b0 + 2 * j, b0 + 2 * j + 1))
                    sc.ds("ds_write_b128 v%d, v[%d:%d] offset:%d" % (vTMP, b0, b0 + 3, LDS_O + ((2 * mb + half) * 2 + nb) * 1024))
        sc.wait_all()
        self.barrier("X4")
        self.stamp("c")

        OA = [64 + 4 * i for i in range(7)]
        OB = [92, 96]
        aW = [8, 9]
        mf, loads, events = [], [], {}
        nk = 16
        for g in range(nk):
            for n in range(7):
                mf.append(dict(text=mfma(ACCO + 16 * n, OA[n], OB[g & 1], g == 0), needs=[("O", "A", g, n), ("O", "B", g)]))
        for g in range(nk):
            u, ks = UO0 + g // 2, g % 2
            ev = ("pub", u) if u > UO0 else None
            loads.append(dict(id=("O", "B", g), valu=[], instrs=["ds_read_b128 v[%d:%d], v%d offset:%d" % (OB[g & 1], OB[g & 1] + 3, vOB, g * 2048)],
                              after_mf=((g - 2) * 7 + 6 if g >= 2 else -1), after_ev=None, pre=(g == 0)))
            for n in range(7):
                off = 16 * ks * 896 + n * 64
                pre_ins = setaddr(aW, pW, unit_addr(u)[0]) if (ks == 0 and n == 0) else []
                loads.append(dict(id=("O", "A", g, n), valu=pre_ins,
                                  instrs=["ds_read_b64_tr_b16 v[%d:%d], v%d offset:%d" % (OA[n], OA[n] + 1, aW[n & 1], off),
                                          "ds_read_b64_tr_b16 v[%d:%d], v%d offset:%d" % (OA[n] + 2, OA[n] + 3, aW[n & 1], off + 8 * 896)],
                                  after_mf=((g - 1) * 7 + n if g >= 1 else -1), after_ev=ev, pre=(g == 0)))
        for s_ in range(NO - 1):
            u = UO0 + s_
            def ev(u=u):
                sc.wait_all()
                self.barrier("B%d" % u, pub=u + 1, free=u)
                return ("pub", u + 1)
            events[(2 * s_ + 1) * 7 + o.obar] = [ev]
        run_phase3(sc, mf, loads, events, [], o.maxreads + 1)
        nop16()
        self.stamp("c")
        a("s_mul_i32 s%d, s%d, 14336" % (sT0, sWAVE))
        a("v_add_u32 v3, s%d, v%d" % (sT0, vLIN))
        for n in range(7):
            for half in range(2):
                b0 = ACCO + 16 * n + 8 * half
                for j in range(4):
                    a("v_cvt_pk_bf16_f32 v%d, v%d, v%d" % (b0 + j, b0 + 2 * j, b0 + 2 * j + 1))
                idx = n * 2 + half
                a("s_mov_b32 s%d, %d" % (sOFF, idx * 1024))
                a("buffer_store_dwordx4 v[%d:%d], v3, s[%d:%d], s%d offen%s" % (b0, b0 + 3, S_WS, S_WS + 3, sOFF, o.storeflags))
        if o.diag:
            a("s_waitcnt vmcnt(0)")
            a("s_memrealtime s[%d:%d]" % (sSTA, sSTA + 1))
            a("s_memtime s[74:75]")
            a("s_waitcnt lgkmcnt(0)")
            a("s_sub_u32 s74, s74, s72")
            a("v_writelane_b32 v15, s74, 61")
            a("v_writelane_b32 v15, s72, 60")
            a("v_writelane_b32 v15, s%d, 62" % sSTB)
            a("v_writelane_b32 v15, s%d, 63" % sSTA)
            self.diag_store(15, 0)
        a.label("K1_END")
        a("s_endpgm")

    def gen(self):
        self.prologue()
        self.compute()
        self.loader()
        return self.a.text()

def run_phase3(sc, mf, loads, events, groups, maxreads=2):
    a = sc.a
    pend = list(loads)
    evdone = set()
    n = len(mf)
    groups = [dict(items=list(g["items"]), start=g["start"], end=min(g["end"], n - 1)) for g in groups]
    def ok(l, i):
        return l["after_mf"] <= i and (l.get("after_ev") is None or l["after_ev"] in evdone)
    def pop():
        l = pend.pop(0)
        for t in l.get("valu", []): a(t)
        for t in l["instrs"]: sc.ds(t, l["id"])
        return len(l["instrs"])
    while pend and pend[0].get("pre", False):
        pop()
    for i, m in enumerate(mf):
        ids = set(p["id"] for p in pend)
        while any(f in ids for f in m["needs"]):
            assert ok(pend[0], i - 1), (i, pend[0])
            pop()
            ids = set(p["id"] for p in pend)
        sc.wait_frags(m["needs"])
        a(m["text"])
        for ev in events.get(i, []):
            key = ev()
            if key is not None: evdone.add(key)
        k = 0
        while pend and k < maxreads and ok(pend[0], i):
            k += pop()
        for g in groups:
            if g["items"] and i >= g["start"]:
                left = max(1, g["end"] - i + 1)
                cost = lambda f: 4 if callable(f) else (8 if f.startswith(("v_exp", "v_rcp")) else (2 if f.startswith("s_") else 4))
                total = sum(cost(f) for f in g["items"])
                g["credit"] = g.get("credit", 0.0) + total / float(left)
                while g["items"] and (left == 1 or g["credit"] >= cost(g["items"][0]) * 0.5):
                    f = g["items"].pop(0)
                    g["credit"] -= cost(f)
                    f() if callable(f) else a(f)
                if left > 1: g["credit"] = min(g["credit"], 0.0) if not g["items"] else g["credit"]
    assert all(not g["items"] for g in groups), "fillers left"
    assert not pend, "loads left"

def build(opt):
    k1 = K1(opt).gen()
    k2 = gen1.gen_k2(opt)
    s = HEADER
    s += "; @launch kernel=k1_kernel grid=(256,1,1) block=(512,1,1) lds=%d\n" % LDS_TOTAL
    if not opt.nok2:
        s += "; @launch kernel=k2_kernel grid=(224,1,1) block=(256,1,1) lds=0\n"
    s += '.amdgcn_target "amdgcn-amd-amdhsa--gfx950"\n.text\n'
    s += k1
    if not opt.nok2: s += k2
    s += '.section .rodata,"a"\n.p2align 6\n' + kernel_desc("k1_kernel", 256, 96)
    if not opt.nok2:
        s += '.p2align 6\n' + kernel_desc("k2_kernel", 80, 48)
    return s

def parse(argv=None):
    ap = argparse.ArgumentParser()
    ap.add_argument("-o", default="k3.s")
    ap.add_argument("--diag", action="store_true")
    ap.add_argument("--rt", action="store_true")
    ap.add_argument("--nok2", action="store_true")
    ap.add_argument("--storeflags", default="")
    ap.add_argument("--nt", default="")
    ap.add_argument("--pos", type=int, default=2)
    ap.add_argument("--spos", type=int, default=2)
    ap.add_argument("--obar", type=int, default=1)
    ap.add_argument("--maxreads", type=int, default=2)
    ap.add_argument("--nfirst", type=int, default=3)
    ap.add_argument("--exp", default="")
    ap.add_argument("--wclose", type=int, default=4)
    ap.add_argument("--srange", default="")
    ap.add_argument("--wspread", type=int, default=4)
    ap.add_argument("--la", type=int, default=3)
    ap.add_argument("--lao", type=int, default=2)
    ap.add_argument("--skip", default="")
    ap.add_argument("--drain", default="")
    ap.add_argument("--tgt", default="11:16,12:16,13:16,27:31,28:31,29:31,X2:34,X3:41,30:41,31:41,32:41,33:41,34:41,35:41,36:41,37:41,X5:47,38:47,39:47,40:47,41:47,42:47,43:47,44:47,45:47")
    ap.add_argument("--bud", default="INIT:10,0:8,1:8,2:6,X2:12,36:0,37:0,44:0,45:0,13:0,29:0")
    ap.add_argument("--budget", type=int, default=5)
    ap.add_argument("--budo", type=int, default=7)
    ap.add_argument("--t0subs", type=int, default=4)
    ap.add_argument("--early", type=int, default=5)
    ap.add_argument("--early1", type=int, default=1)
    ap.add_argument("--diag2", action="store_true")
    ap.add_argument("--maxissue", type=int, default=2)
    ap.add_argument("--pf", default="")
    ap.add_argument("--pfflags", default="")
    ap.add_argument("--dbgstamp", action="store_true")
    ap.add_argument("--spin", type=int, default=0)
    ap.add_argument("--spin2", default="")
    ap.add_argument("--spinwg", type=int, default=0)
    return ap.parse_args(argv)

if __name__ == "__main__":
    opt = parse()
    open(opt.o, "w").write(build(opt))
```

```python
import sys, argparse
from asmlib import *
from gen2 import Sched, run_phase, srd
import gen1

LDS_TOTAL = 163840
LDS_Q = 0
LDS_P = [0, 8192, 16384, 24576]
LDS_MAX = 32768 + 16384 * (37 % 8)
LDS_SUM = LDS_MAX
LDS_O = 0
WS_DIAG = 16 << 20

S_X, S_K, S_V, S_WQ, S_WO, S_WS = 20, 24, 28, 32, 36, 40
sWAVE = 3
sHQ, sB, sRH, sHKV = 44, 45, 46, 47
sC1 = 48
sT0, sT1, sT2, sT3 = 50, 51, 52, 53
sOFF = 54
sGRP = 56
sSTA, sSTB = 58, 60

NQ, NK, NV, NO = 14, 16, 16, 8
UQ0, UK0, UV0, UO0 = 0, NQ, NQ + NK, NQ + NK + NV
NU = NQ + NK + NV + NO
def ring16(j): return 32768 + 16384 * j
def unit_addr(u):
    if u < UO0: return ring16(u % 8), 16384
    t = u - UO0
    j0 = UO0 % 8
    assert j0 % 2 == 0
    return ring16((j0 + 2 * t) % 8), 28672
def x_addr(j): return (j % 4) * 8192
def v_unit(v):
    return v >> 2, (v >> 1) & 1, v & 1

class K1:
    def __init__(self, opt):
        self.o = opt
        self.a = Asm()
        self.nstamp_l = 0
        self.nstamp_c = 0
        self.bars = []
        self.stamp_names = []

    def stamp(self, which):
        if not self.o.diag: return
        a = self.a
        a("%s s[%d:%d]" % ("s_memrealtime" if self.o.rt else "s_memtime", sSTA, sSTA + 1))
        a("s_waitcnt lgkmcnt(0)")
        if which == "l":
            a("v_writelane_b32 v60, s%d, %d" % (sSTA, self.nstamp_l)); self.nstamp_l += 1
            assert self.nstamp_l <= 62
        else:
            a("v_writelane_b32 v15, s%d, %d" % (sSTA, self.nstamp_c)); self.nstamp_c += 1

    def prologue(self):
        a = self.a
        kernel_begin(a, "k1_kernel")
        a("s_cmp_ge_u32 s2, 256")
        a("s_cbranch_scc1 K1_EXIT")
        a("s_load_dwordx16 s[4:19], s[0:1], 0")
        if self.o.codepf:
            a("s_getpc_b64 s[76:77]")
            a("s_and_b32 s76, s76, 0xffffff00")
            a("s_mov_b32 s78, K_ALL_END-k1_kernel")
            a("s_mov_b32 s79, 0x00020000")
            a("v_lshlrev_b32 v62, 7, v0")
            a("v_cmp_gt_u32 vcc, 256, v0")
            a("s_and_saveexec_b64 s[80:81], vcc")
            a("s_cbranch_execz K1_NOPF")
            a("buffer_load_dword v63, v62, s[76:79], 0 offen")
            a.label("K1_NOPF")
            a("s_mov_b64 exec, s[80:81]")
        if self.o.diag:
            a("s_memrealtime s[%d:%d]" % (sSTB, sSTB + 1))
            a("s_memtime s[72:73]")
        a("v_lshrrev_b32 v1, 6, v0")
        a("v_and_b32 v0, 63, v0")
        a("v_readfirstlane_b32 s%d, v1" % sWAVE)
        a("s_and_b32 s%d, s2, 7" % sHKV)
        a("s_lshr_b32 s%d, s2, 5" % sB)
        a("s_bfe_u32 s%d, s2, 0x10004" % sT0)
        a("s_bfe_u32 s%d, s2, 0x10003" % sRH)
        a("s_lshl_b32 s%d, s%d, 1" % (sHQ, sHKV))
        a("s_add_u32 s%d, s%d, s%d" % (sHQ, sHQ, sT0))
        a("s_mov_b32 s%d, 0x3db8aa3b" % sC1)
        a("s_lshl_b32 s%d, s%d, 1" % (sGRP, sB))
        a("s_add_u32 s%d, s%d, s%d" % (sGRP, sGRP, sRH))
        a("s_mul_i32 s%d, s%d, 57344" % (sT0, sGRP))
        a("s_lshl_b32 s%d, s%d, 3" % (sT1, sB))
        a("s_add_u32 s%d, s%d, s%d" % (sT1, sT1, sHKV))
        a("s_lshl_b32 s%d, s%d, 18" % (sT1, sT1))
        a("s_lshl_b32 s%d, s%d, 9" % (sT2, sHQ))
        a("s_mul_i32 s%d, s%d, 229376" % (sT3, sHQ))
        a("s_waitcnt lgkmcnt(0)")
        srd(a, S_WQ, 10, sT2, 448 * 8192 - 15 * 512)
        srd(a, S_X, 4, sT0, 57344)
        a("s_cmp_lt_u32 s%d, 4" % sWAVE)
        a("s_cbranch_scc1 K1_COMPUTE")

    def rest_srds(self, loader):
        a = self.a
        if loader:
            srd(a, S_K, 6, sT1, 262144)
            srd(a, S_V, 8, sT1, 262144)
            srd(a, S_WO, 12, sT3, 229376)
        else:
            a("s_lshl_b32 s%d, s%d, 4" % (sT0, sGRP))
            a("s_add_u32 s%d, s%d, s%d" % (sT0, sT0, sHQ))
            a("s_mul_i32 s%d, s%d, 57344" % (sT0, sT0))
            srd(a, S_WS, 18, sT0, 57344)

    def loader(self):
        a = self.a; o = self.o
        a.label("K1_LOADER")
        a("s_sub_u32 s%d, s%d, 4" % (sWAVE, sWAVE))
        vWQ, vXX, vK0, vK1, vV, vXX2 = 16, 17, 18, 19, 20, 21
        vWO = 24
        vPW, vPK, vPV, vPO, vPO2, vPD, vPWA = 32, 33, 34, 35, 37, 36, 38
        vPX = 40
        sSLOT = 65
        sL4, sL1, sL7 = 62, 63, 64
        a("v_lshrrev_b32 v1, 3, v0")
        a("v_and_b32 v2, 7, v0")
        a("v_bfe_u32 v3, v0, 4, 1")
        a("v_lshlrev_b32 v3, 2, v3")
        a("v_xor_b32 v3, v2, v3")
        a("s_lshl_b32 s%d, s%d, 7" % (sT0, sWAVE))
        a("v_lshl_add_u32 v3, v3, 4, s%d" % sT0)
        a("v_lshl_add_u32 v%d, v1, 13, v3" % vWQ)
        a("s_lshl_b32 s%d, s%d, 12" % (sL4, sWAVE))
        a("v_lshrrev_b32 v4, 4, v0")
        a("v_xor_b32 v5, v2, v4")
        a("s_lshl_b32 s%d, s%d, 4" % (sT0, sWAVE))
        a("v_add_u32 v4, s%d, v1" % sT0)
        a("v_mul_u32_u24 v4, 896, v4")
        a("v_lshl_add_u32 v%d, v5, 4, v4" % vXX)
        a("v_xor_b32 v%d, 64, v%d" % (vXX2, vXX))
        a("v_add_u32 v%d, %d, v%d" % (vXX2, 8 * 896, vXX2))
        a("s_lshl_b32 s%d, s%d, 11" % (sL1, sWAVE))

        def flags(s):
            if s in (S_K, S_V) and "kv" in o.nt: return " nt"
            if s in (S_WQ, S_WO) and "w" in o.nt: return " nt"
            return ""
        def pieces(u):
            ad, sz = unit_addr(u)
            P = []
            if u < UK0:
                if u == 0:
                    P.append((S_X, vXX, 0, sL1, x_addr(0)))
                    P.append((S_X, vXX2, 0, sL1, x_addr(0) + 1024))
                elif u % 2 == 1 and u < 13:
                    j = (u + 1) // 2
                    P.append((S_X, vXX, j * 128, sL1, x_addr(j)))
                elif u % 2 == 0:
                    j = u // 2
                    P.append((S_X, vXX2, j * 128, sL1, x_addr(j) + 1024))
                for i in range(4): P.append((S_WQ, vWQ, u * 32 * 8192 + i * 65536, sL4, ad + i * 1024))
            elif u < UV0:
                k = u - UK0
                p, d, mb = k >> 3, (k >> 1) & 3, k & 1
                for i in range(4): P.append((S_K, vK1 if i & 1 else vK0, (64 * p + 32 * mb + 8 * i) * 512 + d * 128, sL4, ad + i * 1024))
            elif u < UO0:
                c, h, wp = v_unit(u - UV0)
                for i in range(4):
                    key = 128 * (2 * wp + (i >> 1)) + 32 * c + 16 * h + 8 * (i & 1)
                    P.append((S_V, vV, key * 512, sL4, ad + i * 1024))
            else:
                for j in range(7): P.append((S_WO, vWO + j, (u - UO0) * 28672, sL7, ad + j * 1024))
            return P
        issued = 0
        last_piece = {}
        partial = {}
        def issue(u, maxp=99):
            nonlocal issued
            P = pieces(u)
            k0 = partial.get(u, 0)
            n = 0
            for (s, v, soff, lb, lo) in P[k0:k0 + maxp]:
                a("s_add_u32 m0, s%d, %d" % (lb, lo))
                if soff == 0: a("s_nop 0"); so = "0"
                else: a("s_mov_b32 s%d, 0x%x" % (sOFF, soff)); so = "s%d" % sOFF
                a("buffer_load_dwordx4 v%d, s[%d:%d], %s offen%s lds" % (v, s, s + 3, so, flags(s)))
                issued += 1; n += 1
            partial[u] = k0 + n
            if partial[u] == len(P): last_piece[u] = issued
            return n
        def prefetch(kind, idx, count=True):
            nonlocal issued
            if kind == "wqa": s, v, so = S_WQ, vPWA, 0
            elif kind == "wq": s, v, so = S_WQ, vPW, 0
            elif kind == "x": s, v, so = S_X, vPX + idx, 0
            elif kind == "k": s, v, so = S_K, vPK, (128 * (idx >> 1) + 16 * (idx & 1)) * 512
            elif kind == "v": s, v, so = S_V, vPV, (128 * (idx >> 1) + 16 * (idx & 1)) * 512
            elif kind == "wo": s, v, so = S_WO, (vPO if idx == 0 else vPO2), 0
            if so: a("s_mov_b32 s%d, 0x%x" % (sOFF, so))
            a("buffer_load_dword v%d, v%d, s[%d:%d], %s offen%s" % (vPD, v, s, s + 3, ("s%d" % sOFF) if so else "0", o.pfflags))
            if count: issued += 1
        def pf_list(L, count=True):
            if not L: return
            a("s_mov_b64 exec, 0xffff")
            for kind, idx in L: prefetch(kind, idx, count)
            a("s_mov_b64 exec, -1")
        def burst(kind, slot):
            lab = a.newlabel("BURST")
            a("s_cmp_lg_u32 s%d, %d" % (sSLOT, slot))
            a("s_cbranch_scc1 %s" % lab)
            pf_list([(kind, r) for r in range(8)], count=False)
            a.label(lab)
        sched = self.pf_schedule()
        if o.diag2: self.stamp("l")
        issue(0)
        if o.diag2: self.stamp("l")
        a("s_lshl_b32 s%d, s%d, 4" % (sT0, sWAVE))
        a("v_add_u32 v9, s%d, v0" % sT0)
        a("v_lshlrev_b32 v7, 4, v9")
        a("v_add_u32 v7, s%d, v7" % sGRP)
        a("v_lshrrev_b32 v4, 2, v7")
        a("v_lshlrev_b32 v4, 13, v4")
        a("v_and_b32 v%d, 3, v7" % vPWA)
        a("v_lshl_add_u32 v%d, v%d, 7, v4" % (vPWA, vPWA))
        a("v_add_u32 v%d, 0x200000, v%d" % (vPW, vPWA))
        a("v_lshlrev_b32 v8, 7, v9")
        a("s_and_b32 s%d, s%d, 1" % (sT0, sHQ))
        a("s_mul_i32 s%d, s%d, %d" % (sT0, sT0, 224 * 128))
        a("v_add_u32 v%d, s%d, v8" % (vPX, sT0))
        for i in range(1, 4): a("v_add_u32 v%d, %d, v%d" % (vPX + i, 8192 * i, vPX))
        st = sched.get("START", [])
        if o.diag2: self.stamp("l")
        pf_list([p for p in st if p[0] in ("wqa", "wq", "x")])
        if o.diag2: self.stamp("l")
        self.rest_srds(True)
        first = list(range(o.nfirst))
        for u in first[1:]: issue(u)
        if o.diag2: self.stamp("l")
        a("s_bfe_u32 s%d, s2, 0x20003" % sT0)
        a("s_lshl_b32 s%d, s%d, 1" % (sSLOT, sT0))
        a("s_and_b32 s%d, s%d, 1" % (sT2, sB))
        a("s_add_u32 s%d, s%d, s%d" % (sSLOT, sSLOT, sT2))
        a("s_lshl_b32 s%d, s%d, 14" % (sT1, sT0))
        a("v_add_u32 v%d, s%d, v8" % (vPK, sT1))
        a("v_mov_b32 v%d, v%d" % (vPV, vPK))
        a("s_mul_i32 s%d, s%d, 14336" % (sT1, sGRP))
        a("v_add_u32 v%d, s%d, v8" % (vPO, sT1))
        a("v_add_u32 v%d, 0x2000, v%d" % (vPO2, vPO))
        a("v_lshrrev_b32 v4, 4, v0")
        a("v_xor_b32 v5, v2, v4")
        a("v_lshlrev_b32 v5, 4, v5")
        a("s_lshl_b32 s%d, s%d, 16" % (sT0, sWAVE))
        a("v_add_u32 v5, s%d, v5" % sT0)
        a("v_lshl_add_u32 v%d, v1, 9, v5" % vK0)
        a("v_xor_b32 v%d, 64, v%d" % (vK1, vK0))
        a("v_lshl_add_u32 v%d, v1, 9, v3" % vV)
        def after_point(nm):
            L = sched.get(nm, [])
            pf_list([p for p in L if p[0] in ("wqa", "wq", "x", "k", "v", "wo")])
            for kind, idx in L:
                if kind in ("kb", "vb"): burst(kind[0], idx)
        sched["START2"] = [p for p in st if p[0] not in ("wqa", "wq", "x")]
        after_point("START2")
        a("s_mul_i32 s%d, s%d, 7168" % (sL7, sWAVE))
        a("s_mul_i32 s%d, s%d, 448" % (sT0, sWAVE))
        a("v_add_u32 v6, s%d, v0" % sT0)
        for j in range(7):
            a("v_add_u32 v7, %d, v6" % (64 * j))
            a("v_mul_u32_u24 v8, 9363, v7")
            a("v_lshrrev_b32 v8, 19, v8")
            a("v_bfe_u32 v8, v8, 1, 1")
            a("v_lshlrev_b32 v8, 2, v8")
            a("v_xor_b32 v8, v7, v8")
            a("v_lshlrev_b32 v%d, 4, v8" % (vWO + j))
        self.stamp("l")
        bars = self.bars
        freed = {fr: k for k, (nm, pub, fr) in enumerate(bars) if fr is not None}
        avail = {}
        for u in range(NU):
            ad, sz = unit_addr(u)
            k = -1
            for w in range(u):
                a2, s2 = unit_addr(w)
                if ad < a2 + s2 and a2 < ad + sz: k = max(k, freed[w])
            if u < UK0 and (u + 1) // 2 >= 4 and u < 13:
                k = max(k, freed[2 * ((u + 1) // 2 - 4) + 1])
            if u == 37: k = max(k, [i for i, b in enumerate(bars) if b[0] == "X3"][0])
            if u == 45: k = max(k, [i for i, b in enumerate(bars) if b[0] == "B38"][0])
            avail[u] = k
        nxt = len(first)
        assert all(avail[u] < 0 for u in first)
        skip = set("B%d" % int(x) for x in o.skip.split(",") if x)
        drain = set("B%d" % int(x) for x in o.drain.split(",") if x)
        cur_pub = 0
        tgt = {}
        for item in o.tgt.split(","):
            if item:
                w_, v_ = item.split(":")
                tgt[w_ if w_[0] in "XI" else "B" + w_] = int(v_)
        bud = {}
        for item in o.bud.split(","):
            if item:
                w_, v_ = item.split(":")
                bud[w_ if w_[0] in "XI" else "B" + w_] = int(v_)
        for k, (nm, pub, fr) in enumerate(bars):
            if nm in drain:
                a("s_waitcnt vmcnt(0)")
            elif pub is not None:
                assert pub in last_piece, (nm, pub)
                a("s_waitcnt vmcnt(%d)" % min(63, issued - last_piece[pub]))
            if pub is not None: cur_pub = pub
            rng = [int(x) for x in o.srange.split(",")] if o.srange else None
            if rng and rng[0] <= k < rng[1]: self.stamp("l")
            a("s_barrier")
            if rng:
                if rng[0] <= k < rng[1]: self.stamp("l"); self.stamp_names.append(nm)
            elif o.diag and (nm == "INIT" or nm[0] == "X" or (nm[0] == "B" and int(nm[1:]) % 2 == 1 and int(nm[1:]) < 100)):
                self.stamp("l")
            after_point(nm)
            la = o.lao if cur_pub >= UO0 - 1 else o.la
            target = tgt.get(nm, cur_pub + la)
            budget = bud.get(nm, o.budget if cur_pub < UO0 - 1 else o.budo)
            nextpub = [b[1] for b in bars[k + 1:] if b[1] is not None]
            must = nextpub[0] if nextpub else -1
            while nxt < NU and avail[nxt] <= k and (nxt <= must or (budget > 0 and nxt <= target)):
                n = issue(nxt, 99 if nxt <= must else budget)
                budget -= n
                if nxt in last_piece: nxt += 1
        assert nxt == NU
        if o.diag:
            a("s_memrealtime s[%d:%d]" % (sSTA, sSTA + 1))
            a("s_waitcnt lgkmcnt(0)")
            a("v_writelane_b32 v60, s72, 60")
            a("v_writelane_b32 v60, s%d, 62" % sSTB)
            a("v_writelane_b32 v60, s%d, 63" % sSTA)
            self.diag_store(60, 4)
        a("s_endpgm")

    def pf_schedule(self):
        o = self.o
        sched = {}
        if not o.pf: return sched
        for item in o.pf.split(","):
            where, what = item.split(":")
            L = sched.setdefault(where if where in ("START", "INIT") or where[0] == "X" else "B" + where, [])
            for w in what.split("+"):
                L.append((w.rstrip("0123456789"), int(w[len(w.rstrip("0123456789")):] or 0)))
        return sched

    def diag_store(self, vreg, waveadd):
        a = self.a
        a("s_lshl_b32 s%d, s2, 3" % sT0)
        a("s_add_u32 s%d, s%d, s%d" % (sT0, sT0, sWAVE))
        a("s_add_u32 s%d, s%d, %d" % (sT0, sT0, waveadd))
        a("s_lshl_b32 s%d, s%d, 8" % (sT0, sT0))
        a("s_add_u32 s%d, s%d, %d" % (sT0, sT0, WS_DIAG))
        a("s_add_u32 s68, s18, s%d" % sT0)
        a("s_addc_u32 s69, s19, 0")
        a("s_mov_b32 s70, 256")
        a("s_mov_b32 s71, 0x00020000")
        a("v_lshlrev_b32 v61, 2, v0")
        a("buffer_store_dword v%d, v61, s[68:71], 0 offen" % vreg)
        a("s_waitcnt vmcnt(0)")

    def barrier(self, name, pub=None, free=None):
        self.a("s_barrier")
        self.bars.append((name, pub, free))

    def compute(self):
        a = self.a; o = self.o
        sc = Sched(a)
        self.rest_srds(False)
        vLIN = 2
        pTR = [4, 5]
        pX = [6, 7, 60, 61]
        pK = [4, 5, 6, 7]
        aA = [8, 9, 10, 11]
        aX = [12, 13]
        SETS = [dict(A=[16, 20], B=[24, 28]), dict(A=[32, 36], B=[40, 44])]
        ACCQ, ACCS, ACCO = 64, 128, 128
        vM = [48, 49]; vSUM = [50, 51]
        vST, vSTR, vPW, vTMP = 52, 53, 54, 55
        vSTA, vSTB = 52, 53

        def mfma(acc, A, B, first):
            return "v_mfma_f32_32x32x16_bf16 v[%d:%d], v[%d:%d], v[%d:%d], %s" % (
                acc, acc + 15, A, A + 3, B, B + 3, "0" if first else "v[%d:%d]" % (acc, acc + 15))
        def tr_pattern(dst, hshift):
            L = ["v_bfe_u32 v3, v0, 2, 2", "v_lshlrev_b32 v3, 7, v3", "v_lshrrev_b32 v1, 5, v0",
                 "v_lshl_add_u32 v3, v1, %d, v3" % hshift, "v_bfe_u32 v1, v0, 4, 1", "v_lshl_add_u32 v3, v1, 5, v3",
                 "v_and_b32 v1, 3, v0", "v_lshl_add_u32 v3, v1, 3, v3", "v_bfe_u32 v1, v0, 3, 1", "v_lshl_add_u32 v3, v1, 6, v3",
                 "s_lshl_b32 s%d, s%d, 12" % (sT0, sWAVE), "v_add_u32 v%d, s%d, v3" % (dst[0], sT0),
                 "v_xor_b32 v%d, 64, v%d" % (dst[1], dst[0])]
            return L
        def setaddr(dst, pat, base):
            return ["v_add_u32 v%d, 0x%x, v%d" % (d, base, p) if base else "v_mov_b32 v%d, v%d" % (d, p) for d, p in zip(dst, pat)]

        a("v_lshlrev_b32 v%d, 4, v0" % vLIN)
        for l in tr_pattern(pTR, 10): a(l)
        a("v_and_b32 v3, 31, v0")
        a("v_bfe_u32 v1, v0, 1, 3")
        a("v_lshrrev_b32 v14, 5, v0")
        a("v_xor_b32 v1, v1, v14")
        a("v_lshlrev_b32 v1, 4, v1")
        a("v_lshl_add_u32 v%d, v3, 7, v1" % pX[0])
        for j in (1, 2, 3): a("v_xor_b32 v%d, %d, v%d" % (pX[j], j << 5, pX[0]))

        def two_k_phase(name, u0, nunits, loadA, loadB, setup, accf, groups, extra_events=None, pos=None, gate=None):
            pos = o.pos if pos is None else pos
            mf, loads, events = [], [], {}
            seen = set()
            def fid(tp, g, idx): return (name, tp, g, idx)
            nk = nunits * 2
            for g in range(nk):
                S = SETS[g & 1]
                for (mb, nb) in ((0, 0), (0, 1), (1, 0), (1, 1)):
                    acc = accf(mb, nb)
                    mf.append(dict(text=mfma(acc, S['A'][mb], S['B'][nb], acc not in seen), needs=[fid('A', g, mb), fid('B', g, nb)]))
                    seen.add(acc)
            for g in range(nk):
                S = SETS[g & 1]
                u, ks = u0 + g // 2, g % 2
                for n_, (tp, idx) in enumerate((('A', 0), ('B', 0), ('B', 1), ('A', 1))):
                    last = {('A', 0): 1, ('B', 0): 2, ('A', 1): 3, ('B', 1): 3}[(tp, idx)]
                    after = (g - 2) * 4 + last if g >= 2 else -1
                    ins = loadA(u, ks, idx, S['A'][idx]) if tp == 'A' else loadB(u, ks, idx, S['B'][idx])
                    pre_ins = setup(u) if (ks == 0 and n_ == 0) else []
                    evk = ("pub", u) if u > u0 else None
                    if gate and u in gate and tp == 'B': evk = gate[u]
                    loads.append(dict(id=fid(tp, g, idx), instrs=ins, valu=pre_ins, after_mf=after, after_ev=evk, pre=(g < 2)))
            for s_ in range(nunits):
                u = u0 + s_
                def ev(u=u):
                    sc.wait_all()
                    self.barrier("B%d" % u, pub=(u + 1 if u + 1 < NU else None), free=u)
                    return ("pub", u + 1)
                events.setdefault(s_ * 8 + pos, []).append(ev)
            for k_, v_ in (extra_events or {}).items(): events.setdefault(k_, []).extend(v_)
            run_phase3(sc, mf, loads, events, groups, o.maxreads)

        nop16 = lambda: (a("s_nop 7"), a("s_nop 7"))

        self.stamp("c")
        self.barrier("INIT", pub=0)
        self.stamp("c")

        def q_setup(u):
            ad = unit_addr(u)[0]
            return setaddr(aA[:2], pTR, ad)
        def q_loadA(u, ks, mb, r):
            return ["ds_read_b64_tr_b16 v[%d:%d], v%d offset:%d" % (r, r + 1, aA[mb], ks * 2048),
                    "ds_read_b64_tr_b16 v[%d:%d], v%d offset:%d" % (r + 2, r + 3, aA[mb], ks * 2048 + 512)]
        def q_loadB(u, ks, nb, r):
            return ["ds_read_b128 v[%d:%d], v%d offset:%d" % (r, r + 3, pX[2 * (u & 1) + ks], x_addr(u // 2) + nb * 4096)]
        fl = ["v_and_b32 v%d, 31, v0" % vSTR, "v_lshlrev_b32 v%d, 5, v%d" % (vSTR, vSTR),
              "v_lshrrev_b32 v3, 5, v0", "v_lshl_add_u32 v3, v3, 2, v%d" % vSTR,
              "s_lshl_b32 s%d, s%d, 3" % (sT0, sWAVE), "v_add_u32 v%d, s%d, v3" % (vST, sT0),
              "v_add_u32 v%d, 0x%x, v%d" % (vST, LDS_MAX, vST), "v_add_u32 v%d, 0x%x, v%d" % (vSTR, LDS_MAX, vSTR),
              "s_lshl_b32 s%d, s%d, 11" % (sT0, sWAVE), "v_add_u32 v%d, s%d, v%d" % (vPW, sT0, vLIN),
              "s_lshl_b32 s%d, s%d, 13" % (sT0, sWAVE), "v_add_u32 v%d, s%d, v%d" % (vTMP, sT0, vLIN),
              "v_and_b32 v3, 31, v0", "v_bfe_u32 v1, v0, 1, 3", "v_lshrrev_b32 v14, 5, v0", "v_xor_b32 v1, v1, v14",
              "v_lshlrev_b32 v1, 4, v1", "v_lshl_add_u32 v3, v3, 7, v1",
              "s_lshl_b32 s%d, s%d, 12" % (sT0, sWAVE), "v_add_u32 v56, s%d, v3" % sT0,
              "v_xor_b32 v57, 32, v56", "v_xor_b32 v58, 64, v56", "v_xor_b32 v59, 0x60, v56"]
        two_k_phase("Q", 0, NQ, q_loadA, q_loadB, q_setup, lambda mb, nb: ACCQ + (mb * 2 + nb) * 16, [dict(items=fl, start=16, end=90)])
        pK = [56, 57, 58, 59]
        nop16()
        self.stamp("c")
        for mb in range(2):
            for nb in range(2):
                acc = ACCQ + (mb * 2 + nb) * 16
                for half in range(2):
                    b0 = acc + 8 * half
                    for j in range(4):
                        a("v_cvt_pk_bf16_f32 v%d, v%d, v%d" % (b0 + j, b0 + 2 * j, b0 + 2 * j + 1))
                    a("s_nop 1")
                    a("v_permlane32_swap_b32 v%d, v%d" % (b0, b0 + 2))
                    a("v_permlane32_swap_b32 v%d, v%d" % (b0 + 1, b0 + 3))
                    sc.ds("ds_write_b128 v%d, v[%d:%d] offset:%d" % (vTMP, b0, b0 + 3, LDS_Q + ((2 * mb + half) * 2 + nb) * 1024))
        sc.wait_all()
        self.barrier("X1")
        self.stamp("c")

        SA = [16, 20, 24, 28]
        SB = [[64 + (ks * 2 + nb) * 4 for nb in range(2)] for ks in range(4)]
        mf, loads, events = [], [], {}
        seen = set()
        for k in range(NK):
            p, d, mb = k >> 3, (k >> 1) & 3, k & 1
            for ks in range(4):
                for nb in range(2):
                    acc = ACCS + ((2 * p + mb) * 2 + nb) * 16
                    mf.append(dict(text=mfma(acc, SA[ks], SB[ks][nb], acc not in seen),
                                   needs=[("S", "A", k, ks), ("S", "B", k >> 1, ks, nb)]))
                    seen.add(acc)
        for k in range(NK):
            p, d, mb = k >> 3, (k >> 1) & 3, k & 1
            u = UK0 + k
            for ks in range(4):
                if mb == 0:
                    for nb in range(2):
                        dd = k >> 1
                        after = (2 * dd - 1) * 8 + 2 * ks + nb if dd >= 1 else -1
                        loads.append(dict(id=("S", "B", dd, ks, nb), valu=[], after_mf=after, after_ev=None, pre=(k == 0),
                                          instrs=["ds_read_b128 v[%d:%d], v%d offset:%d" % (SB[ks][nb], SB[ks][nb] + 3, vLIN,
                                                                                           LDS_Q + ((d * 4 + ks) * 2 + nb) * 1024)]))
                after = (k - 1) * 8 + 2 * ks + 1 if k >= 1 else -1
                pre_ins = setaddr(aA, pK, unit_addr(u)[0]) if ks == 0 else []
                loads.append(dict(id=("S", "A", k, ks), valu=pre_ins, after_mf=after, after_ev=(("pub", u) if k > 0 else None), pre=(k == 0),
                                  instrs=["ds_read_b128 v[%d:%d], v%d offset:0" % (SA[ks], SA[ks] + 3, aA[ks])]))
        order = []
        byid = {l["id"]: l for l in loads}
        for k in range(NK):
            for ks in range(4):
                ids = []
                if (k & 1) == 0: ids += [("S", "B", k >> 1, ks, 0)]
                ids += [("S", "A", k, ks)]
                if (k & 1) == 0: ids += [("S", "B", k >> 1, ks, 1)]
                order += [byid[i] for i in ids]
        for k in range(NK):
            u = UK0 + k
            def ev(u=u):
                sc.wait_all()
                self.barrier("B%d" % u, pub=u + 1, free=u)
                return ("pub", u + 1)
            events.setdefault(k * 8 + o.spos, []).append(ev)
        def maxchain(nb, mbs, first):
            regs = [ACCS + (mb * 2 + nb) * 16 + r for mb in mbs for r in range(16)]
            d = vM[nb]; out = []
            i = 0
            if first:
                out.append("v_max3_f32 v%d, v%d, v%d, v%d" % (d, regs[0], regs[1], regs[2])); i = 3
            while i + 1 < len(regs):
                out.append("v_max3_f32 v%d, v%d, v%d, v%d" % (d, d, regs[i], regs[i + 1])); i += 2
            if i < len(regs): out.append("v_max_f32 v%d, v%d, v%d" % (d, d, regs[i]))
            return out
        f1 = []
        for x, y in zip(maxchain(0, (0, 1), True), maxchain(1, (0, 1), True)): f1 += [x, y]
        f2 = []
        for x, y in zip(maxchain(0, (2,), False), maxchain(1, (2,), False)): f2 += [x, y]
        groups = [dict(items=f1, start=70, end=110), dict(items=tr_pattern(pTR, 9), start=20, end=60),
                  dict(items=["s_nop 6"] + f2, start=124, end=127)]
        run_phase3(sc, mf, order, events, groups, o.maxreads)
        a("s_nop 7"); a("s_nop 3")
        self.stamp("c")
        for x, y in zip(maxchain(0, (3,), False), maxchain(1, (3,), False)): a(x); a(y)
        for nb in range(2):
            sc.ds("ds_write_b32 v%d, v%d offset:%d" % (vST, vM[nb], nb * 1024))
        sc.wait_all()
        self.barrier("X2")
        for nb in range(2):
            sc.ds("ds_read_b128 v[%d:%d], v%d offset:%d" % (16 + nb * 8, 19 + nb * 8, vSTR, nb * 1024))
            sc.ds("ds_read_b128 v[%d:%d], v%d offset:%d" % (20 + nb * 8, 23 + nb * 8, vSTR, nb * 1024 + 16))
        sc.wait_all()
        for nb in range(2):
            b = 16 + nb * 8
            a("v_max3_f32 v%d, v%d, v%d, v%d" % (vM[nb], b, b + 1, b + 2))
            a("v_max3_f32 v%d, v%d, v%d, v%d" % (vM[nb], vM[nb], b + 3, b + 4))
            a("v_max3_f32 v%d, v%d, v%d, v%d" % (vM[nb], vM[nb], b + 5, b + 6))
            a("v_max_f32 v%d, v%d, v%d" % (vM[nb], vM[nb], b + 7))
            a("v_mul_f32 v%d, s%d, v%d" % (vM[nb], sC1, vM[nb]))

        def softmax_list(sub):
            c, h = sub >> 1, sub & 1
            regs = [(nb, ACCS + (c * 2 + nb) * 16 + 8 * h + r) for nb in range(2) for r in range(8)]
            L = []
            def fin(nb):
                b0 = ACCS + (c * 2 + nb) * 16 + 8 * h
                for j in range(4):
                    L.append("v_cvt_pk_bf16_f32 v%d, v%d, v%d" % (b0 + j, b0 + 2 * j, b0 + 2 * j + 1))
            for i in range(16 + 4):
                if i < 16:
                    nb, r = regs[i]; L.append("v_fma_f32 v%d, v%d, s%d, -v%d" % (r, r, sC1, vM[nb]))
                if 0 <= i - 2 < 16:
                    nb, r = regs[i - 2]; L.append("v_exp_f32 v%d, v%d" % (r, r))
                if 0 <= i - 4 < 16:
                    nb, r = regs[i - 4]
                    if sub == 0 and (i - 4) % 8 == 0: L.append("v_mov_b32 v%d, v%d" % (vSUM[nb], r))
                    else: L.append("v_add_f32 v%d, v%d, v%d" % (vSUM[nb], vSUM[nb], r))
                    if i - 4 == 7: fin(0)
            fin(1)
            return L
        def p_write1(sub, nb):
            c, h = sub >> 1, sub & 1
            b0 = ACCS + (c * 2 + nb) * 16 + 8 * h
            sc.ds("ds_write_b128 v%d, v[%d:%d] offset:%d" % (vPW, b0, b0 + 3, LDS_P[sub % 4] + nb * 1024))
        def p_write(sub):
            for nb in range(2): p_write1(sub, nb)
        for sub in range(o.t0subs):
            for f in softmax_list(sub): a(f)
            p_write(sub)
        sc.wait_all()
        self.barrier("X3")
        self.stamp("c")

        def v_setup(u): return setaddr(aA[:2], pTR, unit_addr(u)[0])
        def v_loadA(u, ks, mb, r):
            return ["ds_read_b64_tr_b16 v[%d:%d], v%d offset:%d" % (r, r + 1, aA[mb], ks * 2048),
                    "ds_read_b64_tr_b16 v[%d:%d], v%d offset:%d" % (r + 2, r + 3, aA[mb], ks * 2048 + 1024)]
        def v_loadB(u, ks, nb, r):
            c, h, wp = v_unit(u - UV0)
            return ["ds_read_b128 v[%d:%d], v%d offset:%d" % (r, r + 3, vLIN, LDS_P[(2 * c + h) % 4] + (2 * wp + ks) * 2048 + nb * 1024)]
        groups = []
        items = []
        for sub in range(4, 8): items += softmax_list(sub)
        if "nosoft" in o.exp: items = []
        groups.append(dict(items=items, start=0, end=7 * 8 + o.pos - 1))
        def window():
            if "nowrite" not in o.exp:
                for sub in range(4, 8): p_write(sub)
                for nb in range(2):
                    sc.ds("ds_write_b32 v%d, v%d offset:%d" % (vSTA, vSUM[nb], nb * 1024))
            return None
        wev = {7 * 8 + o.pos: [window]}
        def window_close():
            sc.wait_all()
            self.barrier("X5")
            return "X5"
        wev.setdefault(7 * 8 + o.wclose, []).append(window_close)
        def rd_sums():
            for nb in range(2):
                sc.ds("ds_read_b128 v[%d:%d], v%d offset:%d" % (128 + nb * 8, 131 + nb * 8, vSTB, nb * 1024))
                sc.ds("ds_read_b128 v[%d:%d], v%d offset:%d" % (132 + nb * 8, 135 + nb * 8, vSTB, nb * 1024 + 16), "sums")
        groups.append(dict(items=[rd_sums], start=8 * 8 + 1, end=8 * 8 + 1))
        fl = [lambda: sc.wait_frags(["sums"])]
        for nb in range(2):
            b = 128 + nb * 8
            fl.append("v_add_f32 v%d, v%d, v%d" % (b, b, b + 1))
            for k in range(2, 8): fl.append("v_add_f32 v%d, v%d, v%d" % (b, b, b + k))
        fl += ["v_rcp_f32 v%d, v128" % vSUM[0], "v_rcp_f32 v%d, v136" % vSUM[1]]
        groups.append(dict(items=fl, start=9 * 8 + 4, end=10 * 8 + 4))
        pW = [56, 57]; vOB = 58
        fl = ["v_bfe_u32 v1, v0, 2, 2", "v_lshrrev_b32 v14, 5, v0", "v_lshl_add_u32 v1, v14, 2, v1", "v_mul_u32_u24 v1, 896, v1",
              "v_bfe_u32 v14, v0, 4, 1", "v_lshl_add_u32 v1, v14, 5, v1", "v_and_b32 v14, 3, v0", "v_lshl_add_u32 v1, v14, 3, v1",
              "s_lshr_b32 s%d, s%d, 1" % (sT0, sWAVE), "s_mul_i32 s%d, s%d, 448" % (sT1, sT0),
              "v_add_u32 v1, s%d, v1" % sT1, "v_bfe_u32 v14, v0, 3, 1", "v_lshlrev_b32 v14, 6, v14",
              "s_cmp_eq_u32 s%d, 0" % sT0 + "\n" + "s_cselect_b32 s%d, 1, -1" % sT1, "v_mul_lo_u32 v14, v14, s%d" % sT1,
              "v_add_u32 v%d, v1, v14" % pW[0], "v_sub_u32 v%d, v1, v14" % pW[1],
              "s_and_b32 s%d, s%d, 1" % (sT0, sWAVE), "s_lshl_b32 s%d, s%d, 10" % (sT0, sT0),
              "s_add_u32 s%d, s%d, %d" % (sT0, sT0, LDS_O), "v_add_u32 v%d, s%d, v%d" % (vOB, sT0, vLIN)]
        groups.append(dict(items=fl, start=15 * 8 - 6, end=15 * 8 + 6))
        two_k_phase("V", UV0, NV, v_loadA, v_loadB, v_setup, lambda mb, nb: ACCQ + (mb * 2 + nb) * 16, groups, extra_events=wev,
                    gate={UV0 + 8: "X5"})
        nop16()
        self.stamp("c")
        for mb in range(2):
            for nb in range(2):
                acc = ACCQ + (mb * 2 + nb) * 16
                for r in range(16): a("v_mul_f32 v%d, v%d, v%d" % (acc + r, acc + r, vSUM[nb]))
                for half in range(2):
                    b0 = acc + 8 * half
                    for j in range(4):
                        a("v_cvt_pk_bf16_f32 v%d, v%d, v%d" % (b0 + j, b0 + 2 * j, b0 + 2 * j + 1))
                    sc.ds("ds_write_b128 v%d, v[%d:%d] offset:%d" % (vTMP, b0, b0 + 3, LDS_O + ((2 * mb + half) * 2 + nb) * 1024))
        sc.wait_all()
        self.barrier("X4")
        self.stamp("c")

        OA = [64 + 4 * i for i in range(7)]
        OB = [92, 96]
        aW = [8, 9]
        mf, loads, events = [], [], {}
        nk = 16
        for g in range(nk):
            for n in range(7):
                mf.append(dict(text=mfma(ACCO + 16 * n, OA[n], OB[g & 1], g == 0), needs=[("O", "A", g, n), ("O", "B", g)]))
        for g in range(nk):
            u, ks = UO0 + g // 2, g % 2
            ev = ("pub", u) if u > UO0 else None
            loads.append(dict(id=("O", "B", g), valu=[], instrs=["ds_read_b128 v[%d:%d], v%d offset:%d" % (OB[g & 1], OB[g & 1] + 3, vOB, g * 2048)],
                              after_mf=((g - 2) * 7 + 6 if g >= 2 else -1), after_ev=None, pre=(g == 0)))
            for n in range(7):
                off = 16 * ks * 896 + n * 64
                pre_ins = setaddr(aW, pW, unit_addr(u)[0]) if (ks == 0 and n == 0) else []
                loads.append(dict(id=("O", "A", g, n), valu=pre_ins,
                                  instrs=["ds_read_b64_tr_b16 v[%d:%d], v%d offset:%d" % (OA[n], OA[n] + 1, aW[n & 1], off),
                                          "ds_read_b64_tr_b16 v[%d:%d], v%d offset:%d" % (OA[n] + 2, OA[n] + 3, aW[n & 1], off + 8 * 896)],
                                  after_mf=((g - 1) * 7 + n if g >= 1 else -1), after_ev=ev, pre=(g == 0)))
        for s_ in range(NO - 1):
            u = UO0 + s_
            def ev(u=u):
                sc.wait_all()
                self.barrier("B%d" % u, pub=u + 1, free=u)
                return ("pub", u + 1)
            events[(2 * s_ + 1) * 7 + o.obar] = [ev]
        run_phase3(sc, mf, loads, events, [], o.maxreads + 1)
        nop16()
        self.stamp("c")
        a("s_mul_i32 s%d, s%d, 14336" % (sT0, sWAVE))
        a("v_add_u32 v3, s%d, v%d" % (sT0, vLIN))
        for n in range(7):
            for half in range(2):
                b0 = ACCO + 16 * n + 8 * half
                for j in range(4):
                    a("v_cvt_pk_bf16_f32 v%d, v%d, v%d" % (b0 + j, b0 + 2 * j, b0 + 2 * j + 1))
                idx = n * 2 + half
                a("s_mov_b32 s%d, %d" % (sOFF, idx * 1024))
                a("buffer_store_dwordx4 v[%d:%d], v3, s[%d:%d], s%d offen%s" % (b0, b0 + 3, S_WS, S_WS + 3, sOFF, o.storeflags))
        if o.diag:
            a("s_waitcnt vmcnt(0)")
            a("s_memrealtime s[%d:%d]" % (sSTA, sSTA + 1))
            a("s_memtime s[74:75]")
            a("s_waitcnt lgkmcnt(0)")
            a("s_sub_u32 s74, s74, s72")
            a("v_writelane_b32 v15, s74, 61")
            a("v_writelane_b32 v15, s72, 60")
            a("v_writelane_b32 v15, s%d, 62" % sSTB)
            a("v_writelane_b32 v15, s%d, 63" % sSTA)
            self.diag_store(15, 0)
        a.label("K1_EXIT")
        a("s_endpgm")

    def gen(self):
        self.prologue()
        head = self.a
        self.a = Asm(); self.a.nlabel = head.nlabel
        self.a.label("K1_COMPUTE")
        self.compute()
        comp = self.a
        self.a = Asm(); self.a.nlabel = comp.nlabel + 1000
        self.loader()
        return head.text() + self.a.text() + comp.text()

def run_phase3(sc, mf, loads, events, groups, maxreads=2):
    a = sc.a
    pend = list(loads)
    evdone = set()
    n = len(mf)
    groups = [dict(items=list(g["items"]), start=g["start"], end=min(g["end"], n - 1)) for g in groups]
    def ok(l, i):
        return l["after_mf"] <= i and (l.get("after_ev") is None or l["after_ev"] in evdone)
    def pop():
        l = pend.pop(0)
        for t in l.get("valu", []): a(t)
        for t in l["instrs"]: sc.ds(t, l["id"])
        return len(l["instrs"])
    while pend and pend[0].get("pre", False):
        pop()
    for i, m in enumerate(mf):
        ids = set(p["id"] for p in pend)
        while any(f in ids for f in m["needs"]):
            assert ok(pend[0], i - 1), (i, pend[0])
            pop()
            ids = set(p["id"] for p in pend)
        sc.wait_frags(m["needs"])
        a(m["text"])
        for ev in events.get(i, []):
            key = ev()
            if key is not None: evdone.add(key)
        k = 0
        while pend and k < maxreads and ok(pend[0], i):
            k += pop()
        for g in groups:
            if g["items"] and i >= g["start"]:
                left = max(1, g["end"] - i + 1)
                cost = lambda f: 4 if callable(f) else (8 if f.startswith(("v_exp", "v_rcp")) else (2 if f.startswith("s_") else 4))
                total = sum(cost(f) for f in g["items"])
                g["credit"] = g.get("credit", 0.0) + total / float(left)
                while g["items"] and (left == 1 or g["credit"] >= cost(g["items"][0]) * 0.5):
                    f = g["items"].pop(0)
                    g["credit"] -= cost(f)
                    f() if callable(f) else a(f)
                if left > 1: g["credit"] = min(g["credit"], 0.0) if not g["items"] else g["credit"]
    assert all(not g["items"] for g in groups), "fillers left"
    assert not pend, "loads left"

def build(opt):
    k1 = K1(opt).gen()
    k2 = gen1.gen_k2(opt)
    s = HEADER
    s += "; @launch kernel=k1_kernel grid=(256,1,1) block=(512,1,1) lds=%d\n" % LDS_TOTAL
    if not opt.nok2:
        s += "; @launch kernel=k2_kernel grid=(224,1,1) block=(256,1,1) lds=0\n"
    s += '.amdgcn_target "amdgcn-amd-amdhsa--gfx950"\n.text\n'
    s += k1
    if not opt.nok2: s += k2
    s += "K_ALL_END:\n"
    s += '.section .rodata,"a"\n.p2align 6\n' + kernel_desc("k1_kernel", 256, 96)
    if not opt.nok2:
        s += '.p2align 6\n' + kernel_desc("k2_kernel", 80, 48)
    return s

def parse(argv=None):
    ap = argparse.ArgumentParser()
    ap.add_argument("-o", default="k3.s")
    ap.add_argument("--diag", action="store_true")
    ap.add_argument("--rt", action="store_true")
    ap.add_argument("--nok2", action="store_true")
    ap.add_argument("--storeflags", default="")
    ap.add_argument("--nt", default="")
    ap.add_argument("--pos", type=int, default=2)
    ap.add_argument("--spos", type=int, default=2)
    ap.add_argument("--obar", type=int, default=1)
    ap.add_argument("--maxreads", type=int, default=2)
    ap.add_argument("--nfirst", type=int, default=3)
    ap.add_argument("--exp", default="")
    ap.add_argument("--codepf", type=int, default=0x7000)
    ap.add_argument("--wclose", type=int, default=4)
    ap.add_argument("--srange", default="")
    ap.add_argument("--wspread", type=int, default=4)
    ap.add_argument("--la", type=int, default=3)
    ap.add_argument("--lao", type=int, default=2)
    ap.add_argument("--skip", default="")
    ap.add_argument("--drain", default="")
    ap.add_argument("--tgt", default="11:16,12:16,13:16,27:31,28:31,29:31,X2:34,X3:41,30:41,31:41,32:41,33:41,34:41,35:41,36:41,37:41,X5:47,38:47,39:47,40:47,41:47,42:47,43:47,44:47,45:47")
    ap.add_argument("--bud", default="INIT:10,0:8,1:8,2:6,X2:12,36:0,37:0,44:0,45:0,13:0,29:0")
    ap.add_argument("--budget", type=int, default=5)
    ap.add_argument("--budo", type=int, default=7)
    ap.add_argument("--t0subs", type=int, default=4)
    ap.add_argument("--early", type=int, default=5)
    ap.add_argument("--early1", type=int, default=1)
    ap.add_argument("--diag2", action="store_true")
    ap.add_argument("--maxissue", type=int, default=2)
    ap.add_argument("--pf", default="")
    ap.add_argument("--pfflags", default="")
    ap.add_argument("--dbgstamp", action="store_true")
    ap.add_argument("--spin", type=int, default=0)
    ap.add_argument("--spin2", default="")
    ap.add_argument("--spinwg", type=int, default=0)
    return ap.parse_args(argv)

if __name__ == "__main__":
    opt = parse()
    open(opt.o, "w").write(build(opt))
```

```python
import sys, argparse
from asmlib import *
from gen2 import Sched, run_phase, srd
import gen1

LDS_TOTAL = 163840
LDS_Q = 0
LDS_P = [0, 8192, 16384, 24576]
LDS_MAX = 32768 + 16384 * 7
LDS_SUM = LDS_MAX
LDS_O = 0
WS_DIAG = 16 << 20

S_X, S_K, S_V, S_WQ, S_WO, S_WS = 20, 24, 28, 32, 36, 40
sWAVE = 3
sHQ, sB, sRH, sHKV = 44, 45, 46, 47
sC1 = 48
sT0, sT1, sT2, sT3 = 50, 51, 52, 53
sOFF = 54
sGRP = 56
sSTA, sSTB = 58, 60

NQ, NK, NV, NO = 14, 16, 16, 14
UQ0, UK0, UV0, UO0 = 0, NQ, NQ + NK, NQ + NK + NV
NU = NQ + NK + NV + NO
def ring16(j): return 32768 + 16384 * j
def unit_addr(u):
    if u < UK0: return ring16(u % 6), 16384
    return ring16([2, 3, 4, 5, 0, 1, 6, 7][(u - UK0) % 8]), 16384
def x_addr(j): return j * 8192 if j < 4 else ring16(6) + (j - 4) * 8192
def v_unit(v):
    return v >> 2, (v >> 1) & 1, v & 1

class K1:
    def __init__(self, opt):
        self.o = opt
        self.a = Asm()
        self.nstamp_l = 0
        self.nstamp_c = 0
        self.bars = []
        self.stamp_names = []

    def stamp(self, which):
        if not self.o.diag: return
        a = self.a
        a("%s s[%d:%d]" % ("s_memrealtime" if self.o.rt else "s_memtime", sSTA, sSTA + 1))
        a("s_waitcnt lgkmcnt(0)")
        if which == "l":
            a("v_writelane_b32 v60, s%d, %d" % (sSTA, self.nstamp_l)); self.nstamp_l += 1
            assert self.nstamp_l <= 62
        else:
            a("v_writelane_b32 v15, s%d, %d" % (sSTA, self.nstamp_c)); self.nstamp_c += 1

    def prologue(self):
        a = self.a
        kernel_begin(a, "k1_kernel")
        a("s_cmp_ge_u32 s2, 256")
        a("s_cbranch_scc1 K1_EXIT")
        a("s_load_dwordx16 s[4:19], s[0:1], 0")
        if self.o.codepf:
            a("s_getpc_b64 s[76:77]")
            a("s_and_b32 s76, s76, 0xffffff00")
            a("s_mov_b32 s78, K_ALL_END-k1_kernel")
            a("s_mov_b32 s79, 0x00020000")
            a("v_lshlrev_b32 v62, 7, v0")
            a("v_cmp_gt_u32 vcc, 256, v0")
            a("s_and_saveexec_b64 s[80:81], vcc")
            a("s_cbranch_execz K1_NOPF")
            a("buffer_load_dword v63, v62, s[76:79], 0 offen")
            a.label("K1_NOPF")
            a("s_mov_b64 exec, s[80:81]")
        if self.o.diag:
            a("s_memrealtime s[%d:%d]" % (sSTB, sSTB + 1))
            a("s_memtime s[72:73]")
        a("v_lshrrev_b32 v1, 6, v0")
        a("v_and_b32 v0, 63, v0")
        a("v_readfirstlane_b32 s%d, v1" % sWAVE)
        a("s_and_b32 s%d, s2, 7" % sHKV)
        a("s_lshr_b32 s%d, s2, 5" % sB)
        a("s_bfe_u32 s%d, s2, 0x10004" % sT0)
        a("s_bfe_u32 s%d, s2, 0x10003" % sRH)
        a("s_lshl_b32 s%d, s%d, 1" % (sHQ, sHKV))
        a("s_add_u32 s%d, s%d, s%d" % (sHQ, sHQ, sT0))
        a("s_mov_b32 s%d, 0x3db8aa3b" % sC1)
        a("s_lshl_b32 s%d, s%d, 1" % (sGRP, sB))
        a("s_add_u32 s%d, s%d, s%d" % (sGRP, sGRP, sRH))
        a("s_mul_i32 s%d, s%d, 57344" % (sT0, sGRP))
        a("s_lshl_b32 s%d, s%d, 3" % (sT1, sB))
        a("s_add_u32 s%d, s%d, s%d" % (sT1, sT1, sHKV))
        a("s_lshl_b32 s%d, s%d, 18" % (sT1, sT1))
        a("s_lshl_b32 s%d, s%d, 9" % (sT2, sHQ))
        a("s_mul_i32 s%d, s%d, 229376" % (sT3, sHQ))
        a("s_waitcnt lgkmcnt(0)")
        srd(a, S_WQ, 10, sT2, 448 * 8192 - 15 * 512)
        srd(a, S_X, 4, sT0, 57344)
        a("s_cmp_lt_u32 s%d, 4" % sWAVE)
        a("s_cbranch_scc1 K1_COMPUTE")

    def rest_srds(self, loader):
        a = self.a
        if loader:
            srd(a, S_K, 6, sT1, 262144)
            srd(a, S_V, 8, sT1, 262144)
            srd(a, S_WO, 12, sT3, 229376)
        else:
            a("s_lshl_b32 s%d, s%d, 4" % (sT0, sGRP))
            a("s_add_u32 s%d, s%d, s%d" % (sT0, sT0, sHQ))
            a("s_mul_i32 s%d, s%d, 57344" % (sT0, sT0))
            srd(a, S_WS, 18, sT0, 57344)

    def loader(self):
        a = self.a; o = self.o
        a.label("K1_LOADER")
        a("s_sub_u32 s%d, s%d, 4" % (sWAVE, sWAVE))
        vWQ, vXX, vK0, vK1, vV, vXX2 = 16, 17, 18, 19, 20, 21
        vWO = 24
        vPW, vPK, vPV, vPO, vPO2, vPD, vPWA = 32, 33, 34, 35, 37, 36, 38
        vPX = 40
        sSLOT = 65
        sL4, sL1, sL7 = 62, 63, 64
        a("v_lshrrev_b32 v1, 3, v0")
        a("v_and_b32 v2, 7, v0")
        a("v_bfe_u32 v3, v0, 4, 1")
        a("v_lshlrev_b32 v3, 2, v3")
        a("v_xor_b32 v3, v2, v3")
        a("s_lshl_b32 s%d, s%d, 7" % (sT0, sWAVE))
        a("v_lshl_add_u32 v3, v3, 4, s%d" % sT0)
        a("v_lshl_add_u32 v%d, v1, 13, v3" % vWQ)
        a("s_lshl_b32 s%d, s%d, 12" % (sL4, sWAVE))
        a("v_lshrrev_b32 v4, 4, v0")
        a("v_xor_b32 v5, v2, v4")
        a("s_lshl_b32 s%d, s%d, 4" % (sT0, sWAVE))
        a("v_add_u32 v4, s%d, v1" % sT0)
        a("v_mul_u32_u24 v4, 896, v4")
        a("v_lshl_add_u32 v%d, v5, 4, v4" % vXX)
        a("v_xor_b32 v%d, 64, v%d" % (vXX2, vXX))
        a("v_add_u32 v%d, %d, v%d" % (vXX2, 8 * 896, vXX2))
        a("s_lshl_b32 s%d, s%d, 11" % (sL1, sWAVE))

        def flags(s):
            if s in (S_K, S_V) and "kv" in o.nt: return " nt"
            if s in (S_WQ, S_WO) and "w" in o.nt: return " nt"
            return ""
        def pieces(u):
            ad, sz = unit_addr(u)
            P = []
            if u < UK0:
                xs = {0: [0], 1: [1], 2: [2, 3], 3: [4, 5], 4: [6]}.get(u, [])
                for j in xs:
                    P.append((S_X, vXX, j * 128, sL1, x_addr(j)))
                    P.append((S_X, vXX2, j * 128, sL1, x_addr(j) + 1024))
                for i in range(4): P.append((S_WQ, vWQ, u * 32 * 8192 + i * 65536, sL4, ad + i * 1024))
            elif u < UV0:
                k = u - UK0
                p, d, mb = k >> 3, (k >> 1) & 3, k & 1
                for i in range(4): P.append((S_K, vK1 if i & 1 else vK0, (64 * p + 32 * mb + 8 * i) * 512 + d * 128, sL4, ad + i * 1024))
            elif u < UO0:
                c, h, wp = v_unit(u - UV0)
                for i in range(4):
                    key = 128 * (2 * wp + (i >> 1)) + 32 * c + 16 * h + 8 * (i & 1)
                    P.append((S_V, vV, key * 512, sL4, ad + i * 1024))
            else:
                j, kh = (u - UO0) >> 1, (u - UO0) & 1
                for i in range(4): P.append((S_WO, vWO, (128 * kh + 8 * i) * 896 + j * 128, sL4, ad + i * 1024))
            return P
        issued = 0
        last_piece = {}
        partial = {}
        def issue(u, maxp=99):
            nonlocal issued
            P = pieces(u)
            k0 = partial.get(u, 0)
            n = 0
            for (s, v, soff, lb, lo) in P[k0:k0 + maxp]:
                a("s_add_u32 m0, s%d, %d" % (lb, lo))
                if soff == 0: a("s_nop 0"); so = "0"
                else: a("s_mov_b32 s%d, 0x%x" % (sOFF, soff)); so = "s%d" % sOFF
                a("buffer_load_dwordx4 v%d, s[%d:%d], %s offen%s lds" % (v, s, s + 3, so, flags(s)))
                issued += 1; n += 1
            partial[u] = k0 + n
            if partial[u] == len(P): last_piece[u] = issued
            return n
        def prefetch(kind, idx, count=True):
            nonlocal issued
            if kind == "wqa": s, v, so = S_WQ, vPWA, 0
            elif kind == "wq": s, v, so = S_WQ, vPW, 0
            elif kind == "x": s, v, so = S_X, vPX + idx, 0
            elif kind == "k": s, v, so = S_K, vPK, (128 * (idx >> 1) + 16 * (idx & 1)) * 512
            elif kind == "v": s, v, so = S_V, vPV, (128 * (idx >> 1) + 16 * (idx & 1)) * 512
            elif kind == "wo": s, v, so = S_WO, (vPO if idx == 0 else vPO2), 0
            if so: a("s_mov_b32 s%d, 0x%x" % (sOFF, so))
            a("buffer_load_dword v%d, v%d, s[%d:%d], %s offen%s" % (vPD, v, s, s + 3, ("s%d" % sOFF) if so else "0", o.pfflags))
            if count: issued += 1
        def pf_list(L, count=True):
            if not L: return
            a("s_mov_b64 exec, 0xffff")
            for kind, idx in L: prefetch(kind, idx, count)
            a("s_mov_b64 exec, -1")
        def burst(kind, slot):
            lab = a.newlabel("BURST")
            a("s_cmp_lg_u32 s%d, %d" % (sSLOT, slot))
            a("s_cbranch_scc1 %s" % lab)
            pf_list([(kind, r) for r in range(8)], count=False)
            a.label(lab)
        sched = self.pf_schedule()
        if o.diag2: self.stamp("l")
        issue(0)
        if o.diag2: self.stamp("l")
        a("s_lshl_b32 s%d, s%d, 4" % (sT0, sWAVE))
        a("v_add_u32 v9, s%d, v0" % sT0)
        a("v_lshlrev_b32 v7, 4, v9")
        a("v_add_u32 v7, s%d, v7" % sGRP)
        a("v_lshrrev_b32 v4, 2, v7")
        a("v_lshlrev_b32 v4, 13, v4")
        a("v_and_b32 v%d, 3, v7" % vPWA)
        a("v_lshl_add_u32 v%d, v%d, 7, v4" % (vPWA, vPWA))
        a("v_add_u32 v%d, 0x200000, v%d" % (vPW, vPWA))
        a("v_lshlrev_b32 v8, 7, v9")
        a("s_and_b32 s%d, s%d, 1" % (sT0, sHQ))
        a("s_mul_i32 s%d, s%d, %d" % (sT0, sT0, 224 * 128))
        a("v_add_u32 v%d, s%d, v8" % (vPX, sT0))
        for i in range(1, 4): a("v_add_u32 v%d, %d, v%d" % (vPX + i, 8192 * i, vPX))
        st = sched.get("START", [])
        if o.diag2: self.stamp("l")
        pf_list([p for p in st if p[0] in ("wqa", "wq", "x")])
        if o.diag2: self.stamp("l")
        self.rest_srds(True)
        first = list(range(o.nfirst))
        for u in first[1:]: issue(u)
        if o.diag2: self.stamp("l")
        a("s_bfe_u32 s%d, s2, 0x20003" % sT0)
        a("s_lshl_b32 s%d, s%d, 1" % (sSLOT, sT0))
        a("s_and_b32 s%d, s%d, 1" % (sT2, sB))
        a("s_add_u32 s%d, s%d, s%d" % (sSLOT, sSLOT, sT2))
        a("s_lshl_b32 s%d, s%d, 14" % (sT1, sT0))
        a("v_add_u32 v%d, s%d, v8" % (vPK, sT1))
        a("v_mov_b32 v%d, v%d" % (vPV, vPK))
        def after_point(nm):
            L = sched.get(nm, [])
            pf_list([p for p in L if p[0] in ("wqa", "wq", "x", "k", "v", "wo")])
            for kind, idx in L:
                if kind in ("kb", "vb"): burst(kind[0], idx)
        sched["START2"] = [p for p in st if p[0] not in ("wqa", "wq", "x")]
        after_point("START2")
        def late_setup():
            a("v_lshrrev_b32 v4, 4, v0")
            a("v_xor_b32 v5, v2, v4")
            a("v_lshlrev_b32 v5, 4, v5")
            a("s_lshl_b32 s%d, s%d, 16" % (sT0, sWAVE))
            a("v_add_u32 v5, s%d, v5" % sT0)
            a("v_lshl_add_u32 v%d, v1, 9, v5" % vK0)
            a("v_xor_b32 v%d, 64, v%d" % (vK1, vK0))
            a("v_lshl_add_u32 v%d, v1, 9, v3" % vV)
            a("s_lshl_b32 s%d, s%d, 5" % (sT0, sWAVE))
            a("v_add_u32 v4, s%d, v1" % sT0)
            a("v_mul_u32_u24 v4, 896, v4")
            a("v_bfe_u32 v5, v0, 4, 1")
            a("v_lshlrev_b32 v5, 2, v5")
            a("v_xor_b32 v5, v2, v5")
            a("v_lshl_add_u32 v%d, v5, 4, v4" % vWO)
            a("s_mul_i32 s%d, s%d, 14336" % (sT1, sGRP))
            a("v_add_u32 v%d, s%d, v8" % (vPO, sT1))
            a("v_add_u32 v%d, 0x2000, v%d" % (vPO2, vPO))
        self.stamp("l")
        bars = self.bars
        freed = {}
        for k, (nm, pub, fr) in enumerate(bars):
            for f in (fr if isinstance(fr, list) else ([] if fr is None else [fr])): freed.setdefault(f, k)
        avail = {}
        for u in range(NU):
            ad, sz = unit_addr(u)
            k = -1
            for w in range(u):
                a2, s2 = unit_addr(w)
                if ad < a2 + s2 and a2 < ad + sz: k = max(k, freed.get(w, 10 ** 6))
            if u in (20, 21): k = max(k, freed[13])
            if u == 37: k = max(k, [i for i, b in enumerate(bars) if b[0] == "X3"][0])
            if u == 53: k = max(k, [i for i, b in enumerate(bars) if b[0] == "B47"][0])
            avail[u] = k
        nxt = len(first)
        assert all(avail[u] < 0 for u in first)
        skip = set("B%d" % int(x) for x in o.skip.split(",") if x)
        drain = set("B%d" % int(x) for x in o.drain.split(",") if x)
        cur_pub = 0
        tgt = {}
        for item in o.tgt.split(","):
            if item:
                w_, v_ = item.split(":")
                tgt[w_ if w_[0] in "XI" else "B" + w_] = int(v_)
        bud = {}
        for item in o.bud.split(","):
            if item:
                w_, v_ = item.split(":")
                bud[w_ if w_[0] in "XI" else "B" + w_] = int(v_)
        for k, (nm, pub, fr) in enumerate(bars):
            if nm in drain:
                a("s_waitcnt vmcnt(0)")
            elif pub is not None:
                assert pub in last_piece, (nm, pub)
                a("s_waitcnt vmcnt(%d)" % min(63, issued - last_piece[pub]))
            if pub is not None: cur_pub = pub
            rng = [int(x) for x in o.srange.split(",")] if o.srange else None
            if rng and rng[0] <= k < rng[1]: self.stamp("l")
            a("s_barrier")
            if rng:
                if rng[0] <= k < rng[1]: self.stamp("l"); self.stamp_names.append(nm)
            elif o.diag and (nm == "INIT" or nm[0] == "X" or (nm[0] == "B" and int(nm[1:]) % 2 == 1 and int(nm[1:]) < 100)):
                self.stamp("l")
            if nm == "B1": late_setup()
            after_point(nm)
            la = o.la
            target = tgt.get(nm, cur_pub + la)
            budget = bud.get(nm, o.budget)
            nextpub = [b[1] for b in bars[k + 1:] if b[1] is not None]
            must = nextpub[0] if nextpub else -1
            while nxt < NU and avail[nxt] <= k and (nxt <= must or (budget > 0 and nxt <= target)):
                n = issue(nxt, 99 if nxt <= must else budget)
                budget -= n
                if nxt in last_piece: nxt += 1
        assert nxt == NU
        if o.diag:
            a("s_memrealtime s[%d:%d]" % (sSTA, sSTA + 1))
            a("s_waitcnt lgkmcnt(0)")
            a("v_writelane_b32 v60, s72, 60")
            a("v_writelane_b32 v60, s%d, 62" % sSTB)
            a("v_writelane_b32 v60, s%d, 63" % sSTA)
            self.diag_store(60, 4)
        a("s_endpgm")

    def pf_schedule(self):
        o = self.o
        sched = {}
        if not o.pf: return sched
        for item in o.pf.split(","):
            where, what = item.split(":")
            L = sched.setdefault(where if where in ("START", "INIT") or where[0] == "X" else "B" + where, [])
            for w in what.split("+"):
                L.append((w.rstrip("0123456789"), int(w[len(w.rstrip("0123456789")):] or 0)))
        return sched

    def diag_store(self, vreg, waveadd):
        a = self.a
        a("s_lshl_b32 s%d, s2, 3" % sT0)
        a("s_add_u32 s%d, s%d, s%d" % (sT0, sT0, sWAVE))
        a("s_add_u32 s%d, s%d, %d" % (sT0, sT0, waveadd))
        a("s_lshl_b32 s%d, s%d, 8" % (sT0, sT0))
        a("s_add_u32 s%d, s%d, %d" % (sT0, sT0, WS_DIAG))
        a("s_add_u32 s68, s18, s%d" % sT0)
        a("s_addc_u32 s69, s19, 0")
        a("s_mov_b32 s70, 256")
        a("s_mov_b32 s71, 0x00020000")
        a("v_lshlrev_b32 v61, 2, v0")
        a("buffer_store_dword v%d, v61, s[68:71], 0 offen" % vreg)
        a("s_waitcnt vmcnt(0)")

    def barrier(self, name, pub=None, free=None):
        self.a("s_barrier")
        self.bars.append((name, pub, free))

    def unit_barrier(self, sc, u, first_of_phase):
        strict = u in (13, 29, 37, 45) or not self.o.lazy
        fr = []
        if strict:
            sc.wait_all()
            fr = [u] + ([u - 1] if (self.o.lazy and not first_of_phase) else [])
        elif not first_of_phase:
            fr = [u - 1]
        self.barrier("B%d" % u, pub=(u + 1 if u + 1 < NU else None), free=fr)
        return ("pub", u + 1)

    def compute(self):
        a = self.a; o = self.o
        sc = Sched(a)
        self.rest_srds(False)
        vLIN = 2
        pTR = [4, 5]
        pX = [6, 7, 60, 61]
        pK = [4, 5, 6, 7]
        aA = [8, 9, 10, 11]
        aX = [12, 13]
        SETS = [dict(A=[16, 20], B=[24, 28]), dict(A=[32, 36], B=[40, 44])]
        ACCQ, ACCS, ACCO = 64, 128, 128
        vM = [48, 49]; vSUM = [50, 51]
        vST, vSTR, vPW, vTMP = 52, 53, 54, 55
        vSTA, vSTB = 52, 53

        def mfma(acc, A, B, first):
            return "v_mfma_f32_32x32x16_bf16 v[%d:%d], v[%d:%d], v[%d:%d], %s" % (
                acc, acc + 15, A, A + 3, B, B + 3, "0" if first else "v[%d:%d]" % (acc, acc + 15))
        def tr_pattern(dst, hshift):
            L = ["v_bfe_u32 v3, v0, 2, 2", "v_lshlrev_b32 v3, 7, v3", "v_lshrrev_b32 v1, 5, v0",
                 "v_lshl_add_u32 v3, v1, %d, v3" % hshift, "v_bfe_u32 v1, v0, 4, 1", "v_lshl_add_u32 v3, v1, 5, v3",
                 "v_and_b32 v1, 3, v0", "v_lshl_add_u32 v3, v1, 3, v3", "v_bfe_u32 v1, v0, 3, 1", "v_lshl_add_u32 v3, v1, 6, v3",
                 "s_lshl_b32 s%d, s%d, 12" % (sT0, sWAVE), "v_add_u32 v%d, s%d, v3" % (dst[0], sT0),
                 "v_xor_b32 v%d, 64, v%d" % (dst[1], dst[0])]
            return L
        def setaddr(dst, pat, base):
            return ["v_add_u32 v%d, 0x%x, v%d" % (d, base, p) if base else "v_mov_b32 v%d, v%d" % (d, p) for d, p in zip(dst, pat)]

        a("v_lshlrev_b32 v%d, 4, v0" % vLIN)
        for l in tr_pattern(pTR, 10): a(l)
        a("v_and_b32 v3, 31, v0")
        a("v_bfe_u32 v1, v0, 1, 3")
        a("v_lshrrev_b32 v14, 5, v0")
        a("v_xor_b32 v1, v1, v14")
        a("v_lshlrev_b32 v1, 4, v1")
        a("v_lshl_add_u32 v%d, v3, 7, v1" % pX[0])
        for j in (1, 2, 3): a("v_xor_b32 v%d, %d, v%d" % (pX[j], j << 5, pX[0]))

        def two_k_phase(name, u0, nunits, loadA, loadB, setup, accf, groups, extra_events=None, pos=None, gate=None):
            pos = o.pos if pos is None else pos
            mf, loads, events = [], [], {}
            seen = set()
            def fid(tp, g, idx): return (name, tp, g, idx)
            nk = nunits * 2
            for g in range(nk):
                S = SETS[g & 1]
                for (mb, nb) in ((0, 0), (0, 1), (1, 0), (1, 1)):
                    acc = accf(mb, nb)
                    mf.append(dict(text=mfma(acc, S['A'][mb], S['B'][nb], acc not in seen), needs=[fid('A', g, mb), fid('B', g, nb)]))
                    seen.add(acc)
            for g in range(nk):
                S = SETS[g & 1]
                u, ks = u0 + g // 2, g % 2
                for n_, (tp, idx) in enumerate((('A', 0), ('B', 0), ('B', 1), ('A', 1))):
                    last = {('A', 0): 1, ('B', 0): 2, ('A', 1): 3, ('B', 1): 3}[(tp, idx)]
                    after = (g - 2) * 4 + last if g >= 2 else -1
                    ins = loadA(u, ks, idx, S['A'][idx]) if tp == 'A' else loadB(u, ks, idx, S['B'][idx])
                    pre_ins = setup(u) if (ks == 0 and n_ == 0) else []
                    evk = ("pub", u) if u > u0 else None
                    if gate and u in gate and tp == 'B': evk = gate[u]
                    loads.append(dict(id=fid(tp, g, idx), instrs=ins, valu=pre_ins, after_mf=after, after_ev=evk, pre=(g < 2)))
            for s_ in range(nunits):
                u = u0 + s_
                def ev(u=u, s_=s_):
                    return self.unit_barrier(sc, u, s_ == 0)
                events.setdefault(s_ * 8 + pos, []).append(ev)
            for k_, v_ in (extra_events or {}).items(): events.setdefault(k_, []).extend(v_)
            run_phase3(sc, mf, loads, events, groups, o.maxreads)

        nop16 = lambda: (a("s_nop 7"), a("s_nop 7"))

        self.stamp("c")
        self.barrier("INIT", pub=0)
        self.stamp("c")

        def q_setup(u):
            ad = unit_addr(u)[0]
            L = setaddr(aA[:2], pTR, ad)
            if u == 8: L += ["v_add_u32 v%d, 0x%x, v%d" % (r, x_addr(4), r) for r in pX]
            return L
        def q_loadA(u, ks, mb, r):
            return ["ds_read_b64_tr_b16 v[%d:%d], v%d offset:%d" % (r, r + 1, aA[mb], ks * 2048),
                    "ds_read_b64_tr_b16 v[%d:%d], v%d offset:%d" % (r + 2, r + 3, aA[mb], ks * 2048 + 512)]
        def q_loadB(u, ks, nb, r):
            return ["ds_read_b128 v[%d:%d], v%d offset:%d" % (r, r + 3, pX[2 * (u & 1) + ks], x_addr(u // 2) - (x_addr(4) if u >= 8 else 0) + nb * 4096)]
        fl = ["v_and_b32 v%d, 31, v0" % vSTR, "v_lshlrev_b32 v%d, 5, v%d" % (vSTR, vSTR),
              "v_lshrrev_b32 v3, 5, v0", "v_lshl_add_u32 v3, v3, 2, v%d" % vSTR,
              "s_lshl_b32 s%d, s%d, 3" % (sT0, sWAVE), "v_add_u32 v%d, s%d, v3" % (vST, sT0),
              "v_add_u32 v%d, 0x%x, v%d" % (vST, LDS_MAX, vST), "v_add_u32 v%d, 0x%x, v%d" % (vSTR, LDS_MAX, vSTR),
              "s_lshl_b32 s%d, s%d, 11" % (sT0, sWAVE), "v_add_u32 v%d, s%d, v%d" % (vPW, sT0, vLIN),
              "s_lshl_b32 s%d, s%d, 13" % (sT0, sWAVE), "v_add_u32 v%d, s%d, v%d" % (vTMP, sT0, vLIN),
              "v_and_b32 v3, 31, v0", "v_bfe_u32 v1, v0, 1, 3", "v_lshrrev_b32 v14, 5, v0", "v_xor_b32 v1, v1, v14",
              "v_lshlrev_b32 v1, 4, v1", "v_lshl_add_u32 v3, v3, 7, v1",
              "s_lshl_b32 s%d, s%d, 12" % (sT0, sWAVE), "v_add_u32 v56, s%d, v3" % sT0,
              "v_xor_b32 v57, 32, v56", "v_xor_b32 v58, 64, v56", "v_xor_b32 v59, 0x60, v56"]
        two_k_phase("Q", 0, NQ, q_loadA, q_loadB, q_setup, lambda mb, nb: ACCQ + (mb * 2 + nb) * 16, [dict(items=fl, start=16, end=90)])
        pK = [56, 57, 58, 59]
        nop16()
        self.stamp("c")
        for mb in range(2):
            for nb in range(2):
                acc = ACCQ + (mb * 2 + nb) * 16
                for half in range(2):
                    b0 = acc + 8 * half
                    for j in range(4):
                        a("v_cvt_pk_bf16_f32 v%d, v%d, v%d" % (b0 + j, b0 + 2 * j, b0 + 2 * j + 1))
                    a("s_nop 1")
                    a("v_permlane32_swap_b32 v%d, v%d" % (b0, b0 + 2))
                    a("v_permlane32_swap_b32 v%d, v%d" % (b0 + 1, b0 + 3))
                    sc.ds("ds_write_b128 v%d, v[%d:%d] offset:%d" % (vTMP, b0, b0 + 3, LDS_Q + ((2 * mb + half) * 2 + nb) * 1024))
        sc.wait_all()
        self.barrier("X1")
        self.stamp("c")

        SA = [16, 20, 24, 28]
        SB = [[64 + (ks * 2 + nb) * 4 for nb in range(2)] for ks in range(4)]
        mf, loads, events = [], [], {}
        seen = set()
        for k in range(NK):
            p, d, mb = k >> 3, (k >> 1) & 3, k & 1
            for ks in range(4):
                for nb in range(2):
                    acc = ACCS + ((2 * p + mb) * 2 + nb) * 16
                    mf.append(dict(text=mfma(acc, SA[ks], SB[ks][nb], acc not in seen),
                                   needs=[("S", "A", k, ks), ("S", "B", k >> 1, ks, nb)]))
                    seen.add(acc)
        for k in range(NK):
            p, d, mb = k >> 3, (k >> 1) & 3, k & 1
            u = UK0 + k
            for ks in range(4):
                if mb == 0:
                    for nb in range(2):
                        dd = k >> 1
                        after = (2 * dd - 1) * 8 + 2 * ks + nb if dd >= 1 else -1
                        loads.append(dict(id=("S", "B", dd, ks, nb), valu=[], after_mf=after, after_ev=None, pre=(k == 0),
                                          instrs=["ds_read_b128 v[%d:%d], v%d offset:%d" % (SB[ks][nb], SB[ks][nb] + 3, vLIN,
                                                                                           LDS_Q + ((d * 4 + ks) * 2 + nb) * 1024)]))
                after = (k - 1) * 8 + 2 * ks + 1 if k >= 1 else -1
                pre_ins = setaddr(aA, pK, unit_addr(u)[0]) if ks == 0 else []
                loads.append(dict(id=("S", "A", k, ks), valu=pre_ins, after_mf=after, after_ev=(("pub", u) if k > 0 else None), pre=(k == 0),
                                  instrs=["ds_read_b128 v[%d:%d], v%d offset:0" % (SA[ks], SA[ks] + 3, aA[ks])]))
        order = []
        byid = {l["id"]: l for l in loads}
        for k in range(NK):
            for ks in range(4):
                ids = []
                if (k & 1) == 0: ids += [("S", "B", k >> 1, ks, 0)]
                ids += [("S", "A", k, ks)]
                if (k & 1) == 0: ids += [("S", "B", k >> 1, ks, 1)]
                order += [byid[i] for i in ids]
        for k in range(NK):
            u = UK0 + k
            def ev(u=u, k=k):
                return self.unit_barrier(sc, u, k == 0)
            events.setdefault(k * 8 + o.spos, []).append(ev)
        def maxchain(nb, mbs, first):
            regs = [ACCS + (mb * 2 + nb) * 16 + r for mb in mbs for r in range(16)]
            d = vM[nb]; out = []
            i = 0
            if first:
                out.append("v_max3_f32 v%d, v%d, v%d, v%d" % (d, regs[0], regs[1], regs[2])); i = 3
            while i + 1 < len(regs):
                out.append("v_max3_f32 v%d, v%d, v%d, v%d" % (d, d, regs[i], regs[i + 1])); i += 2
            if i < len(regs): out.append("v_max_f32 v%d, v%d, v%d" % (d, d, regs[i]))
            return out
        f1 = []
        for x, y in zip(maxchain(0, (0, 1), True), maxchain(1, (0, 1), True)): f1 += [x, y]
        f2 = []
        for x, y in zip(maxchain(0, (2,), False), maxchain(1, (2,), False)): f2 += [x, y]
        groups = [dict(items=f1, start=70, end=110), dict(items=tr_pattern(pTR, 9), start=20, end=60),
                  dict(items=["s_nop 6"] + f2, start=124, end=127)]
        run_phase3(sc, mf, order, events, groups, o.maxreads)
        a("s_nop 7"); a("s_nop 3")
        self.stamp("c")
        for x, y in zip(maxchain(0, (3,), False), maxchain(1, (3,), False)): a(x); a(y)
        for nb in range(2):
            sc.ds("ds_write_b32 v%d, v%d offset:%d" % (vST, vM[nb], nb * 1024))
        sc.wait_all()
        if o.diag2: self.stamp("c")
        self.barrier("X2")
        if o.diag2: self.stamp("c")
        for nb in range(2):
            sc.ds("ds_read_b128 v[%d:%d], v%d offset:%d" % (16 + nb * 8, 19 + nb * 8, vSTR, nb * 1024))
            sc.ds("ds_read_b128 v[%d:%d], v%d offset:%d" % (20 + nb * 8, 23 + nb * 8, vSTR, nb * 1024 + 16))
        sc.wait_all()
        for nb in range(2):
            b = 16 + nb * 8
            a("v_max3_f32 v%d, v%d, v%d, v%d" % (vM[nb], b, b + 1, b + 2))
            a("v_max3_f32 v%d, v%d, v%d, v%d" % (vM[nb], vM[nb], b + 3, b + 4))
            a("v_max3_f32 v%d, v%d, v%d, v%d" % (vM[nb], vM[nb], b + 5, b + 6))
            a("v_max_f32 v%d, v%d, v%d" % (vM[nb], vM[nb], b + 7))
            a("v_mul_f32 v%d, s%d, v%d" % (vM[nb], sC1, vM[nb]))

        def pack_reg(sub, nb):
            return (ACCQ + sub * 8 + nb * 4) if sub < 4 else (ACCS + (sub - 4) * 8 + nb * 4)
        def val_regs(sub):
            c, h = sub >> 1, sub & 1
            return [(nb, ACCS + (c * 2 + nb) * 16 + 8 * h + r) for nb in range(2) for r in range(8)]
        def softmax_list(sub):
            regs = val_regs(sub)
            L = []
            for i in range(16 + 3):
                if i < 16:
                    nb, r = regs[i]; L.append("v_fma_f32 v%d, v%d, s%d, -v%d" % (r, r, sC1, vM[nb]))
                if 0 <= i - 2 < 16:
                    nb, r = regs[i - 2]; L.append("v_exp_f32 v%d, v%d" % (r, r))
                j = i - 3
                if j >= 2 and j % 2 == 0 and j <= 16:
                    nb, r0 = regs[j - 2]
                    L.append("v_cvt_pk_bf16_f32 v%d, v%d, v%d" % (pack_reg(sub, nb) + ((j - 2) % 8) // 2, r0, r0 + 1))
            nb, r0 = regs[14]
            if not any(("v%d, v%d, v%d" % (pack_reg(sub, nb) + 3, r0, r0 + 1)) in x for x in L):
                L.append("s_nop 0")
                L.append("v_cvt_pk_bf16_f32 v%d, v%d, v%d" % (pack_reg(sub, nb) + 3, r0, r0 + 1))
            assert sum(x.startswith("v_cvt") for x in L) == 8
            return L
        def sum_list(sub):
            L = []
            regs = val_regs(sub)
            for k in range(8):
                for nb in range(2):
                    r = regs[nb * 8 + k][1]
                    if sub == 0 and k == 0: L.append("v_mov_b32 v%d, v%d" % (vSUM[nb], r))
                    else: L.append("v_add_f32 v%d, v%d, v%d" % (vSUM[nb], vSUM[nb], r))
            return L
        def p_write1(sub, nb):
            b0 = pack_reg(sub, nb)
            sc.ds("ds_write_b128 v%d, v[%d:%d] offset:%d" % (vPW, b0, b0 + 3, LDS_P[sub % 4] + nb * 1024))
        def p_write(sub):
            for nb in range(2): p_write1(sub, nb)
        if o.diag2: self.stamp("c")
        if o.t0late:
            for sub in range(o.t0subs):
                for f in softmax_list(sub): a(f)
            if o.diag2: self.stamp("c")
            for sub in range(o.t0subs): p_write(sub)
        else:
            for sub in range(o.t0subs):
                for f in softmax_list(sub): a(f)
                p_write(sub)
        if o.diag2: self.stamp("c")
        sc.wait_all()
        self.barrier("X3")
        self.stamp("c")

        def v_setup(u): return setaddr(aA[:2], pTR, unit_addr(u)[0])
        def v_loadA(u, ks, mb, r):
            return ["ds_read_b64_tr_b16 v[%d:%d], v%d offset:%d" % (r, r + 1, aA[mb], ks * 2048),
                    "ds_read_b64_tr_b16 v[%d:%d], v%d offset:%d" % (r + 2, r + 3, aA[mb], ks * 2048 + 1024)]
        def v_loadB(u, ks, nb, r):
            c, h, wp = v_unit(u - UV0)
            return ["ds_read_b128 v[%d:%d], v%d offset:%d" % (r, r + 3, vLIN, LDS_P[(2 * c + h) % 4] + (2 * wp + ks) * 2048 + nb * 1024)]
        groups = []
        items = sum_list(0) + sum_list(1)
        for sub in range(4, 8): items += softmax_list(sub)
        if "nosoft" in o.exp: items = []
        groups.append(dict(items=items, start=0, end=7 * 8 + o.pos - 1))
        def window():
            if "nowrite" not in o.exp:
                for sub in range(4, 8): p_write(sub)
            return None
        wev = {7 * 8 + o.pos: [window]}
        def window_close():
            sc.wait_all()
            self.barrier("X5")
            return "X5"
        wev.setdefault(7 * 8 + o.wclose, []).append(window_close)
        items = []
        for sub in range(2, 8): items += sum_list(sub)
        groups.append(dict(items=items, start=8 * 8 + 2, end=14 * 8))
        pW = 56; vOB = 58
        fl = ["s_lshl_b32 s%d, s%d, 12" % (sT0, sWAVE), "v_subrev_u32 v%d, s%d, v%d" % (pW, sT0, pTR[0]),
              "s_lshr_b32 s%d, s%d, 1" % (sT0, sWAVE), "s_lshl_b32 s%d, s%d, 6" % (sT0, sT0),
              "v_xor_b32 v%d, s%d, v%d" % (pW, sT0, pW),
              "s_and_b32 s%d, s%d, 1" % (sT0, sWAVE), "s_lshl_b32 s%d, s%d, 10" % (sT0, sT0),
              "s_add_u32 s%d, s%d, %d" % (sT0, sT0, LDS_O), "v_add_u32 v%d, s%d, v%d" % (vOB, sT0, vLIN),
              "s_lshl_b32 s%d, s%d, 11" % (sT0, sWAVE), "v_add_u32 v59, s%d, v%d" % (sT0, vLIN)]
        groups.append(dict(items=fl, start=12 * 8, end=14 * 8))
        two_k_phase("V", UV0, NV, v_loadA, v_loadB, v_setup, lambda mb, nb: ACCQ + (mb * 2 + nb) * 16, groups, extra_events=wev,
                    gate={UV0 + 8: "X5"})
        nop16()
        self.stamp("c")
        for nb in range(2):
            sc.ds("ds_write_b32 v%d, v%d offset:%d" % (vSTA, vSUM[nb], nb * 1024))
        for mb in range(2):
            for nb in range(2):
                acc = ACCQ + (mb * 2 + nb) * 16
                for half in range(2):
                    b0 = acc + 8 * half
                    for j in range(4):
                        a("v_cvt_pk_bf16_f32 v%d, v%d, v%d" % (b0 + j, b0 + 2 * j, b0 + 2 * j + 1))
                    sc.ds("ds_write_b128 v%d, v[%d:%d] offset:%d" % (vTMP, b0, b0 + 3, LDS_O + ((2 * mb + half) * 2 + nb) * 1024))
        sc.wait_all()
        self.barrier("X4")
        self.stamp("c")

        NSET = 6
        OA = [16 + 4 * i for i in range(NSET)]
        OB = [64 + 4 * i for i in range(16)]
        OACC = [128, 160]
        aW = 8
        vOUT = 59
        mf, loads, events, groups = [], [], {}, []
        for g in range(NO * 8):
            j, kk = g // 16, g % 16
            mf.append(dict(text=mfma(OACC[j & 1] + 16 * (kk & 1), OA[g % NSET], OB[kk], kk < 2),
                           needs=[("O", "A", g)] + ([("O", "B", kk)] if j == 0 else [])))
        for g in range(NO * 8):
            u, ks = UO0 + g // 8, g % 8
            if g < 16:
                loads.append(dict(id=("O", "B", g), valu=[], after_mf=-1, after_ev=None, pre=(g < 4),
                                  instrs=["ds_read_b128 v[%d:%d], v%d offset:%d" % (OB[g], OB[g] + 3, vOB, g * 2048)]))
            pre_ins = setaddr([aW], [pW], unit_addr(u)[0]) if ks == 0 else []
            r = OA[g % NSET]
            loads.append(dict(id=("O", "A", g), valu=pre_ins, after_mf=(g - NSET if g >= NSET else -1),
                              after_ev=(("pub", u) if u > UO0 else None), pre=(g < 4),
                              instrs=["ds_read_b64_tr_b16 v[%d:%d], v%d offset:%d" % (r, r + 1, aW, ks * 2048),
                                      "ds_read_b64_tr_b16 v[%d:%d], v%d offset:%d" % (r + 2, r + 3, aW, ks * 2048 + 1024)]))
        for s_ in range(NO - 1):
            u = UO0 + s_
            def ev(u=u, s_=s_):
                return self.unit_barrier(sc, u, s_ == 0)
            events[s_ * 8 + o.obar] = [ev]
        vRI = 50
        def rd_sums():
            sc.ds("ds_read_b128 v[192:195], v60 offset:0")
            sc.ds("ds_read_b128 v[196:199], v60 offset:16", "sums")
        fl = ["s_and_b32 s%d, s%d, 1" % (sT0, sWAVE), "s_lshl_b32 s%d, s%d, 10" % (sT0, sT0), "v_add_u32 v60, s%d, v%d" % (sT0, vSTB), rd_sums]
        groups.append(dict(items=fl, start=1, end=2))
        fl = [lambda: sc.wait_frags(["sums"])]
        for k in range(1, 8): fl.append("v_add_f32 v192, v192, v%d" % (192 + k))
        fl.append("v_rcp_f32 v%d, v192" % vRI)
        groups.append(dict(items=fl, start=6, end=12))
        def epilogue(j):
            L = []
            for r in range(16): L.append("v_add_f32 v%d, v%d, v%d" % (OACC[j & 1] + r, OACC[j & 1] + r, OACC[j & 1] + 16 + r))
            for r in range(16): L.append("v_mul_f32 v%d, v%d, v%d" % (OACC[j & 1] + r, OACC[j & 1] + r, vRI))
            for half in range(2):
                b0 = OACC[j & 1] + 8 * half
                for q in range(4):
                    L.append("v_cvt_pk_bf16_f32 v%d, v%d, v%d" % (b0 + q, b0 + 2 * q, b0 + 2 * q + 1))
                L.append("s_mov_b32 s%d, %d\nbuffer_store_dwordx4 v[%d:%d], v%d, s[%d:%d], s%d offen%s" % (
                    sOFF, j * 8192 + half * 1024, b0, b0 + 3, vOUT, S_WS, S_WS + 3, sOFF, o.storeflags))
            return L
        for j in range(6):
            groups.append(dict(items=epilogue(j), start=16 * (j + 1) + 4, end=16 * (j + 1) + 15))
        run_phase3(sc, mf, loads, events, groups, o.maxreads)
        nop16()
        self.stamp("c")
        for l in epilogue(6): a(l)
        if o.diag:
            a("s_waitcnt vmcnt(0)")
            a("s_memrealtime s[%d:%d]" % (sSTA, sSTA + 1))
            a("s_memtime s[74:75]")
            a("s_waitcnt lgkmcnt(0)")
            a("s_sub_u32 s74, s74, s72")
            a("v_writelane_b32 v15, s74, 61")
            a("v_writelane_b32 v15, s72, 60")
            a("v_writelane_b32 v15, s%d, 62" % sSTB)
            a("v_writelane_b32 v15, s%d, 63" % sSTA)
            self.diag_store(15, 0)
        a.label("K1_EXIT")
        a("s_endpgm")

    def gen(self):
        self.prologue()
        head = self.a
        self.a = Asm(); self.a.nlabel = head.nlabel
        self.a.label("K1_COMPUTE")
        self.compute()
        comp = self.a
        self.a = Asm(); self.a.nlabel = comp.nlabel + 1000
        self.loader()
        return head.text() + self.a.text() + comp.text()

GAP_ROOM = 22
def run_phase3(sc, mf, loads, events, groups, maxreads=2):
    a = sc.a
    pend = list(loads)
    evdone = set()
    n = len(mf)
    groups = [dict(items=list(g["items"]), start=g["start"], end=min(g["end"], n - 1)) for g in groups]
    def ok(l, i):
        return l["after_mf"] <= i and (l.get("after_ev") is None or l["after_ev"] in evdone)
    def pop():
        l = pend.pop(0)
        for t in l.get("valu", []): a(t)
        for t in l["instrs"]: sc.ds(t, l["id"])
        return len(l["instrs"])
    while pend and pend[0].get("pre", False):
        pop()
    for i, m in enumerate(mf):
        ids = set(p["id"] for p in pend)
        while any(f in ids for f in m["needs"]):
            assert ok(pend[0], i - 1), (i, pend[0])
            pop()
            ids = set(p["id"] for p in pend)
        sc.wait_frags(m["needs"])
        a(m["text"])
        for ev in events.get(i, []):
            key = ev()
            if key is not None: evdone.add(key)
        k = 0
        while pend and k < maxreads and ok(pend[0], i):
            k += pop()
        room = GAP_ROOM - 4 * k
        for g in groups:
            if g["items"] and i >= g["start"]:
                left = max(1, g["end"] - i + 1)
                cost = lambda f: 4 if callable(f) else (8 if f.startswith(("v_exp", "v_rcp")) else (2 if f.startswith("s_") else 4))
                total = sum(cost(f) for f in g["items"])
                need = total / float(left)
                g["credit"] = g.get("credit", 0.0) + need
                allow = max(room, 0)
                while g["items"]:
                    c = cost(g["items"][0])
                    must = (left == 1) or (total > (left - 1) * GAP_ROOM * 0.75)
                    if not (must or (c <= allow and g["credit"] >= -8)): break
                    f = g["items"].pop(0)
                    g["credit"] -= c; allow -= c; room -= c; total -= c
                    f() if callable(f) else a(f)
    assert all(not g["items"] for g in groups), "fillers left"
    assert not pend, "loads left"

def gen_k2(opt):
    a = Asm()
    kernel_begin(a, "k2_kernel")
    a("s_cmp_ge_u32 s2, 224")
    a("s_cbranch_scc1 K2_END")
    a("s_load_dwordx2 s[4:5], s[0:1], 40")
    a("s_load_dwordx2 s[6:7], s[0:1], 56")
    a("v_lshrrev_b32 v1, 6, v0")
    a("v_and_b32 v0, 63, v0")
    a("v_readfirstlane_b32 s3, v1")
    a("s_lshl_b32 s8, s2, 2")
    a("s_add_u32 s8, s8, s3")
    a("s_mul_i32 s9, s8, 9363")
    a("s_lshr_b32 s9, s9, 19")
    a("s_mul_i32 s10, s9, 56")
    a("s_sub_u32 s10, s8, s10")
    a("s_mul_i32 s11, s9, %d" % (16 * 57344))
    a("s_lshl_b32 s12, s10, 10")
    a("s_add_u32 s11, s11, s12")
    a("v_lshlrev_b32 v2, 4, v0")
    a("s_waitcnt lgkmcnt(0)")
    a("s_add_u32 s16, s6, s11")
    a("s_addc_u32 s17, s7, 0")
    a("s_mov_b32 s18, %d" % (16 * 57344))
    a("s_mov_b32 s19, 0x00020000")
    a("s_mov_b32 s20, 0")
    for h in range(16):
        a("buffer_load_dwordx4 v[%d:%d], v2, s[16:19], s20 offen%s" % (16 + 4 * h, 19 + 4 * h, opt.k2flags))
        if h < 15: a("s_add_u32 s20, s20, 57344")
    a("s_and_b32 s22, s10, 1")
    a("s_bfe_u32 s23, s10, 0x20001")
    a("s_lshr_b32 s24, s10, 3")
    a("s_and_b32 s25, s23, 1")
    a("s_lshl_b32 s25, s25, 5")
    a("s_lshl_b32 s26, s9, 6")
    a("s_add_u32 s25, s25, s26")
    a("s_lshl_b32 s26, s24, 6")
    a("s_lshr_b32 s27, s23, 1")
    a("s_lshl_b32 s27, s27, 5")
    a("s_add_u32 s26, s26, s27")
    a("s_lshl_b32 s27, s22, 4")
    a("s_add_u32 s26, s26, s27")
    a("s_mul_i32 s25, s25, 896")
    a("s_lshl_b32 s26, s26, 1")
    a("s_add_u32 s25, s25, s26")
    a("v_and_b32 v3, 31, v0")
    a("v_mul_u32_u24 v3, 896, v3")
    a("v_lshrrev_b32 v4, 5, v0")
    a("v_lshl_add_u32 v3, v4, 4, v3")
    a("v_add_u32 v3, s25, v3")
    a("s_mov_b32 s28, s4\ns_mov_b32 s29, s5\ns_mov_b32 s30, %d\ns_mov_b32 s31, 0x00020000" % (1024 * 896))
    for h in range(16):
        a("s_waitcnt vmcnt(%d)" % (15 - h))
        for j in range(4):
            r = 16 + 4 * h + j
            if h == 0:
                a("v_lshlrev_b32 v%d, 16, v%d" % (4 + 2 * j, r))
                a("v_and_b32 v%d, 0xffff0000, v%d" % (5 + 2 * j, r))
            else:
                a("v_lshlrev_b32 v12, 16, v%d" % r)
                a("v_and_b32 v13, 0xffff0000, v%d" % r)
                a("v_add_f32 v%d, v%d, v12" % (4 + 2 * j, 4 + 2 * j))
                a("v_add_f32 v%d, v%d, v13" % (5 + 2 * j, 5 + 2 * j))
    for j in range(4):
        a("v_cvt_pk_bf16_f32 v%d, v%d, v%d" % (12 + j, 4 + 2 * j, 5 + 2 * j))
    a("s_nop 1")
    a("v_permlane32_swap_b32 v12, v14")
    a("v_permlane32_swap_b32 v13, v15")
    a("buffer_store_dwordx4 v[12:15], v3, s[28:31], 0 offen")
    a.label("K2_END")
    a("s_endpgm")
    return a.text()

def build(opt):
    k1 = K1(opt).gen()
    k2 = gen_k2(opt)
    s = HEADER
    s += "; @launch kernel=k1_kernel grid=(256,1,1) block=(512,1,1) lds=%d\n" % LDS_TOTAL
    if not opt.nok2:
        s += "; @launch kernel=k2_kernel grid=(224,1,1) block=(256,1,1) lds=0\n"
    s += '.amdgcn_target "amdgcn-amd-amdhsa--gfx950"\n.text\n'
    s += k1
    if not opt.nok2: s += k2
    s += "K_ALL_END:\n"
    s += '.section .rodata,"a"\n.p2align 6\n' + kernel_desc("k1_kernel", 256, 96)
    if not opt.nok2:
        s += '.p2align 6\n' + kernel_desc("k2_kernel", 80, 48)
    return s

def parse(argv=None):
    ap = argparse.ArgumentParser()
    ap.add_argument("-o", default="k3.s")
    ap.add_argument("--diag", action="store_true")
    ap.add_argument("--rt", action="store_true")
    ap.add_argument("--nok2", action="store_true")
    ap.add_argument("--storeflags", default="")
    ap.add_argument("--nt", default="")
    ap.add_argument("--pos", type=int, default=2)
    ap.add_argument("--spos", type=int, default=2)
    ap.add_argument("--obar", type=int, default=4)
    ap.add_argument("--maxreads", type=int, default=2)
    ap.add_argument("--nfirst", type=int, default=3)
    ap.add_argument("--exp", default="")
    ap.add_argument("--lazy", type=int, default=1)
    ap.add_argument("--t0late", action="store_true")
    ap.add_argument("--k2flags", default="")
    ap.add_argument("--codepf", type=int, default=0x7000)
    ap.add_argument("--wclose", type=int, default=4)
    ap.add_argument("--srange", default="")
    ap.add_argument("--wspread", type=int, default=4)
    ap.add_argument("--la", type=int, default=3)
    ap.add_argument("--lao", type=int, default=2)
    ap.add_argument("--skip", default="")
    ap.add_argument("--drain", default="")
    ap.add_argument("--tgt", default="11:16,12:16,13:16,27:31,28:31,29:31,X2:34,X3:41,30:41,31:41,32:41,33:41,34:41,35:41,36:41,37:41,X5:48,38:48,39:48,40:48,41:48,42:48,43:48,44:48,45:48")
    ap.add_argument("--bud", default="INIT:12,0:10,1:8,2:6,X2:12,36:0,37:0,44:0,45:0,13:0,29:0")
    ap.add_argument("--budget", type=int, default=5)
    ap.add_argument("--budo", type=int, default=7)
    ap.add_argument("--t0subs", type=int, default=4)
    ap.add_argument("--early", type=int, default=5)
    ap.add_argument("--early1", type=int, default=1)
    ap.add_argument("--diag2", action="store_true")
    ap.add_argument("--maxissue", type=int, default=2)
    ap.add_argument("--pf", default="")
    ap.add_argument("--pfflags", default="")
    ap.add_argument("--dbgstamp", action="store_true")
    ap.add_argument("--spin", type=int, default=0)
    ap.add_argument("--spin2", default="")
    ap.add_argument("--spinwg", type=int, default=0)
    return ap.parse_args(argv)

if __name__ == "__main__":
    opt = parse()
    open(opt.o, "w").write(build(opt))
```
